```python
import torch

def _softmax(x, axis=-1):
    return torch.softmax(x, dim=axis)
def _gelu(x):
    return torch.nn.functional.gelu(x, approximate="tanh")
def _silu(x):
    return torch.nn.functional.silu(x)
def _sigmoid(x):
    return torch.sigmoid(x)
def _layernorm(x, axis=-1, eps=1e-5):
    m = x.mean(dim=axis, keepdim=True)
    v = x.var(dim=axis, keepdim=True, unbiased=False)
    return (x - m) / torch.sqrt(v + eps)
def _scatter_add(tgt, idx, src, axis=0):
    return tgt.clone().index_add_(axis, idx, src)
def _segment_sum(src, seg, n):
    out = torch.zeros((n,) + src.shape[1:], dtype=src.dtype)
    return out.index_add_(0, seg, src)
def _pad(x, pw):
    flat = tuple(v for pair in reversed(pw) for v in pair)
    return torch.nn.functional.pad(x, flat)

kernel_name = 'gated_mix__ssm_conv_s4d__dense_activation_squared_relu__prompt'

def setup_inputs():

    _w = (lambda a: (lambda t: t.to(torch.bfloat16) if t.is_floating_point() else t)(torch.as_tensor(a)))
    def _A_setup():
        Bsz, L, D, N = 1, 2048, 512, 128
        return {
            "u": _w((lambda *s: torch.randn(*s, dtype=torch.bfloat16) * 0.05)(Bsz, L, D)),
            "log_A_real": _w((lambda *s: torch.randn(*s, dtype=torch.bfloat16) * 6.4)(D, N) * 0.5),
            "A_imag": _w((lambda *s: torch.randn(*s, dtype=torch.bfloat16) * 0.1)(D, N) * 3.14),
            "C_real": _w((lambda *s: torch.randn(*s, dtype=torch.bfloat16) * 0.4)(D, N) / N ** 0.5),
            "C_imag": _w((lambda *s: torch.randn(*s, dtype=torch.bfloat16) * 0.4)(D, N) / N ** 0.5),
            "log_dt": _w((lambda *s: torch.randn(*s, dtype=torch.bfloat16) * 0.1)(D) * 0.5 - 4.0),
            "D_skip": _w((lambda *s: torch.randn(*s, dtype=torch.bfloat16) * 0.1)(D)),
        }
    _A_in = _A_setup()

    def _B_setup():
        B, S, D, F = 1, 2048, 512, 1792
        return {
            "x": _w((lambda *s: torch.randn(*s, dtype=torch.bfloat16) * 0.05)(B, S, D)),
            "w1": _w((lambda *s: torch.randn(*s, dtype=torch.bfloat16) * 0.05)(D, F)),
            "b1": _w((lambda *s: torch.randn(*s, dtype=torch.bfloat16) * 0.05)(F)),
            "w2": _w((lambda *s: torch.randn(*s, dtype=torch.bfloat16) * 0.05)(F, D)),
            "b2": _w((lambda *s: torch.randn(*s, dtype=torch.bfloat16) * 0.05)(D)),
        }
    _B_in = _B_setup()

    return {
        "A_u": _A_in["u"],
        "A_log_A_real": _A_in["log_A_real"],
        "A_A_imag": _A_in["A_imag"],
        "A_C_real": _A_in["C_real"],
        "A_C_imag": _A_in["C_imag"],
        "A_log_dt": _A_in["log_dt"],
        "A_D_skip": _A_in["D_skip"],
        "B_x": _B_in["x"],
        "B_w1": _B_in["w1"],
        "B_b1": _B_in["b1"],
        "B_w2": _B_in["w2"],
        "B_b2": _B_in["b2"],
        "gate_w": _w((lambda *s: torch.randn(*s, dtype=torch.bfloat16) * 0.05)(512) * 16.0),
    }

def reference(A_u, A_log_A_real, A_A_imag, A_C_real, A_C_imag, A_log_dt, A_D_skip, B_x, B_w1, B_b1, B_w2, B_b2, gate_w):
    def _A_ref(u, log_A_real, A_imag, C_real, C_imag, log_dt, D_skip):
        L = u.shape[1]
        dt = torch.exp(log_dt)
        A = -torch.exp(log_A_real) + 1j * A_imag
        C = (C_real + 1j * C_imag) * dt[:, None]
        pos = (lambda x, dt: x.to(dt))(torch.arange(L), log_dt.dtype)
        P = torch.exp((A * dt[:, None])[:, :, None] * pos[None, None, :])
        K = 2.0 * torch.einsum("dn,dnl->dl", C, P).real
        L2 = 2 * L
        u_t = (lambda x, *d: x.permute(*d))(u, 0, 2, 1)
        Kf = (lambda x, *a, **k: torch.fft.rfft(x.float(), *a, **k))(K, L2)
        Uf = (lambda x, *a, **k: torch.fft.rfft(x.float(), *a, **k))(u_t, L2)
        y = (lambda x, *a, **k: torch.fft.irfft(x, *a, **k).to(torch.bfloat16))(Uf * Kf[None, :, :], L2)[:, :, :L]
        y = (lambda x, *d: x.permute(*d))(y, 0, 2, 1)
        return y + u * D_skip[None, None, :]

    def _B_ref(x, w1, b1, w2, b2):
        h = torch.einsum("bsd,df->bsf", x, w1) + b1
        zero = torch.zeros_like(h)
        r = torch.where(h > zero, h, zero)
        h = r * r
        out = torch.einsum("bsf,fd->bsd", h, w2) + b2
        return out

    x = A_u
    g = _sigmoid((x * gate_w).sum(-1, keepdims=True))
    a = _A_ref(x, A_log_A_real, A_A_imag, A_C_real, A_C_imag, A_log_dt, A_D_skip)
    b = _B_ref(x, B_w1, B_b1, B_w2, B_b2)
    return g * a + (1 - g) * b
```

```python
import sys, struct
NAME = "gated_mix__ssm_conv_s4d__dense_activation_squared_relu__prompt"
STAMP = "--stamp" in sys.argv

HF_OFF = 0
HF_SZ = 64*112*1024
WF_OFF = HF_SZ
WF_SZ = 16*112*1024
A4_OFF = WF_OFF + WF_SZ
A4_SZ = 128*2048*8
G_OFF = A4_OFF + A4_SZ
G_SZ = 2048*8
WS_USED = G_OFF + G_SZ
ST_OFF = 0x1000000

out = []
def e(s): out.append("    " + s)
def lab(s): out.append(s + ":")
def cm(s): out.append("    ; " + s)
def f32(x): return "0x%08x" % struct.unpack("<I", struct.pack("<f", x))[0]
def vr(a, n): return f"v[{a}:{a+n-1}]"
def ar(a, n): return f"a[{a}:{a+n-1}]"
def sr(a, n): return f"s[{a}:{a+n-1}]"
def srd(d, ptr, size, off=None):
    if off is None:
        e(f"s_mov_b32 s{d}, s{ptr}"); e(f"s_mov_b32 s{d+1}, s{ptr+1}")
    else:
        e(f"s_add_u32 s{d}, s{ptr}, {off}"); e(f"s_addc_u32 s{d+1}, s{ptr+1}, 0")
    e(f"s_mov_b32 s{d+2}, {size}"); e(f"s_mov_b32 s{d+3}, 0x20000")

def stamp(idx, kern, wsp, tmp=250):
    if not STAMP: return
    e("s_memrealtime s[96:97]")
    e("s_lshl_b32 s98, s2, 3"); e("s_add_u32 s98, s98, s3"); e("s_lshl_b32 s98, s98, 6")
    e(f"s_add_u32 s98, s98, {ST_OFF + kern*0x40000 + idx*8}")
    e("s_waitcnt lgkmcnt(0)")
    e(f"v_mov_b32 v{tmp}, s96"); e(f"v_mov_b32 v{tmp+1}, s97"); e(f"v_mov_b32 v{tmp+2}, s98")
    e(f"global_store_dwordx2 v{tmp+2}, v[{tmp}:{tmp+1}], s[{wsp}:{wsp+1}]")

P_U, P_LAR, P_AIM, P_CR, P_CI, P_LDT, P_DSK = 16, 18, 20, 22, 24, 26, 28
P_W1, P_B1, P_W2, P_B2, P_GW, P_OUT, P_DBG, P_WS = 32, 34, 36, 38, 40, 42, 44, 46
LOG2E = 1.4426950408889634
L_HI = struct.unpack("<f", struct.pack("<f", LOG2E))[0]
L_LO = LOG2E - L_HI
LN2 = 0.6931471805599453

def prologue(nwg):
    e(f"s_cmp_ge_u32 s2, {nwg}")
    e("s_cbranch_scc1 " + EXIT)
    e("s_load_dwordx16 s[16:31], s[0:1], 0")
    e("s_load_dwordx16 s[32:47], s[0:1], 64")
    e("v_lshrrev_b32 v2, 6, v0")
    e("v_and_b32 v1, 63, v0")
    e("v_readfirstlane_b32 s3, v2")
    e("s_and_b32 s4, s2, 7")
    e("s_lshr_b32 s5, s2, 3")

def gemm1():
    SX, SW, SH, SB = 48, 52, 56, 60
    XS = [0, 32768, 65536]; WB = 98304; WS_ = 16384
    vX0, vX1, vW = 2, 3, 4
    vXa, vXb, vWa = 8, 12, 16
    vH = 18
    F = [32, 48]
    ACC = 64
    cm("---- GEMM1: mt = s4, ft = s5")
    e("s_lshl_b32 s6, s4, 18")
    e("s_lshl_b32 s7, s3, 15")
    e("v_lshrrev_b32 v5, 3, v1")
    e("v_lshrrev_b32 v6, 4, v1")
    e("v_and_b32 v7, 7, v1")
    e("v_xor_b32 v7, v7, v6")
    e("v_lshlrev_b32 v7, 4, v7")
    e(f"v_lshl_add_u32 v{vX0}, v5, 10, v7")
    e(f"v_add_u32 v{vX0}, s7, v{vX0}")
    e(f"v_xor_b32 v{vX1}, 64, v{vX0}")
    e(f"v_add_u32 v{vX1}, 0x2000, v{vX1}")
    e("s_mul_i32 s7, s3, %d" % (8*3584))
    e("s_lshl_b32 s8, s5, 8")
    e("s_add_u32 s7, s7, s8")
    e("v_and_b32 v7, 15, v1")
    e("v_lshlrev_b32 v5, 2, v6")
    e("v_xor_b32 v7, v7, v5")
    e("v_lshlrev_b32 v7, 4, v7")
    e("v_mul_u32_u24 v5, 3584, v6")
    e(f"v_add3_u32 v{vW}, v5, v7, s7")
    e("s_lshl_b32 s9, s3, 12")
    e("s_lshl_b32 s10, s3, 11")
    e(f"s_add_u32 s10, s10, {WB}")
    e("s_and_b32 s11, s3, 3")
    e("s_lshr_b32 s12, s3, 2")
    e("s_lshl_b32 s13, s12, 7")
    e("s_add_u32 s13, s13, s8")
    e("v_lshrrev_b32 v5, 5, v1")
    e("v_lshl_add_u32 v7, v5, 3, s13")
    e("s_waitcnt lgkmcnt(0)")
    stamp(0, 0, P_WS)
    srd(SX, P_U, 262144, "s6")
    srd(SW, P_W1, 512*3584)
    srd(SB, P_B1, 3584)
    srd(SH, P_WS, HF_SZ)
    for b in range(2):
        for j in range(4):
            e(f"buffer_load_dwordx2 {vr(128+8*b+2*j,2)}, v7, {sr(SB,4)}, 0 offen offset:{64*b+16*j}")
    def issue(s):
        sl = s % 3
        e(f"s_add_u32 m0, s9, {XS[sl]}")
        e(f"s_movk_i32 s14, {128*s}")
        e(f"buffer_load_dwordx4 v{vX0}, {sr(SX,4)}, s14 offen lds")
        e("s_add_u32 m0, m0, 1024")
        e(f"s_movk_i32 s15, {128*s+16384}")
        e(f"buffer_load_dwordx4 v{vX1}, {sr(SX,4)}, s14 offen lds")
        e("s_add_u32 m0, m0, 1024")
        e(f"s_mov_b32 s64, {s*64*3584}")
        e(f"buffer_load_dwordx4 v{vX0}, {sr(SX,4)}, s15 offen lds")
        e("s_add_u32 m0, m0, 1024")
        e(f"s_mov_b32 s65, {s*64*3584+4*3584}")
        e(f"buffer_load_dwordx4 v{vX1}, {sr(SX,4)}, s15 offen lds")
        e(f"s_add_u32 m0, s10, {sl*WS_}")
        e("s_nop 0")
        e(f"buffer_load_dwordx4 v{vW}, {sr(SW,4)}, s64 offen lds")
        e("s_add_u32 m0, m0, 1024")
        e("s_nop 0")
        e(f"buffer_load_dwordx4 v{vW}, {sr(SW,4)}, s65 offen lds")
    for s in range(3): issue(s)
    e("v_and_b32 v6, 31, v1")
    e("v_bfe_u32 v7, v1, 1, 3")
    e("v_xor_b32 v7, v7, v5")
    e("v_lshlrev_b32 v7, 4, v7")
    e("v_lshl_add_u32 v7, v6, 7, v7")
    e("s_lshl_b32 s13, s11, 13")
    e(f"v_add_u32 v{vXa}, s13, v7")
    for ks in range(1, 4): e(f"v_xor_b32 v{vXa+ks}, {32*ks}, v{vXa}")
    for ks in range(4): e(f"v_add_u32 v{vXb+ks}, 0x10000, v{vXa+ks}")
    e("v_bfe_u32 v6, v1, 2, 2")
    e("v_lshl_add_u32 v7, v5, 3, v6")
    e("v_lshlrev_b32 v7, 8, v7")
    e("v_bfe_u32 v19, v1, 4, 1")
    e("v_bfe_u32 v20, v1, 1, 1")
    e("v_lshl_add_u32 v19, v19, 1, v20")
    e("s_lshl_b32 s13, s12, 3")
    e("v_add_u32 v19, s13, v19")
    e("v_lshlrev_b32 v6, 2, v6")
    e("v_xor_b32 v19, v19, v6")
    e("v_lshl_add_u32 v7, v19, 4, v7")
    e("v_and_b32 v20, 1, v1")
    e("v_lshl_add_u32 v7, v20, 3, v7")
    e(f"v_add_u32 v{vWa}, {WB}, v7")
    e(f"v_xor_b32 v{vWa+1}, 64, v{vWa}")
    e("s_lshl_b32 s13, s4, 3"); e("s_lshl_b32 s14, s11, 1"); e("s_add_u32 s13, s13, s14")
    e("s_mul_i32 s13, s13, 112")
    e("s_lshl_b32 s14, s5, 3"); e("s_add_u32 s13, s13, s14")
    e("s_lshl_b32 s14, s12, 2"); e("s_add_u32 s13, s13, s14")
    e("s_lshl_b32 s13, s13, 10")
    e(f"v_lshl_add_u32 v{vH}, v1, 4, s13")
    e("s_waitcnt vmcnt(18)")
    for b in range(2):
        for j in range(8):
            src = 128 + 8*b + j
            e(f"v_lshlrev_b32 v{ACC+32*b+2*j}, 16, v{src}")
            e(f"v_and_b32 v{ACC+32*b+2*j+1}, 0xffff0000, v{src}")
        for r in range(16): e(f"v_mov_b32 v{ACC+32*b+16+r}, v{ACC+32*b+r}")
    def reads(s, ks, fs):
        sl = s % 3
        xa = (vXb if sl == 2 else vXa) + ks
        xo = 0 if sl == 2 else XS[sl]
        for a in range(2):
            e(f"ds_read_b128 {vr(fs+4*a,4)}, v{xa} offset:{xo+4096*a}")
        for b in range(2):
            for u in range(2):
                e(f"ds_read_b64_tr_b16 {vr(fs+8+4*b+2*u,2)}, v{vWa+b} offset:{sl*WS_+(16*ks+4*u)*256}")
    def mfmas(fs):
        for b in range(2):
            for a in range(2):
                acc = vr(ACC+32*b+16*a, 16)
                e(f"v_mfma_f32_32x32x16_bf16 {acc}, {vr(fs+8+4*b,4)}, {vr(fs+4*a,4)}, {acc}")
    e("s_waitcnt vmcnt(12)")
    e("s_barrier")
    stamp(1, 0, P_WS)
    reads(0, 0, F[0])
    vm_extra = 1 if STAMP else 0
    for s in range(8):
        for ks in range(3):
            reads(s, ks+1, F[(ks+1) & 1])
            e("s_waitcnt lgkmcnt(6)")
            mfmas(F[ks & 1])
        if s < 7:
            e(f"s_waitcnt vmcnt({6 if s < 6 else 0}) lgkmcnt(0)")
            e("s_barrier")
            reads(s+1, 0, F[0])
            if s + 3 < 8: issue(s+3)
        else:
            e("s_waitcnt lgkmcnt(0)")
        mfmas(F[1])
    stamp(2, 0, P_WS)
    e("s_nop 7"); e("s_nop 3")
    for b in range(2):
        for a in range(2):
            base = ACC+32*b+16*a
            for r in range(16): e(f"v_max_f32 v{base+r}, 0, v{base+r}")
            for r in range(16): e(f"v_mul_f32 v{base+r}, v{base+r}, v{base+r}")
            dst = 128 + 16*b + 8*a
            for r in range(8): e(f"v_cvt_pk_bf16_f32 v{dst+r}, v{base+2*r}, v{base+2*r+1}")
            e(f"s_mov_b32 s14, {a*112*1024}")
            for s_ in range(2):
                e(f"buffer_store_dwordx4 {vr(dst+4*s_,4)}, v{vH}, {sr(SH,4)}, s14 offen offset:{2048*b+1024*s_}")
    if STAMP:
        e("s_waitcnt vmcnt(0)")
        stamp(3, 0, P_WS)
    e("s_endpgm")

PITCH = 528
CR_SZ = 59*PITCH
R_OFF = 32*PITCH
UB = 4*CR_SZ
US = 4576
CS = 4160
LDS1 = UB + 8*US

def exp_acc(dst, x, t0, t1):
    e(f"v_mul_f32 v{t0}, s70, v{x}")
    e(f"v_fma_f32 v{t1}, v{x}, s70, -v{t0}")
    e(f"v_exp_f32 v{dst}, v{t0}")
    e(f"v_fmac_f32 v{t1}, {f32(L_LO)}, v{x}")
    e(f"v_mul_f32 v{t1}, {f32(LN2)}, v{t1}")
    e(f"v_fmac_f32 v{dst}, v{dst}, v{t1}")

def cexp(dr, di, zr2, zi2, p, t):
    if p == 1:
        e(f"v_exp_f32 v{t}, v{zr2}")
        e(f"v_fract_f32 v{di}, v{zi2}")
    else:
        e(f"v_mul_f32 v{t}, {f32(p)}, v{zr2}")
        e(f"v_mul_f32 v{di}, {f32(p)}, v{zi2}")
        e(f"v_exp_f32 v{t}, v{t}")
        e(f"v_fract_f32 v{di}, v{di}")
    e(f"v_cos_f32 v{dr}, v{di}")
    e(f"v_sin_f32 v{di}, v{di}")
    e(f"v_mul_f32 v{dr}, v{dr}, v{t}")
    e(f"v_mul_f32 v{di}, v{di}, v{t}")

def cmul2(d, x, en, t):
    for n in range(2):
        e(f"v_mul_f32 v{t+2*n}, v{x+2*n+1}, v{en+2*n+1}")
        e(f"v_mul_f32 v{t+2*n+1}, v{x+2*n+1}, v{en+2*n}")
    for n in range(2):
        e(f"v_fma_f32 v{d+2*n+1}, v{x+2*n}, v{en+2*n+1}, v{t+2*n+1}")
        e(f"v_fma_f32 v{d+2*n}, v{x+2*n}, v{en+2*n}, -v{t+2*n}")

def conv():
    SU, SWS, SW2 = 48, 52, 56
    cm("---- conv role: G = 16*s4 + s5 - 14")
    e("s_lshl_b32 s6, s4, 4"); e("s_add_u32 s6, s6, s5"); e("s_sub_u32 s6, s6, 14")
    e("s_and_b32 s7, s3, 3")
    e("s_lshl_b32 s8, s6, 2"); e("s_add_u32 s8, s8, s7")
    e("s_lshl_b32 s9, s8, 8")
    e("v_lshl_add_u32 v2, v1, 2, s9")
    e("s_lshr_b32 s10, s8, 1"); e("s_lshl_b32 s10, s10, 2")
    e("s_lshl_b32 s11, s6, 3")
    e(f"s_mul_i32 s12, s7, {CR_SZ}")
    e("v_lshl_add_u32 v3, v1, 3, s12")
    e(f"s_mov_b32 s70, {f32(L_HI)}")
    e("s_waitcnt lgkmcnt(0)")
    stamp(0, 0, P_WS)
    e(f"s_load_dword s13, {sr(P_LDT,2)}, s10")
    e(f"s_load_dwordx2 s[14:15], {sr(P_DSK,2)}, s11")
    e(f"global_load_dword v4, v2, {sr(P_LAR,2)}")
    e(f"global_load_dword v5, v2, {sr(P_AIM,2)}")
    srd(SWS, P_WS, WS_USED)
    e("s_cmp_lt_u32 s3, 4")
    e("s_cbranch_scc1 Lc_noload")
    e(f"global_load_dword v6, v2, {sr(P_CR,2)}")
    e(f"global_load_dword v7, v2, {sr(P_CI,2)}")
    srd(SU, P_U, 2048*1024)
    e("v_subrev_u32 v8, 256, v0")
    e("v_lshl_add_u32 v9, v8, 13, s11")
    e("v_subrev_u32 v10, 0x400, v9")
    e("s_movk_i32 s64, 4096")
    UR = 224
    e(f"buffer_load_dwordx2 {vr(UR,2)}, v10, {sr(SU,4)}, 0 offen")
    for r in range(8):
        e(f"buffer_load_dwordx2 {vr(UR+2+2*r,2)}, v9, {sr(SU,4)}, {'0' if r < 4 else 's64'} offen offset:{1024*(r&3)}")
    lab("Lc_noload")
    e("s_waitcnt lgkmcnt(0)")
    e("s_bitcmp1_b32 s8, 0")
    e("s_cselect_b32 s65, 0, 16")
    e("s_lshl_b32 s13, s13, s65")
    e("s_and_b32 s13, s13, 0xffff0000")
    e("v_mov_b32 v12, s13")
    exp_acc(13, 12, 14, 15)
    e("v_cvt_pk_bf16_f32 v13, v13, v13")
    e("v_and_b32 v13, 0xffff0000, v13")
    e("s_cmp_lt_u32 s3, 4")
    e("s_cbranch_scc1 Lc_w0")
    e("s_waitcnt vmcnt(9)")
    e("s_branch Lc_w1")
    lab("Lc_w0")
    e("s_waitcnt vmcnt(0)")
    lab("Lc_w1")
    e("v_lshlrev_b32 v16, 16, v4"); e("v_and_b32 v17, 0xffff0000, v4")
    exp_acc(18, 16, 14, 15); exp_acc(19, 17, 20, 21)
    e("v_cvt_pk_bf16_f32 v18, v18, v19")
    e("v_lshlrev_b32 v16, 16, v18"); e("v_and_b32 v17, 0xffff0000, v18")
    e("v_lshlrev_b32 v18, 16, v5"); e("v_and_b32 v19, 0xffff0000, v5")
    for r in range(16, 20): e(f"v_mul_f32 v{r}, v{r}, v13")
    e(f"v_mul_f32 v16, {f32(-LOG2E)}, v16"); e(f"v_mul_f32 v17, {f32(-LOG2E)}, v17")
    e("v_mul_f32 v18, 0.15915494, v18"); e("v_mul_f32 v19, 0.15915494, v19")
    e("s_cbranch_scc0 Lc_rwave")
    E = 24; X = [28, 32]; T = 36; PK = 40
    cexp(E, E+1, 16, 18, 8, T); cexp(E+2, E+3, 17, 19, 8, T+1)
    e(f"v_mov_b32 v{PK}, 0x3f80"); e(f"v_mov_b32 v{PK+1}, 0x3f80")
    e(f"ds_write_b64 v3, {vr(PK,2)}")
    def put(x, row, k, neg=False):
        pk = PK + 2*(k % 4)
        n = "-" if neg else ""
        e(f"v_cvt_pk_bf16_f32 v{pk}, v{x}, {n}v{x+1}")
        e(f"v_cvt_pk_bf16_f32 v{pk+1}, v{x+2}, {n}v{x+3}")
        e(f"ds_write_b64 v3, {vr(pk,2)} offset:{row*PITCH}")
    put(E, 1, 1)
    cur = E
    for i in range(2, 32):
        nx = X[i & 1]
        cmul2(nx, cur, E, T)
        put(nx, i, i)
        cur = nx
    e("v_and_b32 v4, 31, v1"); e("v_lshrrev_b32 v5, 5, v1")
    e(f"v_mul_u32_u24 v6, {PITCH}, v4")
    e("v_lshl_add_u32 v6, v5, 4, v6")
    e("v_add_u32 v6, s12, v6")
    e("v_mov_b32 v7, v4")
    for thr in (11, 12, 15, 19, 23):
        e(f"v_cmp_le_u32 vcc, {thr}, v4")
        e("s_nop 1")
        e("v_subbrev_co_u32 v7, vcc, 0, v7, vcc")
    e(f"v_mul_u32_u24 v7, {PITCH}, v7")
    e("v_lshl_add_u32 v7, v5, 4, v7")
    e(f"s_add_u32 s66, s12, {R_OFF}")
    e("v_add_u32 v7, s66, v7")
    e("s_waitcnt lgkmcnt(0)")
    e("s_barrier")
    stamp(1, 0, P_WS)
    FR = 64; KA = 48
    def krd(ks):
        e(f"ds_read_b128 {vr(FR+8*ks,4)}, v7 offset:{32*ks}")
        e(f"ds_read_b128 {vr(FR+8*ks+4,4)}, v6 offset:{32*ks}")
    for ks in range(6): krd(ks)
    for ks in range(16):
        if ks + 6 < 16: krd(ks+6)
        e(f"s_waitcnt lgkmcnt({2*min(6, 15-ks)})")
        e(f"v_mfma_f32_32x32x16_bf16 {vr(KA,16)}, {vr(FR+8*ks,4)}, {vr(FR+8*ks+4,4)}, {'0' if ks == 0 else vr(KA,16)}")
    e("v_lshlrev_b32 v8, 4, v4"); e("v_add_u32 v8, s12, v8")
    e("v_lshl_add_u32 v9, v5, 3, v8")
    e("v_lshl_add_u32 v10, v5, 9, v8")
    e("v_lshl_add_u32 v11, v5, 10, v8")
    e("v_lshrrev_b32 v12, 4, v1"); e(f"v_mul_u32_u24 v12, {CS}, v12")
    e("v_and_b32 v13, 15, v1"); e("v_lshl_add_u32 v12, v13, 2, v12"); e("v_add_u32 v12, s12, v12")
    e("v_mov_b32 v13, 0")
    e("ds_write_b32 v12, v13")
    e("v_and_b32 v14, 1, v1"); e("v_cmp_eq_u32 vcc, 0, v14")
    e("s_nop 3")
    D = 24
    k = KA
    e(f"v_cndmask_b32 v14, v{k+13}, v{k+12}, vcc")
    e(f"v_cndmask_b32 v15, v{k+15}, v{k+14}, vcc")
    pk = [(k,k+1),(k+2,k+3),(k+4,k+4),(k+5,k+6),
          (k+8,k+8),(k+8,k+9),(k+9,k+9),(k+10,k+10),
          (k+12,k+12),(k+12,k+12),(14,k+13),(k+13,k+13),
          (k+14,k+14),(k+14,k+14),(15,k+15),(k+15,k+15)]
    for i, (a, b) in enumerate(pk): e(f"v_cvt_pk_bf16_f32 v{D+i}, v{a}, v{b}")
    groups = [(9, 0, D, 2), (9, 512, D+2, 2), (10, 1024, D+4, 4), (11, 2048, D+8, 4), (11, 2560, D+12, 4)]
    o3 = 3*4156+60; o1 = 4156+60
    for (a, off, d, n) in groups:
        e(f"ds_write_b{32*n} v{a}, {vr(d,n)} offset:{o3+off}")
    for (a, off, d, n) in groups:
        for i in range(0, n, 2): e(f"ds_write_b64 v{a}, {vr(d+i,2)} offset:{o1+off+4*i}")
    for oc in (60, 2*4156+60):
        e(f"v_add_u32 v16, {oc}, v9"); e(f"v_add_u32 v17, {oc+1024}, v10"); e(f"v_add_u32 v18, {oc+2048}, v11")
        for (a, off, d, n) in [(16,0,D,2),(16,512,D+2,2),(17,0,D+4,4),(18,0,D+8,4),(18,512,D+12,4)]:
            for i in range(0, n, 2):
                e(f"ds_write2_b32 v{a}, v{d+i}, v{d+i+1} offset0:{off//4+i} offset1:{off//4+i+1}")
    e("v_and_b32 v4, 3, v1"); e(f"v_mul_u32_u24 v4, {CS}, v4")
    e("v_bfe_u32 v5, v1, 2, 2"); e("v_lshrrev_b32 v6, 4, v1"); e("v_add_u32 v5, v5, v6")
    e("v_lshl_add_u32 v4, v5, 4, v4"); e("v_add_u32 v4, s12, v4")
    e("v_and_b32 v5, 1, v1"); e(f"v_mul_u32_u24 v5, {US}, v5")
    e("v_bfe_u32 v7, v1, 1, 3"); e("v_lshlrev_b32 v8, 2, v7"); e("v_sub_u32 v8, v8, v6")
    e("v_lshl_add_u32 v5, v8, 4, v5")
    e(f"s_mul_i32 s66, s7, {2*US}"); e(f"s_add_u32 s66, s66, {UB+448+48}")
    e("v_add_u32 v5, s66, v5")
    e("v_mul_u32_u24 v8, 272, v6"); e("v_and_b32 v9, 15, v1"); e("v_lshl_add_u32 v8, v9, 4, v8"); e("v_add_u32 v8, s12, v8")
    ACC = 24; FS = [64, 128]
    for r in range(32): e(f"v_mov_b32 v{ACC+r+0}, 0") if False else None
    e("s_waitcnt lgkmcnt(0)")
    for r in range(32): e(f"v_mov_b32 v{ACC+r}, 0")
    e("s_barrier")
    stamp(2, 0, P_WS)
    def crd(fs, i):
        e(f"ds_read_b128 {vr(fs+32+4*i,4)}, v5 offset:{512*i}")
        e(f"ds_read_b128 {vr(fs+4*i,4)}, v4 offset:{512*i}")
    for i in range(8): crd(FS[0], i)
    e("v_add_u32 v4, 64, v4"); e("v_subrev_u32 v5, 64, v5")
    e("s_mov_b32 s66, 0")
    lab("Lc_loop")
    for half in range(2):
        cur, nxt = FS[half], FS[1-half]
        e("s_waitcnt lgkmcnt(0)")
        n = 0
        for i in range(8):
            for j in range(8 - i):
                acc = vr(ACC+4*(i+j), 4)
                e(f"v_mfma_f32_16x16x32_bf16 {acc}, {vr(cur+4*i,4)}, {vr(cur+32+4*j,4)}, {acc}")
                n += 1
                if n % 4 == 1 and n // 4 < 8: crd(nxt, n // 4)
        e("v_add_u32 v4, 64, v4"); e("v_subrev_u32 v5, 64, v5")
    e("s_add_u32 s66, s66, 1")
    e("s_cmp_lt_u32 s66, 4")
    e("s_cbranch_scc1 Lc_loop")
    e("s_waitcnt lgkmcnt(0)")
    stamp(3, 0, P_WS)
    e("s_nop 7")
    for t in range(8): e(f"ds_write_b128 v8, {vr(ACC+4*t,4)} offset:{1088*t}")
    e("s_waitcnt lgkmcnt(0)")
    e("s_barrier")
    e("s_endpgm")
    lab("Lc_rwave")
    E1 = 24; E256 = 28; T = 32; PK = 40
    R = {0: 48, 2: 52, 4: 56, 6: 60, 8: 64}; TMP = 68
    cexp(E1, E1+1, 16, 18, 1, T); cexp(E1+2, E1+3, 17, 19, 1, T+1)
    cexp(E256, E256+1, 16, 18, 256, T); cexp(E256+2, E256+3, 17, 19, 256, T+1)
    e("v_add_f32 v13, v13, v13")
    e(f"v_lshlrev_b32 v{R[0]}, 16, v6"); e(f"v_lshlrev_b32 v{R[0]+1}, 16, v7")
    e(f"v_and_b32 v{R[0]+2}, 0xffff0000, v6"); e(f"v_and_b32 v{R[0]+3}, 0xffff0000, v7")
    for r in range(4): e(f"v_mul_f32 v{R[0]+r}, v{R[0]+r}, v13")
    cnt = [0]
    def putr(x, srow):
        pk = PK + 2*(cnt[0] % 4); cnt[0] += 1
        e(f"v_cvt_pk_bf16_f32 v{pk}, v{x}, -v{x+1}")
        e(f"v_cvt_pk_bf16_f32 v{pk+1}, v{x+2}, -v{x+3}")
        e(f"ds_write_b64 v3, {vr(pk,2)} offset:{R_OFF+srow*PITCH}")
    putr(R[0], 0)
    cur = R[0]
    for p in range(1, 9):
        nx = R[p] if p in R else TMP
        cmul2(nx, cur, E1, T)
        if p < 8: putr(nx, p)
        cur = nx
    srow = 8
    for xs in ([0,2,4,6,8], [0,4,8], [0,4,8], [0,8], [0,8], [0,8], [0,8]):
        for x in xs:
            cmul2(R[x], R[x], E256, T)
            putr(R[x], srow); srow += 1
    assert srow == 27
    e("s_waitcnt lgkmcnt(0)")
    e("s_barrier")
    stamp(1, 0, P_WS)
    e("s_mov_b32 s66, 0x05040100"); e("s_mov_b32 s67, 0x07060302")
    e("v_lshrrev_b32 v4, 5, v8"); e(f"v_mul_u32_u24 v4, {US}, v4")
    e("v_and_b32 v5, 31, v8"); e("v_min_u32 v5, 27, v5"); e("v_lshl_add_u32 v4, v5, 4, v4")
    for r in range(4): e(f"v_mov_b32 v{24+r}, 0")
    e(f"v_add_u32 v4, {UB}, v4")
    e(f"ds_write_b128 v4, {vr(24,4)}")
    e("v_lshlrev_b32 v4, 4, v8"); e(f"v_add_u32 v4, {UB+448}, v4")
    e("s_waitcnt vmcnt(0)")
    def row(r, c): return UR + 2 + 2*r + (c >> 1)
    k = 0
    for c in range(4):
        sel = "s67" if c & 1 else "s66"
        for b0 in range(2):
            d = 28 + 4*(k % 4); k += 1
            top = 7 if b0 else 6
            for i in range(4):
                e(f"v_perm_b32 v{d+i}, v{row(top-2*i-1,c)}, v{row(top-2*i,c)}, {sel}")
            e(f"ds_write_b128 v4, {vr(d,4)} offset:{(2*c+b0)*US}")
    e("s_waitcnt lgkmcnt(0)")
    e("s_barrier")
    stamp(2, 0, P_WS)
    e("s_cmp_ge_u32 s3, 6")
    e("s_cbranch_scc1 Lc_gate")
    e("s_cmp_ge_u32 s6, 112")
    e("s_cbranch_scc1 Lc_fin")
    srd(SW2, P_W2, 1792*1024)
    e("s_sub_u32 s68, s3, 4")
    e("s_lshl_b32 s69, s6, 14"); e("s_lshl_b32 s71, s68, 12"); e("s_add_u32 s69, s69, s71"); e("s_add_u32 s71, s69, 8192")
    e("v_lshlrev_b32 v4, 4, v1")
    for t in range(8):
        e(f"buffer_load_dwordx4 {vr(64+4*t,4)}, v4, {sr(SW2,4)}, {'s69' if t < 4 else 's71'} offen offset:{1024*(t&3)}")
    e("v_lshrrev_b32 v5, 2, v1"); e(f"s_mov_b32 s72, {112*1024}"); e("v_mul_lo_u32 v5, v5, s72")
    e("v_and_b32 v6, 3, v1"); e("v_lshl_add_u32 v5, v6, 7, v5")
    e("s_lshl_b32 s72, s6, 10"); e("s_lshl_b32 s73, s68, 9"); e("s_add_u32 s72, s72, s73"); e(f"s_add_u32 s72, s72, {WF_OFF}")
    e("s_waitcnt vmcnt(0)")
    for ee in range(8):
        sel = "s67" if ee & 1 else "s66"
        d = 96 + 4*ee
        for kk in range(4):
            e(f"v_perm_b32 v{d+kk}, v{64+4*(2*kk+1)+(ee>>1)}, v{64+4*(2*kk)+(ee>>1)}, {sel}")
        e(f"buffer_store_dwordx4 {vr(d,4)}, v5, {sr(SWS,4)}, s72 offen offset:{16*ee}")
    e("s_branch Lc_fin")
    lab("Lc_gate")
    e("s_lshl_b32 s68, s6, 4"); e("s_sub_u32 s69, s3, 6"); e("s_lshl_b32 s69, s69, 3"); e("s_add_u32 s68, s68, s69")
    e("s_lshl_b32 s69, s68, 10"); e("s_add_u32 s71, s69, 4096")
    e("v_lshlrev_b32 v4, 4, v1")
    e(f"global_load_dwordx4 {vr(60,4)}, v4, {sr(P_GW,2)}")
    for r in range(8):
        e(f"buffer_load_dwordx4 {vr(64+4*r,4)}, v4, {sr(SU,4)}, {'s69' if r < 4 else 's71'} offen offset:{1024*(r&3)}")
    e("s_waitcnt vmcnt(8)")
    for i in range(4):
        e(f"v_lshlrev_b32 v{100+2*i}, 16, v{60+i}"); e(f"v_and_b32 v{100+2*i+1}, 0xffff0000, v{60+i}")
    for r in range(8):
        e(f"s_waitcnt vmcnt({7-r})")
        for i in range(4):
            e(f"v_lshlrev_b32 v{110+2*i}, 16, v{64+4*r+i}"); e(f"v_and_b32 v{110+2*i+1}, 0xffff0000, v{64+4*r+i}")
        for i in range(8): e(f"v_mul_f32 v{110+i}, v{110+i}, v{100+i}")
        for i in range(4): e(f"v_cvt_pk_bf16_f32 v{120+i}, v{110+2*i}, v{110+2*i+1}")
        for i in range(4):
            e(f"v_lshlrev_b32 v{110+2*i}, 16, v{120+i}"); e(f"v_and_b32 v{110+2*i+1}, 0xffff0000, v{120+i}")
        for i in range(4): e(f"v_add_f32 v{110+i}, v{110+i}, v{114+i}")
        e("v_add_f32 v110, v110, v112"); e("v_add_f32 v111, v111, v113")
        e(f"v_add_f32 v{24+r}, v110, v111")
    for dpp in ("quad_perm:[1,0,3,2] row_mask:0xf", "quad_perm:[2,3,0,1] row_mask:0xf", "row_half_mirror row_mask:0xf",
                "row_mirror row_mask:0xf", "row_bcast:15 row_mask:0xa", "row_bcast:31 row_mask:0xc"):
        e("s_nop 1")
        for r in range(8): e(f"v_add_f32_dpp v{24+r}, v{24+r}, v{24+r} {dpp} bank_mask:0xf")
    e("s_nop 1")
    for r in range(8): e(f"v_readlane_b32 s{72+r}, v{24+r}, 63")
    e("s_nop 3")
    for r in range(8): e(f"v_writelane_b32 v32, s{72+r}, {r}")
    e("s_nop 1")
    e("v_cvt_pk_bf16_f32 v32, v32, v32"); e("v_and_b32 v32, 0xffff0000, v32")
    e(f"v_mul_f32 v32, {f32(-LOG2E)}, v32")
    e("v_exp_f32 v32, v32"); e("s_nop 0"); e("v_add_f32 v32, 1.0, v32"); e("v_rcp_f32 v32, v32"); e("s_nop 0")
    e("v_cvt_pk_bf16_f32 v32, v32, v32"); e("v_and_b32 v32, 0xffff0000, v32")
    e("v_sub_f32 v33, 1.0, v32")
    e("v_cvt_pk_bf16_f32 v33, v33, v33"); e("v_and_b32 v33, 0xffff0000, v33")
    e("v_lshlrev_b32 v4, 3, v1")
    e("s_lshl_b32 s68, s68, 3"); e(f"s_add_u32 s68, s68, {G_OFF}")
    e("s_mov_b64 exec, 0xff")
    e(f"buffer_store_dwordx2 v[32:33], v4, {sr(SWS,4)}, s68 offen")
    e("s_mov_b64 exec, -1")
    lab("Lc_fin")
    e("s_lshl_b32 s72, s14, 16"); e("s_and_b32 s73, s14, 0xffff0000")
    e("s_lshl_b32 s74, s15, 16"); e("s_and_b32 s75, s15, 0xffff0000")
    UF = 128
    for r in range(8):
        for hh in range(2):
            e(f"v_lshlrev_b32 v{UF+4*r+2*hh}, 16, v{UR+2+2*r+hh}")
            e(f"v_and_b32 v{UF+4*r+2*hh+1}, 0xffff0000, v{UR+2+2*r+hh}")
    e("v_lshrrev_b32 v4, 5, v8"); e("v_mul_u32_u24 v4, 1088, v4")
    e("v_and_b32 v5, 3, v8"); e("v_mul_u32_u24 v5, 272, v5")
    e("v_bfe_u32 v6, v8, 2, 3"); e("v_lshl_add_u32 v4, v6, 5, v4"); e("v_add_u32 v4, v4, v5")
    e(f"v_add_u32 v5, {2*CR_SZ}, v4")
    e("v_lshlrev_b32 v6, 6, v8")
    e("s_lshl_b32 s68, s6, 14"); e(f"s_add_u32 s68, s68, {A4_OFF}")
    stamp(3, 0, P_WS)
    e("s_barrier")
    stamp(4, 0, P_WS)
    Y = 160
    for c in range(4):
        for b0 in range(2):
            e(f"ds_read_b128 {vr(Y+8*c+4*b0,4)}, v{4 if c < 2 else 5} offset:{(c&1)*CR_SZ+16*b0}")
    for c in range(4):
        e(f"s_waitcnt lgkmcnt({6-2*c})")
        for l in range(8):
            e(f"v_fma_f32 v{UF+4*l+c}, v{UF+4*l+c}, s{72+c}, v{Y+8*c+4*(l&1)+(l>>1)}")
    O = 192
    for l in range(8):
        for hh in range(2): e(f"v_cvt_pk_bf16_f32 v{O+2*l+hh}, v{UF+4*l+2*hh}, v{UF+4*l+2*hh+1}")
    for i in range(4): e(f"buffer_store_dwordx4 {vr(O+4*i,4)}, v6, {sr(SWS,4)}, s68 offen offset:{16*i}")
    if STAMP:
        e("s_waitcnt vmcnt(0)")
        stamp(5, 0, P_WS)
    e("s_endpgm")

def gemm2():
    SWS, SO, SB2 = 48, 52, 56
    DEPTH = 13
    ACC = 0; RING = 48
    cm("mt = 4*s4 + (s5&3), nt = s5>>2")
    e("s_and_b32 s6, s5, 3"); e("s_lshl_b32 s7, s4, 2"); e("s_add_u32 s6, s6, s7")
    e("s_lshr_b32 s7, s5, 2")
    e(f"s_mul_i32 s8, s3, {28*1024}")
    e(f"s_mul_i32 s9, s6, {2*112*1024}"); e("s_add_u32 s9, s9, s8")
    e(f"s_mul_i32 s10, s7, {2*112*1024}"); e("s_add_u32 s10, s10, s8"); e(f"s_add_u32 s10, s10, {WF_OFF}")
    e("v_lshlrev_b32 v2, 4, v1")
    e("v_add_u32 v3, s9, v2"); e(f"v_add_u32 v4, {112*1024}, v3")
    e("v_add_u32 v5, s10, v2"); e(f"v_add_u32 v6, {112*1024}, v5")
    e("s_waitcnt lgkmcnt(0)")
    stamp(0, 1, P_WS, 36)
    srd(SWS, P_WS, WS_USED)
    for i in range(1, 7): e(f"s_movk_i32 s{60+i}, {4096*i}")
    def loads(s):
        fs = RING + 16*(s % DEPTH)
        so = "0" if s < 4 else f"s{60 + s//4}"
        for i, a in enumerate((5, 3, 6, 4)):
            e(f"buffer_load_dwordx4 {vr(fs+4*i,4)}, v{a}, {sr(SWS,4)}, {so} offen offset:{1024*(s&3)}")
    for s in range(DEPTH): loads(s)
    srd(SO, P_OUT, 2048*1024)
    srd(SB2, P_B2, 1024)
    e("s_lshr_b32 s11, s3, 1"); e("s_and_b32 s12, s3, 1")
    e("s_lshl_b32 s13, s6, 1"); e("s_add_u32 s13, s13, s12"); e("s_lshl_b32 s13, s13, 5")
    e("s_lshl_b32 s14, s7, 1"); e("s_add_u32 s14, s14, s11"); e("s_lshl_b32 s14, s14, 5")
    e("v_and_b32 v7, 31, v1"); e("v_lshrrev_b32 v8, 5, v1")
    e("v_add_u32 v7, s13, v7")
    e("v_lshlrev_b32 v9, 3, v7")
    e("v_lshl_add_u32 v10, v8, 14, v9")
    e("s_lshl_b32 s15, s14, 12"); e(f"s_add_u32 s15, s15, {A4_OFF}")
    e("s_add_u32 s68, s15, 32768"); e("s_add_u32 s69, s68, 32768"); e("s_add_u32 s70, s69, 32768")
    e(f"s_mov_b32 s71, {G_OFF}")
    e("s_lshl_b32 s72, s14, 1")
    e("v_lshl_add_u32 v11, v8, 3, s72")
    EP = 16
    for j, so in enumerate(("s15", "s68", "s69", "s70")):
        e(f"buffer_load_dwordx2 {vr(EP+2*j,2)}, v10, {sr(SWS,4)}, {so} offen")
    for j in range(4): e(f"buffer_load_dwordx2 {vr(EP+8+2*j,2)}, v11, {sr(SB2,4)}, 0 offen offset:{16*j}")
    e(f"buffer_load_dwordx2 {vr(EP+16,2)}, v9, {sr(SWS,4)}, s71 offen")
    e("v_lshlrev_b32 v12, 10, v7"); e("v_lshl_add_u32 v12, v8, 4, v12"); e("v_add_u32 v12, s72, v12")
    e("s_lshl_b32 s73, s3, 12"); e("v_add_u32 v13, s73, v2")
    e("s_lshl_b32 s73, s3, 14"); e("v_add_u32 v14, s73, v2")
    NE = 9
    for s in range(28):
        issued_after = min(28, s + DEPTH) - (s + 1)
        n = 4*issued_after + (NE if s < DEPTH else 0)
        e(f"s_waitcnt vmcnt({n})")
        if s == 0: stamp(1, 1, P_WS, 36) if False else None
        fs = RING + 16*(s % DEPTH)
        for b in range(2):
            for a in range(2):
                acc = ar(ACC+32*b+16*a, 16)
                e(f"v_mfma_f32_32x32x16_bf16 {acc}, {vr(fs+8*b,4)}, {vr(fs+4+8*a,4)}, {'0' if s == 0 else acc}")
        if s + DEPTH < 28: loads(s + DEPTH)
    stamp(1, 1, P_WS, 36)
    e("s_nop 7"); e("s_nop 3")
    for q in range(4):
        for r in range(4):
            e(f"ds_write_b128 v13, {ar(ACC+16*q+4*r,4)} offset:{q*16384+r*1024}")
    e("s_waitcnt lgkmcnt(0)")
    e("s_barrier")
    for w in range(4):
        for r in range(4):
            if w == 3 and r == 3: e("s_waitcnt lgkmcnt(8)")
            e(f"ds_read_b128 {vr(RING+16*w+4*r,4)}, v14 offset:{w*4096+r*1024}")
    AF = 160; BF = 176
    for i in range(8):
        e(f"v_lshlrev_b32 v{AF+2*i}, 16, v{EP+i}"); e(f"v_and_b32 v{AF+2*i+1}, 0xffff0000, v{EP+i}")
        e(f"v_lshlrev_b32 v{BF+2*i}, 16, v{EP+8+i}"); e(f"v_and_b32 v{BF+2*i+1}, 0xffff0000, v{EP+8+i}")
    for i in range(16): e(f"v_mul_f32 v{AF+i}, v{AF+i}, v{EP+16}")
    e("s_waitcnt lgkmcnt(8)")
    for i in range(16): e(f"v_add_f32 v{BF+i}, v{BF+i}, v{RING+i}")
    for i in range(16): e(f"v_add_f32 v{BF+i}, v{BF+i}, v{RING+16+i}")
    e("s_waitcnt lgkmcnt(0)")
    for i in range(16): e(f"v_add_f32 v{RING+32+i}, v{RING+32+i}, v{RING+48+i}")
    for i in range(16): e(f"v_add_f32 v{BF+i}, v{BF+i}, v{RING+32+i}")
    for i in range(16): e(f"v_fmac_f32 v{AF+i}, v{BF+i}, v{EP+17}")
    O = 192
    for i in range(8): e(f"v_cvt_pk_bf16_f32 v{O+i}, v{AF+2*i}, v{AF+2*i+1}")
    e("s_nop 1")
    for jj in range(2):
        e(f"v_permlane32_swap_b32 v{O+4*jj}, v{O+4*jj+2}")
        e(f"v_permlane32_swap_b32 v{O+4*jj+1}, v{O+4*jj+3}")
    for jj in range(2):
        e(f"buffer_store_dwordx4 {vr(O+4*jj,4)}, v12, {sr(SO,4)}, 0 offen offset:{32*jj}")
    if STAMP:
        e("s_waitcnt vmcnt(0)")
        stamp(2, 1, P_WS, 36)
    e("s_endpgm")

def kd(name, vgpr, accum):
    out.append(f""".amdhsa_kernel {name}
  .amdhsa_next_free_vgpr {vgpr}
  .amdhsa_next_free_sgpr 102
  .amdhsa_accum_offset {accum}
  .amdhsa_group_segment_fixed_size 0
  .amdhsa_kernarg_size 128
  .amdhsa_user_sgpr_count 2
  .amdhsa_user_sgpr_kernarg_segment_ptr 1
  .amdhsa_system_sgpr_workgroup_id_x 1
.end_amdhsa_kernel""")

hdr = open(f"cdna_kernels/{NAME}.s.ref").read().splitlines()
for l in hdr:
    if l.startswith(";") and "@launch" not in l and "Override" not in l and "Harness parses" not in l: out.append(l)
K1 = "gmix_a_kernel"; K2 = "gmix_b_kernel"
out.append(f"; @launch kernel={K1} grid=(240,1,1) block=(512,1,1) lds={LDS1}")
out.append(f"; @launch kernel={K2} grid=(256,1,1) block=(256,1,1) lds=65536")
out.append('.amdgcn_target "amdgcn-amd-amdhsa--gfx950"')
out.append(".text")
for k in (K1, K2): out.append(f".globl {k}")
out.append(".p2align 8"); out.append(f".type {K1},@function"); lab(K1)
EXIT = "La_exit"
prologue(240)
e("s_cmp_ge_u32 s5, 14")
e("s_cbranch_scc1 La_conv")
gemm1()
lab("La_conv")
conv()
lab(EXIT); e("s_endpgm")
out.append(".p2align 8"); out.append(f".type {K2},@function"); lab(K2)
EXIT = "Lb_exit"
prologue(256)
gemm2()
lab(EXIT); e("s_endpgm")
out.append('.section .rodata,"a"'); out.append(".p2align 6")
kd(K1, 256, 256)
out.append(".p2align 6")
kd(K2, 320, 256)
dst = [a for a in sys.argv[1:] if not a.startswith("--")]
open(dst[0] if dst else f"cdna_kernels/{NAME}.s", "w").write("\n".join(out) + "\n")
```

```python
import sys, struct
NAME = "gated_mix__ssm_conv_s4d__dense_activation_squared_relu__prompt"
STAMP = "--stamp" in sys.argv or "--dbg" in sys.argv

HF_OFF = 0
HF_SZ = 64*112*1024
WF_OFF = HF_SZ
WF_SZ = 16*112*1024
A4_OFF = WF_OFF + WF_SZ
A4_SZ = 128*2048*8
G_OFF = A4_OFF + A4_SZ
G_SZ = 2048*8
WS_USED = G_OFF + G_SZ
ST_OFF = 0x1000000

out = []
def e(s): out.append("    " + s)
def lab(s): out.append(s + ":")
def cm(s): out.append("    ; " + s)
def f32(x): return "0x%08x" % struct.unpack("<I", struct.pack("<f", x))[0]
def vr(a, n): return f"v[{a}:{a+n-1}]"
def ar(a, n): return f"a[{a}:{a+n-1}]"
def sr(a, n): return f"s[{a}:{a+n-1}]"
def srd(d, ptr, size, off=None):
    if off is None:
        e(f"s_mov_b32 s{d}, s{ptr}"); e(f"s_mov_b32 s{d+1}, s{ptr+1}")
    else:
        e(f"s_add_u32 s{d}, s{ptr}, {off}"); e(f"s_addc_u32 s{d+1}, s{ptr+1}, 0")
    e(f"s_mov_b32 s{d+2}, {size}"); e(f"s_mov_b32 s{d+3}, 0x20000")

DBG = "--dbg" in sys.argv
ROLE = [0]
def stamp(idx, kern, wsp, tmp=250):
    if DBG:
        slot = {(0,0):[0,1,2,3], (0,1):[0,4,5,6], (0,2):[0,7,8,9,10,11], (1,0):[12,13,14]}[(kern,ROLE[0])][idx]
        e("s_memrealtime s[96:97]")
        e(f"s_sub_u32 s98, s44, {512*kern}"); e("s_subb_u32 s99, s45, 0")
        e("s_waitcnt lgkmcnt(0)")
        if slot == 0 or slot == 12: e("s_not_b32 s96, s96")
        e(f"v_mov_b32 v{tmp}, s96"); e(f"v_mov_b32 v{tmp+2}, {4*slot}")
        e("s_mov_b64 exec, 1")
        e(f"global_atomic_umax v{tmp+2}, v{tmp}, s[98:99]")
        e("s_mov_b64 exec, -1")
        return
    if not STAMP: return
    e("s_memrealtime s[96:97]")
    e("s_lshl_b32 s98, s2, 3"); e("s_add_u32 s98, s98, s3"); e("s_lshl_b32 s98, s98, 6")
    e(f"s_add_u32 s98, s98, {ST_OFF + kern*0x40000 + idx*8}")
    e("s_waitcnt lgkmcnt(0)")
    e(f"v_mov_b32 v{tmp}, s96"); e(f"v_mov_b32 v{tmp+1}, s97"); e(f"v_mov_b32 v{tmp+2}, s98")
    e(f"global_store_dwordx2 v{tmp+2}, v[{tmp}:{tmp+1}], s[{wsp}:{wsp+1}]")

P_U, P_LAR, P_AIM, P_CR, P_CI, P_LDT, P_DSK = 16, 18, 20, 22, 24, 26, 28
P_W1, P_B1, P_W2, P_B2, P_GW, P_OUT, P_DBG, P_WS = 32, 34, 36, 38, 40, 42, 44, 46
LOG2E = 1.4426950408889634
L_HI = struct.unpack("<f", struct.pack("<f", LOG2E))[0]
L_LO = LOG2E - L_HI
LN2 = 0.6931471805599453

def prologue(nwg):
    e(f"s_cmp_ge_u32 s2, {nwg}")
    e("s_cbranch_scc1 " + EXIT)
    e("s_load_dwordx16 s[16:31], s[0:1], 0")
    e("s_load_dwordx16 s[32:47], s[0:1], 64")
    e("v_lshrrev_b32 v2, 6, v0")
    e("v_and_b32 v1, 63, v0")
    e("v_readfirstlane_b32 s3, v2")
    e("s_and_b32 s4, s2, 7")
    e("s_lshr_b32 s5, s2, 3")

def gemm1():
    SX, SW, SH, SB = 48, 52, 56, 60
    XS = [0, 32768, 65536]; WB = 98304; WS_ = 16384
    vX0, vX1, vW = 2, 3, 4
    vXa, vXb, vWa = 8, 12, 16
    vH = 18
    F = [32, 48]
    ACC = 64
    cm("---- GEMM1: mt = s4, ft = s5")
    e("s_lshl_b32 s6, s4, 18")
    e("s_lshl_b32 s7, s3, 15")
    e("v_lshrrev_b32 v5, 3, v1")
    e("v_lshrrev_b32 v6, 4, v1")
    e("v_and_b32 v7, 7, v1")
    e("v_xor_b32 v7, v7, v6")
    e("v_lshlrev_b32 v7, 4, v7")
    e(f"v_lshl_add_u32 v{vX0}, v5, 10, v7")
    e(f"v_add_u32 v{vX0}, s7, v{vX0}")
    e(f"v_xor_b32 v{vX1}, 64, v{vX0}")
    e(f"v_add_u32 v{vX1}, 0x2000, v{vX1}")
    e("s_mul_i32 s7, s3, %d" % (8*3584))
    e("s_lshl_b32 s8, s5, 8")
    e("s_add_u32 s7, s7, s8")
    e("v_and_b32 v7, 15, v1")
    e("v_lshlrev_b32 v5, 2, v6")
    e("v_xor_b32 v7, v7, v5")
    e("v_lshlrev_b32 v7, 4, v7")
    e("v_mul_u32_u24 v5, 3584, v6")
    e(f"v_add3_u32 v{vW}, v5, v7, s7")
    e("s_lshl_b32 s9, s3, 12")
    e("s_lshl_b32 s10, s3, 11")
    e(f"s_add_u32 s10, s10, {WB}")
    e("s_and_b32 s11, s3, 3")
    e("s_lshr_b32 s12, s3, 2")
    e("s_lshl_b32 s13, s12, 7")
    e("s_add_u32 s13, s13, s8")
    e("v_lshrrev_b32 v5, 5, v1")
    e("v_lshl_add_u32 v7, v5, 3, s13")
    e("s_waitcnt lgkmcnt(0)")
    stamp(0, 0, P_WS)
    srd(SX, P_U, 262144, "s6")
    srd(SW, P_W1, 512*3584)
    srd(SB, P_B1, 3584)
    srd(SH, P_WS, HF_SZ)
    for b in range(2):
        for j in range(4):
            e(f"buffer_load_dwordx2 {vr(128+8*b+2*j,2)}, v7, {sr(SB,4)}, 0 offen offset:{64*b+16*j}")
    def issue(s):
        sl = s % 3
        e(f"s_add_u32 m0, s9, {XS[sl]}")
        e(f"s_movk_i32 s14, {128*s}")
        e(f"buffer_load_dwordx4 v{vX0}, {sr(SX,4)}, s14 offen lds")
        e("s_add_u32 m0, m0, 1024")
        e(f"s_movk_i32 s15, {128*s+16384}")
        e(f"buffer_load_dwordx4 v{vX1}, {sr(SX,4)}, s14 offen lds")
        e("s_add_u32 m0, m0, 1024")
        e(f"s_mov_b32 s64, {s*64*3584}")
        e(f"buffer_load_dwordx4 v{vX0}, {sr(SX,4)}, s15 offen lds")
        e("s_add_u32 m0, m0, 1024")
        e(f"s_mov_b32 s65, {s*64*3584+4*3584}")
        e(f"buffer_load_dwordx4 v{vX1}, {sr(SX,4)}, s15 offen lds")
        e(f"s_add_u32 m0, s10, {sl*WS_}")
        e("s_nop 0")
        e(f"buffer_load_dwordx4 v{vW}, {sr(SW,4)}, s64 offen lds")
        e("s_add_u32 m0, m0, 1024")
        e("s_nop 0")
        e(f"buffer_load_dwordx4 v{vW}, {sr(SW,4)}, s65 offen lds")
    for s in range(3): issue(s)
    e("v_and_b32 v6, 31, v1")
    e("v_bfe_u32 v7, v1, 1, 3")
    e("v_xor_b32 v7, v7, v5")
    e("v_lshlrev_b32 v7, 4, v7")
    e("v_lshl_add_u32 v7, v6, 7, v7")
    e("s_lshl_b32 s13, s11, 13")
    e(f"v_add_u32 v{vXa}, s13, v7")
    for ks in range(1, 4): e(f"v_xor_b32 v{vXa+ks}, {32*ks}, v{vXa}")
    for ks in range(4): e(f"v_add_u32 v{vXb+ks}, 0x10000, v{vXa+ks}")
    e("v_bfe_u32 v6, v1, 2, 2")
    e("v_lshl_add_u32 v7, v5, 3, v6")
    e("v_lshlrev_b32 v7, 8, v7")
    e("v_bfe_u32 v19, v1, 4, 1")
    e("v_bfe_u32 v20, v1, 1, 1")
    e("v_lshl_add_u32 v19, v19, 1, v20")
    e("s_lshl_b32 s13, s12, 3")
    e("v_add_u32 v19, s13, v19")
    e("v_lshlrev_b32 v6, 2, v6")
    e("v_xor_b32 v19, v19, v6")
    e("v_lshl_add_u32 v7, v19, 4, v7")
    e("v_and_b32 v20, 1, v1")
    e("v_lshl_add_u32 v7, v20, 3, v7")
    e(f"v_add_u32 v{vWa}, {WB}, v7")
    e(f"v_xor_b32 v{vWa+1}, 64, v{vWa}")
    e("s_lshl_b32 s13, s4, 3"); e("s_lshl_b32 s14, s11, 1"); e("s_add_u32 s13, s13, s14")
    e("s_mul_i32 s13, s13, 112")
    e("s_lshl_b32 s14, s5, 3"); e("s_add_u32 s13, s13, s14")
    e("s_lshl_b32 s14, s12, 2"); e("s_add_u32 s13, s13, s14")
    e("s_lshl_b32 s13, s13, 10")
    e(f"v_lshl_add_u32 v{vH}, v1, 4, s13")
    e("s_waitcnt vmcnt(18)")
    for b in range(2):
        for j in range(8):
            src = 128 + 8*b + j
            e(f"v_lshlrev_b32 v{ACC+32*b+2*j}, 16, v{src}")
            e(f"v_and_b32 v{ACC+32*b+2*j+1}, 0xffff0000, v{src}")
        for r in range(16): e(f"v_mov_b32 v{ACC+32*b+16+r}, v{ACC+32*b+r}")
    def reads(s, ks, fs):
        sl = s % 3
        xa = (vXb if sl == 2 else vXa) + ks
        xo = 0 if sl == 2 else XS[sl]
        for a in range(2):
            e(f"ds_read_b128 {vr(fs+4*a,4)}, v{xa} offset:{xo+4096*a}")
        for b in range(2):
            for u in range(2):
                e(f"ds_read_b64_tr_b16 {vr(fs+8+4*b+2*u,2)}, v{vWa+b} offset:{sl*WS_+(16*ks+4*u)*256}")
    def mfmas(fs):
        for b in range(2):
            for a in range(2):
                acc = vr(ACC+32*b+16*a, 16)
                e(f"v_mfma_f32_32x32x16_bf16 {acc}, {vr(fs+8+4*b,4)}, {vr(fs+4*a,4)}, {acc}")
    e("s_waitcnt vmcnt(12)")
    e("s_barrier")
    stamp(1, 0, P_WS)
    reads(0, 0, F[0])
    vm_extra = 1 if STAMP else 0
    for s in range(8):
        for ks in range(3):
            reads(s, ks+1, F[(ks+1) & 1])
            e("s_waitcnt lgkmcnt(6)")
            mfmas(F[ks & 1])
        if s < 7:
            e(f"s_waitcnt vmcnt({6 if s < 6 else 0}) lgkmcnt(0)")
            e("s_barrier")
            reads(s+1, 0, F[0])
            if s + 3 < 8: issue(s+3)
        else:
            e("s_waitcnt lgkmcnt(0)")
        mfmas(F[1])
    stamp(2, 0, P_WS)
    e("s_nop 7"); e("s_nop 3")
    for b in range(2):
        for a in range(2):
            base = ACC+32*b+16*a
            for r in range(16): e(f"v_max_f32 v{base+r}, 0, v{base+r}")
            for r in range(16): e(f"v_mul_f32 v{base+r}, v{base+r}, v{base+r}")
            dst = 128 + 16*b + 8*a
            for r in range(8): e(f"v_cvt_pk_bf16_f32 v{dst+r}, v{base+2*r}, v{base+2*r+1}")
            e(f"s_mov_b32 s14, {a*112*1024}")
            for s_ in range(2):
                e(f"buffer_store_dwordx4 {vr(dst+4*s_,4)}, v{vH}, {sr(SH,4)}, s14 offen offset:{2048*b+1024*s_}")
    if STAMP:
        e("s_waitcnt vmcnt(0)")
        stamp(3, 0, P_WS)
    e("s_endpgm")

PITCH = 528
CR_SZ = 59*PITCH
R_OFF = 32*PITCH
UB = 4*CR_SZ
US = 4576
CS = 4160
LDS1 = UB + 8*US

def exp_acc(dst, x, t0, t1):
    e(f"v_mul_f32 v{t0}, s70, v{x}")
    e(f"v_fma_f32 v{t1}, v{x}, s70, -v{t0}")
    e(f"v_exp_f32 v{dst}, v{t0}")
    e(f"v_fmac_f32 v{t1}, {f32(L_LO)}, v{x}")
    e(f"v_mul_f32 v{t1}, {f32(LN2)}, v{t1}")
    e(f"v_fmac_f32 v{dst}, v{dst}, v{t1}")

def cexp(dr, di, zr2, zi2, p, t):
    if p == 1:
        e(f"v_exp_f32 v{t}, v{zr2}")
        e(f"v_fract_f32 v{di}, v{zi2}")
    else:
        e(f"v_mul_f32 v{t}, {f32(p)}, v{zr2}")
        e(f"v_mul_f32 v{di}, {f32(p)}, v{zi2}")
        e(f"v_exp_f32 v{t}, v{t}")
        e(f"v_fract_f32 v{di}, v{di}")
    e(f"v_cos_f32 v{dr}, v{di}")
    e(f"v_sin_f32 v{di}, v{di}")
    e(f"v_mul_f32 v{dr}, v{dr}, v{t}")
    e(f"v_mul_f32 v{di}, v{di}, v{t}")

def cmul2(d, x, en, t):
    for n in range(2):
        e(f"v_mul_f32 v{t+2*n}, v{x+2*n+1}, v{en+2*n+1}")
        e(f"v_mul_f32 v{t+2*n+1}, v{x+2*n+1}, v{en+2*n}")
    for n in range(2):
        e(f"v_fma_f32 v{d+2*n+1}, v{x+2*n}, v{en+2*n+1}, v{t+2*n+1}")
        e(f"v_fma_f32 v{d+2*n}, v{x+2*n}, v{en+2*n}, -v{t+2*n}")

def conv():
    SU, SWS, SW2 = 48, 52, 56
    cm("---- conv role: G = 16*s4 + s5 - 14")
    e("s_lshl_b32 s6, s4, 4"); e("s_add_u32 s6, s6, s5"); e("s_sub_u32 s6, s6, 14")
    e("s_and_b32 s7, s3, 3")
    e("s_lshl_b32 s8, s6, 2"); e("s_add_u32 s8, s8, s7")
    e("s_lshl_b32 s9, s8, 8")
    e("v_lshl_add_u32 v2, v1, 2, s9")
    e("s_lshr_b32 s10, s8, 1"); e("s_lshl_b32 s10, s10, 2")
    e("s_lshl_b32 s11, s6, 3")
    e(f"s_mul_i32 s12, s7, {CR_SZ}")
    e("v_lshl_add_u32 v3, v1, 3, s12")
    e(f"s_mov_b32 s70, {f32(L_HI)}")
    e("s_waitcnt lgkmcnt(0)")
    stamp(0, 0, P_WS)
    e(f"s_load_dword s13, {sr(P_LDT,2)}, s10")
    e(f"s_load_dwordx2 s[14:15], {sr(P_DSK,2)}, s11")
    e(f"global_load_dword v4, v2, {sr(P_LAR,2)}")
    e(f"global_load_dword v5, v2, {sr(P_AIM,2)}")
    srd(SWS, P_WS, WS_USED)
    e("s_cmp_lt_u32 s3, 4")
    e("s_cbranch_scc1 Lc_noload")
    e(f"global_load_dword v6, v2, {sr(P_CR,2)}")
    e(f"global_load_dword v7, v2, {sr(P_CI,2)}")
    srd(SU, P_U, 2048*1024)
    e("v_subrev_u32 v8, 256, v0")
    e("v_lshl_add_u32 v9, v8, 13, s11")
    e("v_subrev_u32 v10, 0x400, v9")
    e("s_movk_i32 s64, 4096")
    UR = 224
    e(f"buffer_load_dwordx2 {vr(UR,2)}, v10, {sr(SU,4)}, 0 offen")
    for r in range(8):
        e(f"buffer_load_dwordx2 {vr(UR+2+2*r,2)}, v9, {sr(SU,4)}, {'0' if r < 4 else 's64'} offen offset:{1024*(r&3)}")
    lab("Lc_noload")
    e("s_waitcnt lgkmcnt(0)")
    e("s_bitcmp1_b32 s8, 0")
    e("s_cselect_b32 s65, 0, 16")
    e("s_lshl_b32 s13, s13, s65")
    e("s_and_b32 s13, s13, 0xffff0000")
    e("v_mov_b32 v12, s13")
    exp_acc(13, 12, 14, 15)
    e("v_cvt_pk_bf16_f32 v13, v13, v13")
    e("v_and_b32 v13, 0xffff0000, v13")
    e("s_cmp_lt_u32 s3, 4")
    e("s_cbranch_scc1 Lc_w0")
    e("s_waitcnt vmcnt(9)")
    e("s_branch Lc_w1")
    lab("Lc_w0")
    e("s_waitcnt vmcnt(0)")
    lab("Lc_w1")
    e("v_lshlrev_b32 v16, 16, v4"); e("v_and_b32 v17, 0xffff0000, v4")
    exp_acc(18, 16, 14, 15); exp_acc(19, 17, 20, 21)
    e("v_cvt_pk_bf16_f32 v18, v18, v19")
    e("v_lshlrev_b32 v16, 16, v18"); e("v_and_b32 v17, 0xffff0000, v18")
    e("v_lshlrev_b32 v18, 16, v5"); e("v_and_b32 v19, 0xffff0000, v5")
    for r in range(16, 20): e(f"v_mul_f32 v{r}, v{r}, v13")
    e(f"v_mul_f32 v16, {f32(-LOG2E)}, v16"); e(f"v_mul_f32 v17, {f32(-LOG2E)}, v17")
    e("v_mul_f32 v18, 0.15915494, v18"); e("v_mul_f32 v19, 0.15915494, v19")
    e("s_cbranch_scc0 Lc_rwave")
    ROLE[0] = 1
    E = 24; X = [28, 32]; T = 36; PK = 40
    cexp(E, E+1, 16, 18, 8, T); cexp(E+2, E+3, 17, 19, 8, T+1)
    e(f"v_mov_b32 v{PK}, 0x3f80"); e(f"v_mov_b32 v{PK+1}, 0x3f80")
    e(f"ds_write_b64 v3, {vr(PK,2)}")
    def put(x, row, k, neg=False):
        pk = PK + 2*(k % 4)
        n = "-" if neg else ""
        e(f"v_cvt_pk_bf16_f32 v{pk}, v{x}, {n}v{x+1}")
        e(f"v_cvt_pk_bf16_f32 v{pk+1}, v{x+2}, {n}v{x+3}")
        e(f"ds_write_b64 v3, {vr(pk,2)} offset:{row*PITCH}")
    put(E, 1, 1)
    cur = E
    for i in range(2, 32):
        nx = X[i & 1]
        cmul2(nx, cur, E, T)
        put(nx, i, i)
        cur = nx
    e("v_and_b32 v4, 31, v1"); e("v_lshrrev_b32 v5, 5, v1")
    e(f"v_mul_u32_u24 v6, {PITCH}, v4")
    e("v_lshl_add_u32 v6, v5, 4, v6")
    e("v_add_u32 v6, s12, v6")
    e("v_mov_b32 v7, v4")
    for thr in (11, 12, 15, 19, 23):
        e(f"v_cmp_le_u32 vcc, {thr}, v4")
        e("s_nop 1")
        e("v_subbrev_co_u32 v7, vcc, 0, v7, vcc")
    e(f"v_mul_u32_u24 v7, {PITCH}, v7")
    e("v_lshl_add_u32 v7, v5, 4, v7")
    e(f"s_add_u32 s66, s12, {R_OFF}")
    e("v_add_u32 v7, s66, v7")
    e("s_waitcnt lgkmcnt(0)")
    e("s_barrier")
    stamp(1, 0, P_WS)
    FR = 64; KA = 48
    def krd(ks):
        e(f"ds_read_b128 {vr(FR+8*ks,4)}, v7 offset:{32*ks}")
        e(f"ds_read_b128 {vr(FR+8*ks+4,4)}, v6 offset:{32*ks}")
    for ks in range(6): krd(ks)
    for ks in range(16):
        if ks + 6 < 16: krd(ks+6)
        e(f"s_waitcnt lgkmcnt({2*min(6, 15-ks)})")
        e(f"v_mfma_f32_32x32x16_bf16 {vr(KA,16)}, {vr(FR+8*ks,4)}, {vr(FR+8*ks+4,4)}, {'0' if ks == 0 else vr(KA,16)}")
    e("v_lshlrev_b32 v8, 4, v4"); e("v_add_u32 v8, s12, v8")
    e("v_lshl_add_u32 v9, v5, 3, v8")
    e("v_lshl_add_u32 v10, v5, 9, v8")
    e("v_lshl_add_u32 v11, v5, 10, v8")
    e("v_lshrrev_b32 v12, 4, v1"); e(f"v_mul_u32_u24 v12, {CS}, v12")
    e("v_and_b32 v13, 15, v1"); e("v_lshl_add_u32 v12, v13, 2, v12"); e("v_add_u32 v12, s12, v12")
    e("v_mov_b32 v13, 0")
    e("ds_write_b32 v12, v13")
    e("v_and_b32 v14, 1, v1"); e("v_cmp_eq_u32 vcc, 0, v14")
    e("s_nop 3")
    D = 24
    k = KA
    e(f"v_cndmask_b32 v14, v{k+13}, v{k+12}, vcc")
    e(f"v_cndmask_b32 v15, v{k+15}, v{k+14}, vcc")
    pk = [(k,k+1),(k+2,k+3),(k+4,k+4),(k+5,k+6),
          (k+8,k+8),(k+8,k+9),(k+9,k+9),(k+10,k+10),
          (k+12,k+12),(k+12,k+12),(14,k+13),(k+13,k+13),
          (k+14,k+14),(k+14,k+14),(15,k+15),(k+15,k+15)]
    for i, (a, b) in enumerate(pk): e(f"v_cvt_pk_bf16_f32 v{D+i}, v{a}, v{b}")
    groups = [(9, 0, D, 2), (9, 512, D+2, 2), (10, 1024, D+4, 4), (11, 2048, D+8, 4), (11, 2560, D+12, 4)]
    o3 = 3*4156+60; o1 = 4156+60
    for (a, off, d, n) in groups:
        e(f"ds_write_b{32*n} v{a}, {vr(d,n)} offset:{o3+off}")
    for (a, off, d, n) in groups:
        for i in range(0, n, 2): e(f"ds_write_b64 v{a}, {vr(d+i,2)} offset:{o1+off+4*i}")
    for oc in (60, 2*4156+60):
        e(f"v_add_u32 v16, {oc}, v9"); e(f"v_add_u32 v17, {oc+1024}, v10"); e(f"v_add_u32 v18, {oc+2048}, v11")
        for (a, off, d, n) in [(16,0,D,2),(16,512,D+2,2),(17,0,D+4,4),(18,0,D+8,4),(18,512,D+12,4)]:
            for i in range(0, n, 2):
                e(f"ds_write2_b32 v{a}, v{d+i}, v{d+i+1} offset0:{off//4+i} offset1:{off//4+i+1}")
    e("v_and_b32 v4, 3, v1"); e(f"v_mul_u32_u24 v4, {CS}, v4")
    e("v_bfe_u32 v5, v1, 2, 2"); e("v_lshrrev_b32 v6, 4, v1"); e("v_add_u32 v5, v5, v6")
    e("v_lshl_add_u32 v4, v5, 4, v4"); e("v_add_u32 v4, s12, v4")
    e("v_and_b32 v5, 1, v1"); e(f"v_mul_u32_u24 v5, {US}, v5")
    e("v_bfe_u32 v7, v1, 1, 3"); e("v_lshlrev_b32 v8, 2, v7"); e("v_sub_u32 v8, v8, v6")
    e("v_lshl_add_u32 v5, v8, 4, v5")
    e(f"s_mul_i32 s66, s7, {2*US}"); e(f"s_add_u32 s66, s66, {UB+448+48}")
    e("v_add_u32 v5, s66, v5")
    e("v_mul_u32_u24 v8, 272, v6"); e("v_and_b32 v9, 15, v1"); e("v_lshl_add_u32 v8, v9, 4, v8"); e("v_add_u32 v8, s12, v8")
    ACC = 24; FS = [64, 128]
    for r in range(32): e(f"v_mov_b32 v{ACC+r+0}, 0") if False else None
    e("s_waitcnt lgkmcnt(0)")
    for r in range(32): e(f"v_mov_b32 v{ACC+r}, 0")
    e("s_barrier")
    stamp(2, 0, P_WS)
    def crd(fs, i):
        e(f"ds_read_b128 {vr(fs+32+4*i,4)}, v5 offset:{512*i}")
        e(f"ds_read_b128 {vr(fs+4*i,4)}, v4 offset:{512*i}")
    for i in range(8): crd(FS[0], i)
    e("v_add_u32 v4, 64, v4"); e("v_subrev_u32 v5, 64, v5")
    e("s_mov_b32 s66, 0")
    lab("Lc_loop")
    for half in range(2):
        cur, nxt = FS[half], FS[1-half]
        e("s_waitcnt lgkmcnt(0)")
        n = 0
        for i in range(8):
            for j in range(8 - i):
                acc = vr(ACC+4*(i+j), 4)
                e(f"v_mfma_f32_16x16x32_bf16 {acc}, {vr(cur+4*i,4)}, {vr(cur+32+4*j,4)}, {acc}")
                n += 1
                if n % 4 == 1 and n // 4 < 8: crd(nxt, n // 4)
        e("v_add_u32 v4, 64, v4"); e("v_subrev_u32 v5, 64, v5")
    e("s_add_u32 s66, s66, 1")
    e("s_cmp_lt_u32 s66, 4")
    e("s_cbranch_scc1 Lc_loop")
    e("s_waitcnt lgkmcnt(0)")
    stamp(3, 0, P_WS)
    e("s_nop 7")
    for t in range(8): e(f"ds_write_b128 v8, {vr(ACC+4*t,4)} offset:{1088*t}")
    e("s_waitcnt lgkmcnt(0)")
    e("s_barrier")
    e("s_endpgm")
    lab("Lc_rwave")
    ROLE[0] = 2
    E1 = 24; E256 = 28; T = 32; PK = 40
    R = {0: 48, 2: 52, 4: 56, 6: 60, 8: 64}; TMP = 68
    cexp(E1, E1+1, 16, 18, 1, T); cexp(E1+2, E1+3, 17, 19, 1, T+1)
    cexp(E256, E256+1, 16, 18, 256, T); cexp(E256+2, E256+3, 17, 19, 256, T+1)
    e("v_add_f32 v13, v13, v13")
    e(f"v_lshlrev_b32 v{R[0]}, 16, v6"); e(f"v_lshlrev_b32 v{R[0]+1}, 16, v7")
    e(f"v_and_b32 v{R[0]+2}, 0xffff0000, v6"); e(f"v_and_b32 v{R[0]+3}, 0xffff0000, v7")
    for r in range(4): e(f"v_mul_f32 v{R[0]+r}, v{R[0]+r}, v13")
    cnt = [0]
    def putr(x, srow):
        pk = PK + 2*(cnt[0] % 4); cnt[0] += 1
        e(f"v_cvt_pk_bf16_f32 v{pk}, v{x}, -v{x+1}")
        e(f"v_cvt_pk_bf16_f32 v{pk+1}, v{x+2}, -v{x+3}")
        e(f"ds_write_b64 v3, {vr(pk,2)} offset:{R_OFF+srow*PITCH}")
    putr(R[0], 0)
    cur = R[0]
    for p in range(1, 9):
        nx = R[p] if p in R else TMP
        cmul2(nx, cur, E1, T)
        if p < 8: putr(nx, p)
        cur = nx
    srow = 8
    for xs in ([0,2,4,6,8], [0,4,8], [0,4,8], [0,8], [0,8], [0,8], [0,8]):
        for x in xs:
            cmul2(R[x], R[x], E256, T)
            putr(R[x], srow); srow += 1
    assert srow == 27
    e("s_waitcnt lgkmcnt(0)")
    e("s_barrier")
    stamp(1, 0, P_WS)
    e("s_mov_b32 s66, 0x05040100"); e("s_mov_b32 s67, 0x07060302")
    e("v_lshrrev_b32 v4, 5, v8"); e(f"v_mul_u32_u24 v4, {US}, v4")
    e("v_and_b32 v5, 31, v8"); e("v_min_u32 v5, 27, v5"); e("v_lshl_add_u32 v4, v5, 4, v4")
    for r in range(4): e(f"v_mov_b32 v{24+r}, 0")
    e(f"v_add_u32 v4, {UB}, v4")
    e(f"ds_write_b128 v4, {vr(24,4)}")
    e("v_lshlrev_b32 v4, 4, v8"); e(f"v_add_u32 v4, {UB+448}, v4")
    e("s_waitcnt vmcnt(0)")
    def row(r, c): return UR + 2 + 2*r + (c >> 1)
    k = 0
    for c in range(4):
        sel = "s67" if c & 1 else "s66"
        for b0 in range(2):
            d = 28 + 4*(k % 4); k += 1
            top = 7 if b0 else 6
            for i in range(4):
                e(f"v_perm_b32 v{d+i}, v{row(top-2*i-1,c)}, v{row(top-2*i,c)}, {sel}")
            e(f"ds_write_b128 v4, {vr(d,4)} offset:{(2*c+b0)*US}")
    e("s_waitcnt lgkmcnt(0)")
    e("s_barrier")
    stamp(2, 0, P_WS)
    e("s_cmp_ge_u32 s3, 6")
    e("s_cbranch_scc1 Lc_gate")
    e("s_cmp_ge_u32 s6, 112")
    e("s_cbranch_scc1 Lc_fin")
    srd(SW2, P_W2, 1792*1024)
    e("s_sub_u32 s68, s3, 4")
    e("s_lshl_b32 s69, s6, 14"); e("s_lshl_b32 s71, s68, 12"); e("s_add_u32 s69, s69, s71"); e("s_add_u32 s71, s69, 8192")
    e("v_lshlrev_b32 v4, 4, v1")
    for t in range(8):
        e(f"buffer_load_dwordx4 {vr(64+4*t,4)}, v4, {sr(SW2,4)}, {'s69' if t < 4 else 's71'} offen offset:{1024*(t&3)}")
    e("v_lshrrev_b32 v5, 2, v1"); e(f"s_mov_b32 s72, {112*1024}"); e("v_mul_lo_u32 v5, v5, s72")
    e("v_and_b32 v6, 3, v1"); e("v_lshl_add_u32 v5, v6, 7, v5")
    e("s_lshl_b32 s72, s6, 10"); e("s_lshl_b32 s73, s68, 9"); e("s_add_u32 s72, s72, s73"); e(f"s_add_u32 s72, s72, {WF_OFF}")
    e("s_waitcnt vmcnt(0)")
    for ee in range(8):
        sel = "s67" if ee & 1 else "s66"
        d = 96 + 4*ee
        for kk in range(4):
            e(f"v_perm_b32 v{d+kk}, v{64+4*(2*kk+1)+(ee>>1)}, v{64+4*(2*kk)+(ee>>1)}, {sel}")
        e(f"buffer_store_dwordx4 {vr(d,4)}, v5, {sr(SWS,4)}, s72 offen offset:{16*ee}")
    e("s_branch Lc_fin")
    lab("Lc_gate")
    e("s_lshl_b32 s68, s6, 4"); e("s_sub_u32 s69, s3, 6"); e("s_lshl_b32 s69, s69, 3"); e("s_add_u32 s68, s68, s69")
    e("s_lshl_b32 s69, s68, 10"); e("s_add_u32 s71, s69, 4096")
    e("v_lshlrev_b32 v4, 4, v1")
    e(f"global_load_dwordx4 {vr(60,4)}, v4, {sr(P_GW,2)}")
    for r in range(8):
        e(f"buffer_load_dwordx4 {vr(64+4*r,4)}, v4, {sr(SU,4)}, {'s69' if r < 4 else 's71'} offen offset:{1024*(r&3)}")
    e("s_waitcnt vmcnt(8)")
    for i in range(4):
        e(f"v_lshlrev_b32 v{100+2*i}, 16, v{60+i}"); e(f"v_and_b32 v{100+2*i+1}, 0xffff0000, v{60+i}")
    for r in range(8):
        e(f"s_waitcnt vmcnt({7-r})")
        for i in range(4):
            e(f"v_lshlrev_b32 v{110+2*i}, 16, v{64+4*r+i}"); e(f"v_and_b32 v{110+2*i+1}, 0xffff0000, v{64+4*r+i}")
        for i in range(8): e(f"v_mul_f32 v{110+i}, v{110+i}, v{100+i}")
        for i in range(4): e(f"v_cvt_pk_bf16_f32 v{120+i}, v{110+2*i}, v{110+2*i+1}")
        for i in range(4):
            e(f"v_lshlrev_b32 v{110+2*i}, 16, v{120+i}"); e(f"v_and_b32 v{110+2*i+1}, 0xffff0000, v{120+i}")
        for i in range(4): e(f"v_add_f32 v{110+i}, v{110+i}, v{114+i}")
        e("v_add_f32 v110, v110, v112"); e("v_add_f32 v111, v111, v113")
        e(f"v_add_f32 v{24+r}, v110, v111")
    for dpp in ("quad_perm:[1,0,3,2] row_mask:0xf", "quad_perm:[2,3,0,1] row_mask:0xf", "row_half_mirror row_mask:0xf",
                "row_mirror row_mask:0xf", "row_bcast:15 row_mask:0xa", "row_bcast:31 row_mask:0xc"):
        e("s_nop 1")
        for r in range(8): e(f"v_add_f32_dpp v{24+r}, v{24+r}, v{24+r} {dpp} bank_mask:0xf")
    e("s_nop 1")
    for r in range(8): e(f"v_readlane_b32 s{72+r}, v{24+r}, 63")
    e("s_nop 3")
    for r in range(8): e(f"v_writelane_b32 v32, s{72+r}, {r}")
    e("s_nop 1")
    e("v_cvt_pk_bf16_f32 v32, v32, v32"); e("v_and_b32 v32, 0xffff0000, v32")
    e(f"v_mul_f32 v32, {f32(-LOG2E)}, v32")
    e("v_exp_f32 v32, v32"); e("s_nop 0"); e("v_add_f32 v32, 1.0, v32"); e("v_rcp_f32 v32, v32"); e("s_nop 0")
    e("v_cvt_pk_bf16_f32 v32, v32, v32"); e("v_and_b32 v32, 0xffff0000, v32")
    e("v_sub_f32 v33, 1.0, v32")
    e("v_cvt_pk_bf16_f32 v33, v33, v33"); e("v_and_b32 v33, 0xffff0000, v33")
    e("v_lshlrev_b32 v4, 3, v1")
    e("s_lshl_b32 s68, s68, 3"); e(f"s_add_u32 s68, s68, {G_OFF}")
    e("s_mov_b64 exec, 0xff")
    e(f"buffer_store_dwordx2 v[32:33], v4, {sr(SWS,4)}, s68 offen")
    e("s_mov_b64 exec, -1")
    lab("Lc_fin")
    e("s_lshl_b32 s72, s14, 16"); e("s_and_b32 s73, s14, 0xffff0000")
    e("s_lshl_b32 s74, s15, 16"); e("s_and_b32 s75, s15, 0xffff0000")
    UF = 128
    for r in range(8):
        for hh in range(2):
            e(f"v_lshlrev_b32 v{UF+4*r+2*hh}, 16, v{UR+2+2*r+hh}")
            e(f"v_and_b32 v{UF+4*r+2*hh+1}, 0xffff0000, v{UR+2+2*r+hh}")
    e("v_lshrrev_b32 v4, 5, v8"); e("v_mul_u32_u24 v4, 1088, v4")
    e("v_and_b32 v5, 3, v8"); e("v_mul_u32_u24 v5, 272, v5")
    e("v_bfe_u32 v6, v8, 2, 3"); e("v_lshl_add_u32 v4, v6, 5, v4"); e("v_add_u32 v4, v4, v5")
    e(f"v_add_u32 v5, {2*CR_SZ}, v4")
    e("v_lshlrev_b32 v6, 6, v8")
    e("s_lshl_b32 s68, s6, 14"); e(f"s_add_u32 s68, s68, {A4_OFF}")
    stamp(3, 0, P_WS)
    e("s_barrier")
    stamp(4, 0, P_WS)
    Y = 160
    for c in range(4):
        for b0 in range(2):
            e(f"ds_read_b128 {vr(Y+8*c+4*b0,4)}, v{4 if c < 2 else 5} offset:{(c&1)*CR_SZ+16*b0}")
    for c in range(4):
        e(f"s_waitcnt lgkmcnt({6-2*c})")
        for l in range(8):
            e(f"v_fma_f32 v{UF+4*l+c}, v{UF+4*l+c}, s{72+c}, v{Y+8*c+4*(l&1)+(l>>1)}")
    O = 192
    for l in range(8):
        for hh in range(2): e(f"v_cvt_pk_bf16_f32 v{O+2*l+hh}, v{UF+4*l+2*hh}, v{UF+4*l+2*hh+1}")
    for i in range(4): e(f"buffer_store_dwordx4 {vr(O+4*i,4)}, v6, {sr(SWS,4)}, s68 offen offset:{16*i}")
    if STAMP:
        e("s_waitcnt vmcnt(0)")
        stamp(5, 0, P_WS)
    e("s_endpgm")

def gemm2():
    ROLE[0] = 0
    SWS, SO, SB2 = 48, 52, 56
    DEPTH = 13
    ACC = 0; RING = 48
    cm("mt = 4*s4 + (s5&3), nt = s5>>2")
    e("s_and_b32 s6, s5, 3"); e("s_lshl_b32 s7, s4, 2"); e("s_add_u32 s6, s6, s7")
    e("s_lshr_b32 s7, s5, 2")
    e(f"s_mul_i32 s8, s3, {28*1024}")
    e(f"s_mul_i32 s9, s6, {2*112*1024}"); e("s_add_u32 s9, s9, s8")
    e(f"s_mul_i32 s10, s7, {2*112*1024}"); e("s_add_u32 s10, s10, s8"); e(f"s_add_u32 s10, s10, {WF_OFF}")
    e("v_lshlrev_b32 v2, 4, v1")
    e("v_add_u32 v3, s9, v2"); e(f"v_add_u32 v4, {112*1024}, v3")
    e("v_add_u32 v5, s10, v2"); e(f"v_add_u32 v6, {112*1024}, v5")
    e("s_waitcnt lgkmcnt(0)")
    stamp(0, 1, P_WS, 36)
    srd(SWS, P_WS, WS_USED)
    for i in range(1, 7): e(f"s_movk_i32 s{60+i}, {4096*i}")
    def loads(s):
        fs = RING + 16*(s % DEPTH)
        so = "0" if s < 4 else f"s{60 + s//4}"
        for i, a in enumerate((5, 3, 6, 4)):
            e(f"buffer_load_dwordx4 {vr(fs+4*i,4)}, v{a}, {sr(SWS,4)}, {so} offen offset:{1024*(s&3)}")
    for s in range(DEPTH): loads(s)
    srd(SO, P_OUT, 2048*1024)
    srd(SB2, P_B2, 1024)
    e("s_lshr_b32 s11, s3, 1"); e("s_and_b32 s12, s3, 1")
    e("s_lshl_b32 s13, s6, 1"); e("s_add_u32 s13, s13, s12"); e("s_lshl_b32 s13, s13, 5")
    e("s_lshl_b32 s14, s7, 1"); e("s_add_u32 s14, s14, s11"); e("s_lshl_b32 s14, s14, 5")
    e("v_and_b32 v7, 31, v1"); e("v_lshrrev_b32 v8, 5, v1")
    e("v_add_u32 v7, s13, v7")
    e("v_lshlrev_b32 v9, 3, v7")
    e("v_lshl_add_u32 v10, v8, 14, v9")
    e("s_lshl_b32 s15, s14, 12"); e(f"s_add_u32 s15, s15, {A4_OFF}")
    e("s_add_u32 s68, s15, 32768"); e("s_add_u32 s69, s68, 32768"); e("s_add_u32 s70, s69, 32768")
    e(f"s_mov_b32 s71, {G_OFF}")
    e("s_lshl_b32 s72, s14, 1")
    e("v_lshl_add_u32 v11, v8, 3, s72")
    EP = 16
    for j, so in enumerate(("s15", "s68", "s69", "s70")):
        e(f"buffer_load_dwordx2 {vr(EP+2*j,2)}, v10, {sr(SWS,4)}, {so} offen")
    for j in range(4): e(f"buffer_load_dwordx2 {vr(EP+8+2*j,2)}, v11, {sr(SB2,4)}, 0 offen offset:{16*j}")
    e(f"buffer_load_dwordx2 {vr(EP+16,2)}, v9, {sr(SWS,4)}, s71 offen")
    e("v_lshlrev_b32 v12, 10, v7"); e("v_lshl_add_u32 v12, v8, 4, v12"); e("v_add_u32 v12, s72, v12")
    e("s_lshl_b32 s73, s3, 12"); e("v_add_u32 v13, s73, v2")
    e("s_lshl_b32 s73, s3, 14"); e("v_add_u32 v14, s73, v2")
    NE = 9
    for s in range(28):
        issued_after = min(28, s + DEPTH) - (s + 1)
        n = 4*issued_after + (NE if s < DEPTH else 0)
        e(f"s_waitcnt vmcnt({n})")
        if s == 0: stamp(1, 1, P_WS, 36) if False else None
        fs = RING + 16*(s % DEPTH)
        for b in range(2):
            for a in range(2):
                acc = ar(ACC+32*b+16*a, 16)
                e(f"v_mfma_f32_32x32x16_bf16 {acc}, {vr(fs+8*b,4)}, {vr(fs+4+8*a,4)}, {'0' if s == 0 else acc}")
        if s + DEPTH < 28: loads(s + DEPTH)
    stamp(1, 1, P_WS, 36)
    e("s_nop 7"); e("s_nop 3")
    for q in range(4):
        for r in range(4):
            e(f"ds_write_b128 v13, {ar(ACC+16*q+4*r,4)} offset:{q*16384+r*1024}")
    e("s_waitcnt lgkmcnt(0)")
    e("s_barrier")
    for w in range(4):
        for r in range(4):
            if w == 3 and r == 3: e("s_waitcnt lgkmcnt(8)")
            e(f"ds_read_b128 {vr(RING+16*w+4*r,4)}, v14 offset:{w*4096+r*1024}")
    AF = 160; BF = 176
    for i in range(8):
        e(f"v_lshlrev_b32 v{AF+2*i}, 16, v{EP+i}"); e(f"v_and_b32 v{AF+2*i+1}, 0xffff0000, v{EP+i}")
        e(f"v_lshlrev_b32 v{BF+2*i}, 16, v{EP+8+i}"); e(f"v_and_b32 v{BF+2*i+1}, 0xffff0000, v{EP+8+i}")
    for i in range(16): e(f"v_mul_f32 v{AF+i}, v{AF+i}, v{EP+16}")
    e("s_waitcnt lgkmcnt(8)")
    for i in range(16): e(f"v_add_f32 v{BF+i}, v{BF+i}, v{RING+i}")
    for i in range(16): e(f"v_add_f32 v{BF+i}, v{BF+i}, v{RING+16+i}")
    e("s_waitcnt lgkmcnt(0)")
    for i in range(16): e(f"v_add_f32 v{RING+32+i}, v{RING+32+i}, v{RING+48+i}")
    for i in range(16): e(f"v_add_f32 v{BF+i}, v{BF+i}, v{RING+32+i}")
    for i in range(16): e(f"v_fmac_f32 v{AF+i}, v{BF+i}, v{EP+17}")
    O = 192
    for i in range(8): e(f"v_cvt_pk_bf16_f32 v{O+i}, v{AF+2*i}, v{AF+2*i+1}")
    e("s_nop 1")
    for jj in range(2):
        e(f"v_permlane32_swap_b32 v{O+4*jj}, v{O+4*jj+2}")
        e(f"v_permlane32_swap_b32 v{O+4*jj+1}, v{O+4*jj+3}")
    for jj in range(2):
        e(f"buffer_store_dwordx4 {vr(O+4*jj,4)}, v12, {sr(SO,4)}, 0 offen offset:{32*jj}")
    if STAMP:
        e("s_waitcnt vmcnt(0)")
        stamp(2, 1, P_WS, 36)
    e("s_endpgm")

def kd(name, vgpr, accum):
    out.append(f""".amdhsa_kernel {name}
  .amdhsa_next_free_vgpr {vgpr}
  .amdhsa_next_free_sgpr 102
  .amdhsa_accum_offset {accum}
  .amdhsa_group_segment_fixed_size 0
  .amdhsa_kernarg_size 128
  .amdhsa_user_sgpr_count 2
  .amdhsa_user_sgpr_kernarg_segment_ptr 1
  .amdhsa_system_sgpr_workgroup_id_x 1
.end_amdhsa_kernel""")

hdr = open(f"cdna_kernels/{NAME}.s.ref").read().splitlines()
for l in hdr:
    if l.startswith(";") and "@launch" not in l and "Override" not in l and "Harness parses" not in l: out.append(l)
K1 = "gmix_a_kernel"; K2 = "gmix_b_kernel"
out.append(f"; @launch kernel={K1} grid=(240,1,1) block=(512,1,1) lds={LDS1}")
out.append(f"; @launch kernel={K2} grid=(256,1,1) block=(256,1,1) lds=65536")
out.append('.amdgcn_target "amdgcn-amd-amdhsa--gfx950"')
out.append(".text")
for k in (K1, K2): out.append(f".globl {k}")
out.append(".p2align 8"); out.append(f".type {K1},@function"); lab(K1)
EXIT = "La_exit"
prologue(240)
e("s_cmp_ge_u32 s5, 14")
e("s_cbranch_scc1 La_conv")
gemm1()
lab("La_conv")
conv()
lab(EXIT); e("s_endpgm")
out.append(".p2align 8"); out.append(f".type {K2},@function"); lab(K2)
EXIT = "Lb_exit"
prologue(256)
gemm2()
lab(EXIT); e("s_endpgm")
out.append('.section .rodata,"a"'); out.append(".p2align 6")
kd(K1, 256, 256)
out.append(".p2align 6")
kd(K2, 320, 256)
dst = [a for a in sys.argv[1:] if not a.startswith("--")]
open(dst[0] if dst else f"cdna_kernels/{NAME}.s", "w").write("\n".join(out) + "\n")
```

```python
import sys, struct
NAME = "gated_mix__ssm_conv_s4d__dense_activation_squared_relu__prompt"
STAMP = "--stamp" in sys.argv or "--dbg" in sys.argv

HF_OFF = 0
HF_SZ = 64*112*1024
WF_OFF = HF_SZ
WF_SZ = 16*112*1024
A4_OFF = WF_OFF + WF_SZ
A4_SZ = 128*2048*8
G_OFF = A4_OFF + A4_SZ
G_SZ = 2048*8
WS_USED = G_OFF + G_SZ
ST_OFF = 0x1000000

out = []
def e(s): out.append("    " + s)
def lab(s): out.append(s + ":")
def cm(s): out.append("    ; " + s)
def f32(x): return "0x%08x" % struct.unpack("<I", struct.pack("<f", x))[0]
def vr(a, n): return f"v[{a}:{a+n-1}]"
def ar(a, n): return f"a[{a}:{a+n-1}]"
def sr(a, n): return f"s[{a}:{a+n-1}]"
def srd(d, ptr, size, off=None):
    if off is None:
        e(f"s_mov_b32 s{d}, s{ptr}"); e(f"s_mov_b32 s{d+1}, s{ptr+1}")
    else:
        e(f"s_add_u32 s{d}, s{ptr}, {off}"); e(f"s_addc_u32 s{d+1}, s{ptr+1}, 0")
    e(f"s_mov_b32 s{d+2}, {size}"); e(f"s_mov_b32 s{d+3}, 0x20000")

DBG = "--dbg" in sys.argv
ROLE = [0]
def stamp(idx, kern, wsp, tmp=250):
    if DBG:
        slot = {(0,0):[0,1,2,3], (0,1):[0,4,5,6], (0,2):[0,7,8,9,10,11], (1,0):[12,13,14]}[(kern,ROLE[0])][idx]
        e("s_memrealtime s[96:97]")
        e(f"s_sub_u32 s98, s44, {512*kern}"); e("s_subb_u32 s99, s45, 0")
        e("s_waitcnt lgkmcnt(0)")
        if slot == 0 or slot == 12: e("s_not_b32 s96, s96")
        e(f"v_mov_b32 v{tmp}, s96"); e(f"v_mov_b32 v{tmp+2}, {4*slot}")
        e("s_mov_b64 exec, 1")
        e(f"global_atomic_umax v{tmp+2}, v{tmp}, s[98:99]")
        e("s_mov_b64 exec, -1")
        return
    if not STAMP: return
    e("s_memrealtime s[96:97]")
    e("s_memtime s[100:101]")
    e("s_lshl_b32 s98, s2, 3"); e("s_add_u32 s98, s98, s3"); e("s_lshl_b32 s98, s98, 6")
    e(f"s_add_u32 s98, s98, {ST_OFF + kern*0x40000 + idx*8}")
    e("s_waitcnt lgkmcnt(0)")
    e(f"v_mov_b32 v{tmp}, s96"); e(f"v_mov_b32 v{tmp+1}, s100"); e(f"v_mov_b32 v{tmp+2}, s98")
    e(f"global_store_dwordx2 v{tmp+2}, v[{tmp}:{tmp+1}], s[{wsp}:{wsp+1}]")

P_U, P_LAR, P_AIM, P_CR, P_CI, P_LDT, P_DSK = 16, 18, 20, 22, 24, 26, 28
P_W1, P_B1, P_W2, P_B2, P_GW, P_OUT, P_DBG, P_WS = 32, 34, 36, 38, 40, 42, 44, 46
LOG2E = 1.4426950408889634
L_HI = struct.unpack("<f", struct.pack("<f", LOG2E))[0]
L_LO = LOG2E - L_HI
LN2 = 0.6931471805599453

def prologue(nwg):
    e(f"s_cmp_ge_u32 s2, {nwg}")
    e("s_cbranch_scc1 " + EXIT)
    e("s_load_dwordx16 s[16:31], s[0:1], 0")
    e("s_load_dwordx16 s[32:47], s[0:1], 64")
    e("v_lshrrev_b32 v2, 6, v0")
    e("v_and_b32 v1, 63, v0")
    e("v_readfirstlane_b32 s3, v2")
    e("s_and_b32 s4, s2, 7")
    e("s_lshr_b32 s5, s2, 3")

def gemm1():
    SX, SW, SH, SB = 48, 52, 56, 60
    XS = [0, 32768, 65536]; WB = 98304; WS_ = 16384
    cm("---- GEMM1: mt = s4, ft = s5; waves 0-3 compute, 4-7 load")
    e("s_lshl_b32 s8, s5, 8")
    e("s_cmp_lt_u32 s3, 4")
    e("s_cbranch_scc1 Lg_comp")
    vX0, vX1, vW = 2, 3, 4
    e("s_sub_u32 s11, s3, 4")
    e("s_lshl_b32 s6, s4, 18")
    e("s_lshl_b32 s7, s11, 16")
    e("v_lshrrev_b32 v5, 3, v1")
    e("v_lshrrev_b32 v6, 4, v1")
    e("v_and_b32 v7, 7, v1")
    e("v_xor_b32 v7, v7, v6")
    e("v_lshlrev_b32 v7, 4, v7")
    e(f"v_lshl_add_u32 v{vX0}, v5, 10, v7")
    e(f"v_add_u32 v{vX0}, s7, v{vX0}")
    e(f"v_xor_b32 v{vX1}, 64, v{vX0}")
    e(f"v_add_u32 v{vX1}, 0x2000, v{vX1}")
    e("s_mul_i32 s7, s11, %d" % (16*3584))
    e("s_add_u32 s7, s7, s8")
    e("v_and_b32 v7, 15, v1")
    e("v_lshlrev_b32 v5, 2, v6")
    e("v_xor_b32 v7, v7, v5")
    e("v_lshlrev_b32 v7, 4, v7")
    e("v_mul_u32_u24 v5, 3584, v6")
    e(f"v_add3_u32 v{vW}, v5, v7, s7")
    e("s_lshl_b32 s9, s11, 13")
    e("s_lshl_b32 s10, s11, 12")
    e(f"s_add_u32 s10, s10, {WB}")
    e("s_add_u32 s12, s4, s5")
    e("s_mov_b32 s13, 0")
    e("s_mov_b32 s66, 0")
    e("s_waitcnt lgkmcnt(0)")
    stamp(0, 0, P_WS)
    srd(SX, P_U, 262144, "s6")
    srd(SW, P_W1, 512*3584)
    lab("Lg_issue")
    e("s_and_b32 s12, s12, 7")
    e("s_lshl_b32 s14, s12, 7")
    e(f"s_mul_i32 s64, s12, {64*3584}")
    e("s_lshl_b32 s15, s13, 14")
    e("s_add_u32 m0, s10, s15")
    e("s_lshl_b32 s15, s13, 15")
    for i in range(4):
        e(f"buffer_load_dwordx4 v{vW}, {sr(SW,4)}, s64 offen lds")
        if i < 3:
            e("s_add_u32 m0, m0, 1024"); e(f"s_add_u32 s64, s64, {4*3584}")
    e("s_add_u32 m0, s9, s15")
    e("s_add_u32 s12, s12, 1")
    for i in range(8):
        e(f"buffer_load_dwordx4 v{vX1 if i & 1 else vX0}, {sr(SX,4)}, s14 offen lds")
        if i < 7:
            e("s_add_u32 m0, m0, 1024")
            e("s_add_u32 s14, s14, 16384" if i & 1 else "s_nop 0")
    e("s_add_u32 s13, s13, 1"); e("s_cmp_eq_u32 s13, 3"); e("s_cselect_b32 s13, 0, s13")
    e("s_add_u32 s66, s66, 1")
    e("s_cmp_eq_u32 s66, 1")
    e("s_cbranch_scc1 Lg_issue")
    e("s_waitcnt vmcnt(12)")
    e("s_barrier")
    e("s_cmp_lt_u32 s66, 8")
    e("s_cbranch_scc1 Lg_issue")
    e("s_waitcnt vmcnt(0)")
    e("s_barrier")
    e("s_endpgm")
    lab("Lg_comp")
    vXa, vXb, vWa, vH = 8, 12, 16, 18
    F = [32, 56]
    ACC = 128
    e("s_and_b32 s11, s3, 1")
    e("s_lshr_b32 s12, s3, 1")
    e("s_lshl_b32 s13, s12, 7")
    e("s_add_u32 s13, s13, s8")
    e("v_lshrrev_b32 v5, 5, v1")
    e("v_lshl_add_u32 v7, v5, 3, s13")
    e("s_waitcnt lgkmcnt(0)")
    stamp(0, 0, P_WS, 24)
    srd(SB, P_B1, 3584)
    srd(SH, P_WS, HF_SZ)
    for b in range(2):
        for j in range(4):
            e(f"buffer_load_dwordx2 {vr(80+8*b+2*j,2)}, v7, {sr(SB,4)}, 0 offen offset:{64*b+16*j}")
    e("v_and_b32 v6, 31, v1")
    e("v_bfe_u32 v7, v1, 1, 3")
    e("v_xor_b32 v7, v7, v5")
    e("v_lshlrev_b32 v7, 4, v7")
    e("v_lshl_add_u32 v7, v6, 7, v7")
    e("s_lshl_b32 s13, s11, 14")
    e(f"v_add_u32 v{vXa}, s13, v7")
    for ks in range(1, 4): e(f"v_xor_b32 v{vXa+ks}, {32*ks}, v{vXa}")
    for ks in range(4): e(f"v_add_u32 v{vXb+ks}, 0x10000, v{vXa+ks}")
    e("v_bfe_u32 v6, v1, 2, 2")
    e("v_lshl_add_u32 v7, v5, 3, v6")
    e("v_lshlrev_b32 v7, 8, v7")
    e("v_bfe_u32 v19, v1, 4, 1")
    e("v_bfe_u32 v20, v1, 1, 1")
    e("v_lshl_add_u32 v19, v19, 1, v20")
    e("s_lshl_b32 s13, s12, 3")
    e("v_add_u32 v19, s13, v19")
    e("v_lshlrev_b32 v6, 2, v6")
    e("v_xor_b32 v19, v19, v6")
    e("v_lshl_add_u32 v7, v19, 4, v7")
    e("v_and_b32 v20, 1, v1")
    e("v_lshl_add_u32 v7, v20, 3, v7")
    e(f"v_add_u32 v{vWa}, {WB}, v7")
    e(f"v_xor_b32 v{vWa+1}, 64, v{vWa}")
    e("s_lshl_b32 s13, s4, 3"); e("s_lshl_b32 s14, s11, 2"); e("s_add_u32 s13, s13, s14")
    e("s_mul_i32 s13, s13, 112")
    e("s_lshl_b32 s14, s5, 3"); e("s_add_u32 s13, s13, s14")
    e("s_lshl_b32 s14, s12, 2"); e("s_add_u32 s13, s13, s14")
    e("s_lshl_b32 s13, s13, 10")
    e(f"v_lshl_add_u32 v{vH}, v1, 4, s13")
    for a in range(1, 4): e(f"s_mov_b32 s{64+a}, {a*112*1024}")
    BI = 96
    e("s_waitcnt vmcnt(0)")
    for b in range(2):
        for j in range(8):
            src = 80 + 8*b + j
            e(f"v_lshlrev_b32 v{BI+16*b+2*j}, 16, v{src}")
            e(f"v_and_b32 v{BI+16*b+2*j+1}, 0xffff0000, v{src}")
    def rdlist(s, ks, fs):
        sl = s % 3
        xa = (vXb if sl == 2 else vXa) + ks
        xo = 0 if sl == 2 else XS[sl]
        L = []
        def w(b):
            for u in range(2):
                L.append(f"ds_read_b64_tr_b16 {vr(fs+16+4*b+2*u,2)}, v{vWa+b} offset:{sl*WS_+(16*ks+4*u)*256}")
        w(0)
        for a in range(4): L.append(f"ds_read_b128 {vr(fs+4*a,4)}, v{xa} offset:{xo+4096*a}")
        w(1)
        return L
    def mfmas(fs, rl, first=False):
        n = 0
        for b in range(2):
            for a in range(4):
                acc = vr(ACC+64*b+16*a, 16)
                e(f"v_mfma_f32_32x32x16_bf16 {acc}, {vr(fs+16+4*b,4)}, {vr(fs+4*a,4)}, {vr(BI+16*b,16) if first else acc}")
                for r in rl[2*n:2*n+2]: e(r)
                n += 1
    e("s_barrier")
    stamp(1, 0, P_WS, 24)
    for r in rdlist(0, 0, F[0]): e(r)
    for s in range(8):
        for ks in range(4):
            e("s_waitcnt lgkmcnt(0)")
            if ks < 3: rl = rdlist(s, ks+1, F[(ks+1) & 1])
            elif s < 7:
                e("s_barrier")
                rl = rdlist(s+1, 0, F[0])
            else: rl = []
            mfmas(F[ks & 1], rl, s == 0 and ks == 0)
    stamp(2, 0, P_WS, 24)
    e("s_nop 4")
    k = 0
    for b in range(2):
        for a in range(4):
            base = ACC+64*b+16*a
            for r in range(16): e(f"v_mul_f32 v{base+r}, v{base+r}, |v{base+r}|")
            dst = 32 + 8*(k % 8); k += 1
            for r in range(8): e(f"v_cvt_pk_bf16_f32 v{dst+r}, v{base+2*r}, v{base+2*r+1}")
            for r in range(8): e(f"v_pk_max_i16 v{dst+r}, v{dst+r}, 0")
            for s_ in range(2):
                e(f"buffer_store_dwordx4 {vr(dst+4*s_,4)}, v{vH}, {sr(SH,4)}, {'0' if a == 0 else 's%d' % (64+a)} offen offset:{2048*b+1024*s_}")
    if STAMP:
        e("s_waitcnt vmcnt(0)")
        stamp(3, 0, P_WS, 24)
    e("s_endpgm")

PITCH = 528
CR_SZ = 59*PITCH
R_OFF = 32*PITCH
UB = 4*CR_SZ
US = 4576
CS = 4160
LDS1 = UB + 8*US

def exp_acc(dst, x, t0, t1):
    e(f"v_mul_f32 v{t0}, s70, v{x}")
    e(f"v_fma_f32 v{t1}, v{x}, s70, -v{t0}")
    e(f"v_exp_f32 v{dst}, v{t0}")
    e(f"v_fmac_f32 v{t1}, {f32(L_LO)}, v{x}")
    e(f"v_mul_f32 v{t1}, {f32(LN2)}, v{t1}")
    e(f"v_fmac_f32 v{dst}, v{dst}, v{t1}")

def cexp(dr, di, zr2, zi2, p, t):
    if p == 1:
        e(f"v_exp_f32 v{t}, v{zr2}")
        e(f"v_fract_f32 v{di}, v{zi2}")
    else:
        e(f"v_mul_f32 v{t}, {f32(p)}, v{zr2}")
        e(f"v_mul_f32 v{di}, {f32(p)}, v{zi2}")
        e(f"v_exp_f32 v{t}, v{t}")
        e(f"v_fract_f32 v{di}, v{di}")
    e(f"v_cos_f32 v{dr}, v{di}")
    e(f"v_sin_f32 v{di}, v{di}")
    e(f"v_mul_f32 v{dr}, v{dr}, v{t}")
    e(f"v_mul_f32 v{di}, v{di}, v{t}")

def p2(r): return f"v[{r}:{r+1}]"
def cmulp(d, x, en, t):
    e(f"v_pk_mul_f32 {p2(t)}, {p2(x+2)}, {p2(en+2)}")
    e(f"v_pk_mul_f32 {p2(t+2)}, {p2(x+2)}, {p2(en)}")
    e(f"v_pk_fma_f32 {p2(d+2)}, {p2(x)}, {p2(en+2)}, {p2(t+2)}")
    e(f"v_pk_fma_f32 {p2(d)}, {p2(x)}, {p2(en)}, {p2(t)} neg_lo:[0,0,1] neg_hi:[0,0,1]")

CS2 = 4224
def conv():
    SU, SWS, SW2 = 48, 52, 56
    UR = 224
    cm("---- conv role: G = 16*s4 + s5 - 14")
    e("s_sub_u32 s5, s5, 14")
    e("s_lshl_b32 s6, s4, 4"); e("s_add_u32 s6, s6, s5")
    e("s_and_b32 s7, s3, 3")
    e("s_lshl_b32 s8, s6, 2"); e("s_add_u32 s8, s8, s7")
    e("s_lshl_b32 s9, s8, 8")
    e("v_lshl_add_u32 v2, v1, 2, s9")
    e("s_lshr_b32 s10, s8, 1"); e("s_lshl_b32 s10, s10, 2")
    e("s_lshl_b32 s11, s6, 3")
    e(f"s_mul_i32 s12, s7, {CR_SZ}")
    e("v_lshl_add_u32 v3, v1, 3, s12")
    e(f"s_mov_b32 s70, {f32(L_HI)}")
    e("s_lshl_b32 s64, s5, 17"); e("s_lshl_b32 s65, s3, 14"); e("s_add_u32 s64, s64, s65"); e("s_add_u32 s64, s64, s11")
    e("v_and_b32 v9, 15, v1"); e("v_lshl_add_u32 v9, v9, 10, s64")
    e("s_waitcnt lgkmcnt(0)")
    stamp(0, 0, P_WS)
    e(f"s_load_dword s13, {sr(P_LDT,2)}, s10")
    e(f"s_load_dwordx2 s[14:15], {sr(P_DSK,2)}, s11")
    e(f"global_load_dword v4, v2, {sr(P_LAR,2)}")
    e(f"global_load_dword v5, v2, {sr(P_AIM,2)}")
    e(f"global_load_dword v6, v2, {sr(P_CR,2)}")
    e(f"global_load_dword v7, v2, {sr(P_CI,2)}")
    e(f"global_load_dword v11, v9, {sr(P_U,2)}")
    srd(SWS, P_WS, WS_USED)
    srd(SU, P_U, 2048*1024)
    e("v_subrev_u32 v8, 256, v0")
    e("v_lshl_add_u32 v9, v8, 13, s11")
    e("v_subrev_u32 v10, 0x400, v9")
    e("s_movk_i32 s64, 4096")
    e("v_and_b32 v20, 31, v1"); e("v_lshrrev_b32 v21, 5, v1")
    e(f"v_mul_u32_u24 v22, {PITCH}, v20")
    e("v_lshl_add_u32 v22, v21, 4, v22")
    e("v_add_u32 v22, s12, v22")
    e("v_mov_b32 v23, v20")
    for thr in (11, 12, 15, 19, 23):
        e(f"v_cmp_le_u32 vcc, {thr}, v20")
        e("s_nop 1")
        e("v_subbrev_co_u32 v23, vcc, 0, v23, vcc")
    e(f"v_mul_u32_u24 v23, {PITCH}, v23")
    e("v_lshl_add_u32 v23, v21, 4, v23")
    e(f"s_add_u32 s66, s12, {R_OFF}")
    e("v_add_u32 v23, s66, v23")
    e("s_waitcnt lgkmcnt(0)")
    e("s_bitcmp1_b32 s8, 0")
    e("s_cselect_b32 s65, 0, 16")
    e("s_lshl_b32 s13, s13, s65")
    e("s_and_b32 s13, s13, 0xffff0000")
    e("v_mov_b32 v12, s13")
    exp_acc(13, 12, 14, 15)
    e("v_cvt_pk_bf16_f32 v13, v13, v13")
    e("v_and_b32 v13, 0xffff0000, v13")
    e("s_waitcnt vmcnt(3)")
    stamp(6, 0, P_WS)
    e("v_lshlrev_b32 v16, 16, v4"); e("v_and_b32 v17, 0xffff0000, v4")
    exp_acc(18, 16, 14, 15); exp_acc(19, 17, 24, 25)
    e("v_cvt_pk_bf16_f32 v18, v18, v19")
    e("v_lshlrev_b32 v16, 16, v18"); e("v_and_b32 v17, 0xffff0000, v18")
    e("v_lshlrev_b32 v18, 16, v5"); e("v_and_b32 v19, 0xffff0000, v5")
    for r in range(16, 20): e(f"v_mul_f32 v{r}, v{r}, v13")
    e(f"v_mul_f32 v16, {f32(-LOG2E)}, v16"); e(f"v_mul_f32 v17, {f32(-LOG2E)}, v17")
    e("v_mul_f32 v18, 0.15915494, v18"); e("v_mul_f32 v19, 0.15915494, v19")
    e("s_cmp_lt_u32 s3, 4")
    e("s_cbranch_scc0 Lc_rwave")
    ROLE[0] = 1
    E = 24; X = 28; T = 32; PK = 40
    cexp(E, E+2, 16, 18, 8, T); cexp(E+1, E+3, 17, 19, 8, T+1)
    e(f"v_mov_b32 v{X}, 1.0"); e(f"v_mov_b32 v{X+1}, 1.0"); e(f"v_mov_b32 v{X+2}, 0"); e(f"v_mov_b32 v{X+3}, 0")
    e("s_mov_b32 s66, 0")
    lab("Lc_lgen")
    for k in range(4):
        pk = PK + 2*k
        e(f"v_cvt_pk_bf16_f32 v{pk}, v{X}, v{X+2}")
        e(f"v_cvt_pk_bf16_f32 v{pk+1}, v{X+1}, v{X+3}")
        cmulp(X, X, E, T)
        e(f"ds_write_b64 v3, {vr(pk,2)} offset:{k*PITCH}")
    e(f"v_add_u32 v3, {4*PITCH}, v3")
    e("s_add_u32 s66, s66, 1"); e("s_cmp_lt_u32 s66, 8"); e("s_cbranch_scc1 Lc_lgen")
    e("v_and_b32 v4, 1, v1"); e("v_xor_b32 v4, 1, v4"); e(f"v_mul_u32_u24 v4, {CS2}, v4")
    e("v_bfe_u32 v5, v1, 1, 1"); e("v_lshl_add_u32 v4, v5, 3, v4")
    e("v_bfe_u32 v5, v1, 2, 2"); e("v_lshrrev_b32 v6, 4, v1"); e("v_add_u32 v5, v5, v6")
    e("v_lshl_add_u32 v4, v5, 4, v4"); e("s_add_u32 s66, s12, 8"); e("v_add_u32 v4, s66, v4")
    e("v_and_b32 v5, 1, v1"); e(f"v_mul_u32_u24 v5, {US}, v5")
    e("v_bfe_u32 v7, v1, 1, 3"); e("v_lshlrev_b32 v8, 2, v7"); e("v_sub_u32 v8, v8, v6")
    e("v_lshl_add_u32 v5, v8, 4, v5")
    e(f"s_mul_i32 s66, s7, {2*US}"); e(f"s_add_u32 s66, s66, {UB+448+48}")
    e("v_add_u32 v5, s66, v5")
    e("v_mul_u32_u24 v8, 272, v6"); e("v_and_b32 v9, 15, v1"); e("v_lshl_add_u32 v8, v9, 4, v8"); e("v_add_u32 v8, s12, v8")
    e("v_lshl_add_u32 v10, v1, 4, s12")
    e("v_bfe_u32 v12, v1, 4, 1"); e(f"v_mul_u32_u24 v12, {CS2}, v12"); e("v_lshl_add_u32 v12, v9, 2, v12"); e("v_add_u32 v12, s12, v12")
    e("v_mov_b32 v13, 0")
    e("v_and_b32 v14, 1, v1"); e("v_cmp_eq_u32 vcc, 0, v14")
    e("s_waitcnt lgkmcnt(0)")
    stamp(7, 0, P_WS)
    e("s_barrier")
    stamp(1, 0, P_WS)
    FR = 64; KA = 192
    def krd(ks):
        e(f"ds_read_b128 {vr(FR+8*ks,4)}, v23 offset:{32*ks}")
        e(f"ds_read_b128 {vr(FR+8*ks+4,4)}, v22 offset:{32*ks}")
    for ks in range(6): krd(ks)
    ACC = 24
    for ks in range(16):
        if ks + 6 < 16: krd(ks+6)
        e(f"s_waitcnt lgkmcnt({2*min(6, 15-ks)})")
        e(f"v_mfma_f32_32x32x16_bf16 {vr(KA,16)}, {vr(FR+8*ks,4)}, {vr(FR+8*ks+4,4)}, {'0' if ks == 0 else vr(KA,16)}")
        for r in range(2): e(f"v_mov_b32 v{ACC+2*ks+r}, 0")
    stamp(5, 0, P_WS)
    e("ds_write_b32 v12, v13")
    e("s_nop 7"); e("s_nop 1")
    D = 64; S = 80; k = KA
    e(f"v_cndmask_b32 v14, v{k+13}, v{k+12}, vcc")
    e(f"v_cndmask_b32 v15, v{k+15}, v{k+14}, vcc")
    pk = [(k,k+1),(k+2,k+3),(k+4,k+4),(k+5,k+6),
          (k+8,k+8),(k+8,k+9),(k+9,k+9),(k+10,k+10),
          (k+12,k+12),(k+12,k+12),(14,k+13),(k+13,k+13),
          (k+14,k+14),(k+14,k+14),(15,k+15),(k+15,k+15)]
    for i, (a, b) in enumerate(pk):
        e(f"v_cvt_pk_bf16_f32 v{D+i}, v{a}, v{b}")
        if i == 7:
            e(f"v_permlane32_swap_b32 v{D}, v{D+2}"); e(f"v_permlane32_swap_b32 v{D+1}, v{D+3}")
            e(f"ds_write_b128 v10, {vr(D+4,4)} offset:{64+1024}")
            e(f"ds_write_b128 v10, {vr(D,4)} offset:64")
        if i == 11: e(f"ds_write_b128 v10, {vr(D+8,4)} offset:{64+2048}")
    e(f"ds_write_b128 v10, {vr(D+12,4)} offset:{64+3072}")
    e(f"v_mov_b32 v{S}, 0")
    for q in range(1, 4): e(f"v_mov_b32_dpp v{S+4*q}, v{D+4*q-1} wave_ror:1 row_mask:0xf bank_mask:0xf")
    for q in range(4):
        for j in range(3): e(f"v_mov_b32 v{S+4*q+1+j}, v{D+4*q+j}")
        e(f"v_mov_b32_dpp v{S+4*q}, v{D+4*q+3} wave_shr:1 row_mask:0xf bank_mask:0xf")
        e(f"ds_write_b128 v10, {vr(S+4*q,4)} offset:{CS2+64+1024*q}")
    FS = [64, 128]
    e("s_waitcnt lgkmcnt(0)")
    stamp(4, 0, P_WS)
    e("s_barrier")
    stamp(2, 0, P_WS)
    def crl(fs):
        L = []
        for i in range(8):
            L.append(f"ds_read_b128 {vr(fs+32+4*i,4)}, v5 offset:{512*i}")
            L.append(f"ds_read_b64 {vr(fs+4*i,2)}, v4 offset:{512*i}")
            L.append(f"ds_read_b64 {vr(fs+4*i+2,2)}, v4 offset:{512*i+8}")
        return L
    for r in crl(FS[0]): e(r)
    e("v_add_u32 v4, 64, v4"); e("v_subrev_u32 v5, 64, v5")
    e("s_mov_b32 s66, 0")
    lab("Lc_loop")
    for half in range(2):
        cur, nxt = FS[half], FS[1-half]
        e("s_waitcnt lgkmcnt(0)")
        rl = crl(nxt)
        n = 0
        for i in range(8):
            for j in range(8 - i):
                acc = vr(ACC+4*(i+j), 4)
                e(f"v_mfma_f32_16x16x32_bf16 {acc}, {vr(cur+4*i,4)}, {vr(cur+32+4*j,4)}, {acc}")
                if n < 24: e(rl[n])
                if n == 24: e("v_add_u32 v4, 64, v4")
                if n == 25: e("v_subrev_u32 v5, 64, v5")
                if n == 26 and half == 1: e("s_add_u32 s66, s66, 1")
                if n == 27 and half == 1: e("s_cmp_lt_u32 s66, 4")
                n += 1
    e("s_cbranch_scc1 Lc_loop")
    e("s_waitcnt lgkmcnt(0)")
    stamp(3, 0, P_WS)
    for t in range(8):
        if t == 6: e("s_nop 1")
        e(f"ds_write_b128 v8, {vr(ACC+4*t,4)} offset:{1088*t}")
    e("s_waitcnt lgkmcnt(0)")
    e("s_barrier")
    e("s_endpgm")
    lab("Lc_rwave")
    ROLE[0] = 2
    E1 = 24; E256 = 28; T = 32; PK = 40
    R = {0: 48, 2: 52, 4: 56, 6: 60, 8: 64}; TMP = 68
    def uload(r):
        e(f"buffer_load_dwordx2 {vr(UR+2+2*r,2)}, v9, {sr(SU,4)}, {'0' if r < 4 else 's64'} offen offset:{1024*(r&3)}")
    e("s_waitcnt vmcnt(1)" if not STAMP else "s_waitcnt vmcnt(2)")
    e("v_add_f32 v13, v13, v13")
    e(f"v_lshlrev_b32 v{R[0]}, 16, v6"); e(f"v_and_b32 v{R[0]+1}, 0xffff0000, v6")
    e(f"v_lshlrev_b32 v{R[0]+2}, 16, v7"); e(f"v_and_b32 v{R[0]+3}, 0xffff0000, v7")
    e("s_mov_b64 exec, 1")
    e(f"buffer_load_dwordx2 {vr(UR,2)}, v10, {sr(SU,4)}, 0 offen")
    e("s_mov_b64 exec, -1")
    uload(0)
    cexp(E1, E1+2, 16, 18, 1, T); cexp(E1+1, E1+3, 17, 19, 1, T+1)
    cexp(E256, E256+2, 16, 18, 256, T); cexp(E256+1, E256+3, 17, 19, 256, T+1)
    for r in range(4): e(f"v_mul_f32 v{R[0]+r}, v{R[0]+r}, v13")
    cnt = [0]
    def putr(x, srow):
        pk = PK + 2*(cnt[0] % 4); cnt[0] += 1
        e(f"v_cvt_pk_bf16_f32 v{pk}, v{x}, -v{x+2}")
        e(f"v_cvt_pk_bf16_f32 v{pk+1}, v{x+1}, -v{x+3}")
        e(f"ds_write_b64 v3, {vr(pk,2)} offset:{R_OFF+srow*PITCH}")
        if cnt[0] in (3, 11, 19, 27): uload(1 + (cnt[0]-3)//8)
    putr(R[0], 0)
    cur = R[0]
    for p in range(1, 9):
        nx = R[p] if p in R else TMP
        cmulp(nx, cur, E1, T)
        if p < 8: putr(nx, p)
        cur = nx
    for xs, sr0 in (([0,2,4,6,8], 8), ([0,4,8], 13), ([0,4,8], 16), ([0,8], 19), ([0,8], 23), ([0,8], 21), ([0,8], 25)):
        for i, x in enumerate(xs):
            cmulp(R[x], R[x], E256, T)
            putr(R[x], sr0 + i)
    e("s_waitcnt lgkmcnt(0)")
    stamp(7, 0, P_WS)
    e("s_barrier")
    for r in range(5, 8): uload(r)
    stamp(1, 0, P_WS)
    e("s_mov_b32 s66, 0x05040100"); e("s_mov_b32 s67, 0x07060302")
    e("v_lshrrev_b32 v4, 5, v8"); e(f"v_mul_u32_u24 v4, {US}, v4")
    e("v_and_b32 v5, 31, v8"); e("v_min_u32 v5, 27, v5"); e("v_lshl_add_u32 v4, v5, 4, v4")
    for r in range(4): e(f"v_mov_b32 v{24+r}, 0")
    e(f"v_add_u32 v4, {UB}, v4")
    e(f"ds_write_b128 v4, {vr(24,4)}")
    e("v_lshlrev_b32 v4, 4, v8"); e(f"v_add_u32 v4, {UB+448}, v4")
    e("s_waitcnt vmcnt(0)")
    stamp(3, 0, P_WS)
    for hh in range(2): e(f"v_mov_b32_dpp v{UR+hh}, v{UR+16+hh} wave_shr:1 row_mask:0xf bank_mask:0xf")
    def row(r, c): return UR + 2 + 2*r + (c >> 1)
    k = 0
    for c in range(4):
        sel = "s67" if c & 1 else "s66"
        for b0 in (1, 0):
            d = 28 + 4*(k % 4); k += 1
            top = 7 if b0 else 6
            for i in range(4):
                e(f"v_perm_b32 v{d+i}, v{row(top-2*i-1,c)}, v{row(top-2*i,c)}, {sel}")
            e(f"ds_write_b128 v4, {vr(d,4)} offset:{(2*c+b0)*US}")
    e("s_waitcnt lgkmcnt(0)")
    e("s_barrier")
    stamp(2, 0, P_WS)
    e("s_cmp_ge_u32 s3, 6")
    e("s_cbranch_scc1 Lc_gate")
    e("s_cmp_ge_u32 s6, 112")
    e("s_cbranch_scc1 Lc_fin")
    srd(SW2, P_W2, 1792*1024)
    e("s_sub_u32 s68, s3, 4")
    e("s_lshl_b32 s69, s6, 14"); e("s_lshl_b32 s71, s68, 12"); e("s_add_u32 s69, s69, s71"); e("s_add_u32 s71, s69, 8192")
    e("v_lshlrev_b32 v4, 4, v1")
    for t in range(8):
        e(f"buffer_load_dwordx4 {vr(64+4*t,4)}, v4, {sr(SW2,4)}, {'s69' if t < 4 else 's71'} offen offset:{1024*(t&3)}")
    e("v_lshrrev_b32 v5, 2, v1"); e(f"s_mov_b32 s72, {112*1024}"); e("v_mul_lo_u32 v5, v5, s72")
    e("v_and_b32 v6, 3, v1"); e("v_lshl_add_u32 v5, v6, 7, v5")
    e("s_lshl_b32 s72, s6, 10"); e("s_lshl_b32 s73, s68, 9"); e("s_add_u32 s72, s72, s73"); e(f"s_add_u32 s72, s72, {WF_OFF}")
    e("s_waitcnt vmcnt(0)")
    for ee in range(8):
        sel = "s67" if ee & 1 else "s66"
        d = 96 + 4*ee
        for kk in range(4):
            e(f"v_perm_b32 v{d+kk}, v{64+4*(2*kk+1)+(ee>>1)}, v{64+4*(2*kk)+(ee>>1)}, {sel}")
        e(f"buffer_store_dwordx4 {vr(d,4)}, v5, {sr(SWS,4)}, s72 offen offset:{16*ee}")
    e("s_branch Lc_fin")
    lab("Lc_gate")
    e("s_lshl_b32 s68, s6, 4"); e("s_sub_u32 s69, s3, 6"); e("s_lshl_b32 s69, s69, 3"); e("s_add_u32 s68, s68, s69")
    e("s_lshl_b32 s69, s68, 10"); e("s_add_u32 s71, s69, 4096")
    e("v_lshlrev_b32 v4, 4, v1")
    e(f"global_load_dwordx4 {vr(60,4)}, v4, {sr(P_GW,2)}")
    for r in range(8):
        e(f"buffer_load_dwordx4 {vr(64+4*r,4)}, v4, {sr(SU,4)}, {'s69' if r < 4 else 's71'} offen offset:{1024*(r&3)}")
    e("s_waitcnt vmcnt(8)")
    for i in range(4):
        e(f"v_lshlrev_b32 v{100+2*i}, 16, v{60+i}"); e(f"v_and_b32 v{100+2*i+1}, 0xffff0000, v{60+i}")
    for r in range(8):
        e(f"s_waitcnt vmcnt({7-r})")
        for i in range(4):
            e(f"v_lshlrev_b32 v{110+2*i}, 16, v{64+4*r+i}"); e(f"v_and_b32 v{110+2*i+1}, 0xffff0000, v{64+4*r+i}")
        for i in range(8): e(f"v_mul_f32 v{110+i}, v{110+i}, v{100+i}")
        for i in range(4): e(f"v_cvt_pk_bf16_f32 v{120+i}, v{110+2*i}, v{110+2*i+1}")
        for i in range(4):
            e(f"v_lshlrev_b32 v{110+2*i}, 16, v{120+i}"); e(f"v_and_b32 v{110+2*i+1}, 0xffff0000, v{120+i}")
        for i in range(4): e(f"v_add_f32 v{110+i}, v{110+i}, v{114+i}")
        e("v_add_f32 v110, v110, v112"); e("v_add_f32 v111, v111, v113")
        e(f"v_add_f32 v{24+r}, v110, v111")
    for dpp in ("quad_perm:[1,0,3,2] row_mask:0xf", "quad_perm:[2,3,0,1] row_mask:0xf", "row_half_mirror row_mask:0xf",
                "row_mirror row_mask:0xf", "row_bcast:15 row_mask:0xa", "row_bcast:31 row_mask:0xc"):
        e("s_nop 1")
        for r in range(8): e(f"v_add_f32_dpp v{24+r}, v{24+r}, v{24+r} {dpp} bank_mask:0xf")
    e("s_nop 1")
    for r in range(8): e(f"v_readlane_b32 s{72+r}, v{24+r}, 63")
    e("s_nop 3")
    for r in range(8): e(f"v_writelane_b32 v32, s{72+r}, {r}")
    e("s_nop 1")
    e("v_cvt_pk_bf16_f32 v32, v32, v32"); e("v_and_b32 v32, 0xffff0000, v32")
    e(f"v_mul_f32 v32, {f32(-LOG2E)}, v32")
    e("v_exp_f32 v32, v32"); e("s_nop 0"); e("v_add_f32 v32, 1.0, v32"); e("v_rcp_f32 v32, v32"); e("s_nop 0")
    e("v_cvt_pk_bf16_f32 v32, v32, v32"); e("v_and_b32 v32, 0xffff0000, v32")
    e("v_sub_f32 v33, 1.0, v32")
    e("v_cvt_pk_bf16_f32 v33, v33, v33"); e("v_and_b32 v33, 0xffff0000, v33")
    e("v_lshlrev_b32 v4, 3, v1")
    e("s_lshl_b32 s68, s68, 3"); e(f"s_add_u32 s68, s68, {G_OFF}")
    e("s_mov_b64 exec, 0xff")
    e(f"buffer_store_dwordx2 v[32:33], v4, {sr(SWS,4)}, s68 offen")
    e("s_mov_b64 exec, -1")
    lab("Lc_fin")
    e("s_lshl_b32 s72, s14, 16"); e("s_and_b32 s73, s14, 0xffff0000")
    e("s_lshl_b32 s74, s15, 16"); e("s_and_b32 s75, s15, 0xffff0000")
    UF = 128
    for r in range(8):
        for hh in range(2):
            e(f"v_lshlrev_b32 v{UF+4*r+2*hh}, 16, v{UR+2+2*r+hh}")
            e(f"v_and_b32 v{UF+4*r+2*hh+1}, 0xffff0000, v{UR+2+2*r+hh}")
    e("v_lshrrev_b32 v4, 5, v8"); e("v_mul_u32_u24 v4, 1088, v4")
    e("v_and_b32 v5, 3, v8"); e("v_mul_u32_u24 v5, 272, v5")
    e("v_bfe_u32 v6, v8, 2, 3"); e("v_lshl_add_u32 v4, v6, 5, v4"); e("v_add_u32 v4, v4, v5")
    e(f"v_add_u32 v5, {2*CR_SZ}, v4")
    e("v_lshlrev_b32 v6, 6, v8")
    e("s_lshl_b32 s68, s6, 14"); e(f"s_add_u32 s68, s68, {A4_OFF}")
    e("s_barrier")
    stamp(4, 0, P_WS)
    Y = 160
    for c in range(4):
        for b0 in range(2):
            e(f"ds_read_b128 {vr(Y+8*c+4*b0,4)}, v{4 if c < 2 else 5} offset:{(c&1)*CR_SZ+16*b0}")
    for c in range(4):
        e(f"s_waitcnt lgkmcnt({6-2*c})")
        for l in range(8):
            e(f"v_fma_f32 v{UF+4*l+c}, v{UF+4*l+c}, s{72+c}, v{Y+8*c+4*(l&1)+(l>>1)}")
    O = 192
    for l in range(8):
        for hh in range(2): e(f"v_cvt_pk_bf16_f32 v{O+2*l+hh}, v{UF+4*l+2*hh}, v{UF+4*l+2*hh+1}")
    for i in range(4): e(f"buffer_store_dwordx4 {vr(O+4*i,4)}, v6, {sr(SWS,4)}, s68 offen offset:{16*i}")
    if STAMP:
        e("s_waitcnt vmcnt(0)")
        stamp(5, 0, P_WS)
    e("s_endpgm")

def gemm2():
    ROLE[0] = 0
    SWS, SO, SB2 = 48, 52, 56
    DEPTH = 13
    ACC = 0; RING = 48
    cm("mt = 4*s4 + (s5&3), nt = s5>>2")
    e("s_and_b32 s6, s5, 3"); e("s_lshl_b32 s7, s4, 2"); e("s_add_u32 s6, s6, s7")
    e("s_lshr_b32 s7, s5, 2")
    e(f"s_mul_i32 s8, s3, {28*1024}")
    e(f"s_mul_i32 s9, s6, {2*112*1024}"); e("s_add_u32 s9, s9, s8")
    e(f"s_mul_i32 s10, s7, {2*112*1024}"); e("s_add_u32 s10, s10, s8"); e(f"s_add_u32 s10, s10, {WF_OFF}")
    e("v_lshlrev_b32 v2, 4, v1")
    e("s_lshr_b32 s11, s3, 1"); e("s_and_b32 s12, s3, 1")
    e(f"s_mul_i32 s13, s12, {112*1024}"); e(f"s_sub_u32 s14, {112*1024}, s13")
    e("v_add3_u32 v3, s9, v2, s13") if False else None
    e("s_add_u32 s13, s13, s9"); e("s_add_u32 s14, s14, s9")
    e("v_add_u32 v3, s13, v2"); e("v_add_u32 v4, s14, v2")
    e(f"s_mul_i32 s13, s11, {112*1024}"); e(f"s_sub_u32 s14, {112*1024}, s13")
    e("s_add_u32 s13, s13, s10"); e("s_add_u32 s14, s14, s10")
    e("v_add_u32 v5, s13, v2"); e("v_add_u32 v6, s14, v2")
    e("s_and_b32 s13, s5, 3"); e("s_lshl_b32 s13, s13, 1"); e("s_add_u32 s13, s13, s7")
    e("s_cmp_ge_u32 s13, 7"); e("s_cselect_b32 s14, 7, 0"); e("s_sub_u32 s13, s13, s14")
    e("s_lshl_b32 s60, s13, 12")
    for i in range(1, 7):
        e(f"s_add_u32 s{60+i}, s{59+i}, 4096"); e(f"s_cmp_eq_u32 s{60+i}, {7*4096}"); e(f"s_cselect_b32 s{60+i}, 0, s{60+i}")
    e("s_waitcnt lgkmcnt(0)")
    stamp(0, 1, P_WS, 36)
    srd(SWS, P_WS, WS_USED)
    def loads(s):
        fs = RING + 16*(s % DEPTH)
        so = f"s{60 + s//4}"
        for i, a in enumerate((5, 3, 6, 4)):
            e(f"buffer_load_dwordx4 {vr(fs+4*i,4)}, v{a}, {sr(SWS,4)}, {so} offen offset:{1024*(s&3)}")
    for s in range(DEPTH): loads(s)
    srd(SO, P_OUT, 2048*1024)
    srd(SB2, P_B2, 1024)
    e("s_lshl_b32 s13, s6, 1"); e("s_add_u32 s13, s13, s12"); e("s_lshl_b32 s13, s13, 5")
    e("s_lshl_b32 s14, s7, 1"); e("s_add_u32 s14, s14, s11"); e("s_lshl_b32 s14, s14, 5")
    e("v_and_b32 v7, 31, v1"); e("v_lshrrev_b32 v8, 5, v1")
    e("v_add_u32 v7, s13, v7")
    e("v_lshlrev_b32 v9, 3, v7")
    e("v_lshl_add_u32 v10, v8, 14, v9")
    e("s_lshl_b32 s15, s14, 12"); e(f"s_add_u32 s15, s15, {A4_OFF}")
    e("s_add_u32 s68, s15, 32768"); e("s_add_u32 s69, s68, 32768"); e("s_add_u32 s70, s69, 32768")
    e(f"s_mov_b32 s71, {G_OFF}")
    e("s_lshl_b32 s72, s14, 1")
    e("v_lshl_add_u32 v11, v8, 3, s72")
    EP = 16
    for j, so in enumerate(("s15", "s68", "s69", "s70")):
        e(f"buffer_load_dwordx2 {vr(EP+2*j,2)}, v10, {sr(SWS,4)}, {so} offen")
    for j in range(4): e(f"buffer_load_dwordx2 {vr(EP+8+2*j,2)}, v11, {sr(SB2,4)}, 0 offen offset:{16*j}")
    e(f"buffer_load_dwordx2 {vr(EP+16,2)}, v9, {sr(SWS,4)}, s71 offen")
    e("v_lshlrev_b32 v12, 10, v7"); e("v_lshl_add_u32 v12, v8, 4, v12"); e("v_add_u32 v12, s72, v12")
    for t in range(1, 4):
        e(f"s_xor_b32 s73, s3, {t}"); e("s_mul_i32 s73, s73, 12288"); e(f"v_add_u32 v{39+t}, s73, v2")
    e("s_mul_i32 s73, s3, 12288"); e("v_add_u32 v14, s73, v2")
    NE = 9
    for s in range(28):
        issued_after = min(28, s + DEPTH) - (s + 1)
        n = 4*issued_after + (NE if s < DEPTH else 0)
        e(f"s_waitcnt vmcnt({n})")
        if s == 0: stamp(1, 1, P_WS, 36) if False else None
        fs = RING + 16*(s % DEPTH)
        for b in range(2):
            for a in range(2):
                acc = ar(ACC+32*b+16*a, 16)
                e(f"v_mfma_f32_32x32x16_bf16 {acc}, {vr(fs+8*b,4)}, {vr(fs+4+8*a,4)}, {'0' if s == 0 else acc}")
        if s + DEPTH < 28: loads(s + DEPTH)
    stamp(1, 1, P_WS, 36)
    AF = 160; BF = 176
    for i in range(8):
        e(f"v_lshlrev_b32 v{AF+2*i}, 16, v{EP+i}"); e(f"v_and_b32 v{AF+2*i+1}, 0xffff0000, v{EP+i}")
    for t in range(1, 4):
        for r in range(4):
            e(f"ds_write_b128 v{39+t}, {ar(ACC+16*t+4*r,4)} offset:{(t-1)*4096+r*1024}")
    for i in range(8):
        e(f"v_lshlrev_b32 v{BF+2*i}, 16, v{EP+8+i}"); e(f"v_and_b32 v{BF+2*i+1}, 0xffff0000, v{EP+8+i}")
    for i in range(16): e(f"v_mul_f32 v{AF+i}, v{AF+i}, v{EP+16}")
    for i in range(16): e(f"v_accvgpr_read_b32 v{RING+48+i}, a{i}")
    for i in range(16): e(f"v_add_f32 v{BF+i}, v{BF+i}, v{RING+48+i}")
    e("s_waitcnt lgkmcnt(0)")
    e("s_barrier")
    for t in range(3):
        for r in range(4):
            e(f"ds_read_b128 {vr(RING+16*t+4*r,4)}, v14 offset:{t*4096+r*1024}")
    for t in range(3):
        e(f"s_waitcnt lgkmcnt({8-4*t})")
        for i in range(16): e(f"v_add_f32 v{BF+i}, v{BF+i}, v{RING+16*t+i}")
    for i in range(16): e(f"v_fmac_f32 v{AF+i}, v{BF+i}, v{EP+17}")
    O = 192
    for i in range(8): e(f"v_cvt_pk_bf16_f32 v{O+i}, v{AF+2*i}, v{AF+2*i+1}")
    e("s_nop 1")
    for jj in range(2):
        e(f"v_permlane32_swap_b32 v{O+4*jj}, v{O+4*jj+2}")
        e(f"v_permlane32_swap_b32 v{O+4*jj+1}, v{O+4*jj+3}")
    for jj in range(2):
        e(f"buffer_store_dwordx4 {vr(O+4*jj,4)}, v12, {sr(SO,4)}, 0 offen offset:{32*jj}")
    if STAMP:
        e("s_waitcnt vmcnt(0)")
        stamp(2, 1, P_WS, 36)
    e("s_endpgm")

def kd(name, vgpr, accum):
    out.append(f""".amdhsa_kernel {name}
  .amdhsa_next_free_vgpr {vgpr}
  .amdhsa_next_free_sgpr 102
  .amdhsa_accum_offset {accum}
  .amdhsa_group_segment_fixed_size 0
  .amdhsa_kernarg_size 128
  .amdhsa_user_sgpr_count 2
  .amdhsa_user_sgpr_kernarg_segment_ptr 1
  .amdhsa_system_sgpr_workgroup_id_x 1
.end_amdhsa_kernel""")

hdr = open(f"cdna_kernels/{NAME}.s.ref").read().splitlines()
for l in hdr:
    if l.startswith(";") and "@launch" not in l and "Override" not in l and "Harness parses" not in l: out.append(l)
K1 = "gmix_a_kernel"; K2 = "gmix_b_kernel"
out.append(f"; @launch kernel={K1} grid=(240,1,1) block=(512,1,1) lds={LDS1}")
out.append(f"; @launch kernel={K2} grid=(256,1,1) block=(256,1,1) lds=49152")
out.append('.amdgcn_target "amdgcn-amd-amdhsa--gfx950"')
out.append(".text")
for k in (K1, K2): out.append(f".globl {k}")
out.append(".p2align 8"); out.append(f".type {K1},@function"); lab(K1)
EXIT = "La_exit"
prologue(240)
e("s_cmp_ge_u32 s5, 14")
e("s_cbranch_scc1 La_conv")
gemm1()
lab("La_conv")
conv()
lab(EXIT); e("s_endpgm")
out.append(".p2align 8"); out.append(f".type {K2},@function"); lab(K2)
EXIT = "Lb_exit"
prologue(256)
gemm2()
lab(EXIT); e("s_endpgm")
out.append('.section .rodata,"a"'); out.append(".p2align 6")
kd(K1, 256, 256)
out.append(".p2align 6")
kd(K2, 320, 256)
dst = [a for a in sys.argv[1:] if not a.startswith("--")]
open(dst[0] if dst else f"cdna_kernels/{NAME}.s", "w").write("\n".join(out) + "\n")
```

```python
import sys, struct
NAME = "gated_mix__ssm_conv_s4d__dense_activation_squared_relu__prompt"
STAMP = "--stamp" in sys.argv or "--dbg" in sys.argv

OPT = lambda k: ("--"+k) in sys.argv
SC1A = " sc1" if OPT("sc1a") else ""
SC1H = " sc1" if OPT("sc1h") else ""
NTW1 = " nt" if OPT("ntw1") else ""
HF_OFF = 0
HF_SZ = 64*112*1024
WF_OFF = HF_SZ
WF_SZ = 16*112*1024
A4_OFF = WF_OFF + WF_SZ
A4_SZ = 128*2048*8
G_OFF = A4_OFF + A4_SZ
G_SZ = 2048*8
WS_USED = G_OFF + G_SZ
ST_OFF = 0x1000000

out = []
def e(s): out.append("    " + s)
def lab(s): out.append(s + ":")
def cm(s): out.append("    ; " + s)
def f32(x): return "0x%08x" % struct.unpack("<I", struct.pack("<f", x))[0]
def vr(a, n): return f"v[{a}:{a+n-1}]"
def ar(a, n): return f"a[{a}:{a+n-1}]"
def sr(a, n): return f"s[{a}:{a+n-1}]"
def srd(d, ptr, size, off=None):
    if off is None:
        e(f"s_mov_b32 s{d}, s{ptr}"); e(f"s_mov_b32 s{d+1}, s{ptr+1}")
    else:
        e(f"s_add_u32 s{d}, s{ptr}, {off}"); e(f"s_addc_u32 s{d+1}, s{ptr+1}, 0")
    e(f"s_mov_b32 s{d+2}, {size}"); e(f"s_mov_b32 s{d+3}, 0x20000")

DBG = "--dbg" in sys.argv
ROLE = [0]
def stamp(idx, kern, wsp, tmp=250):
    if DBG:
        slot = {(0,0):[0,1,2,3], (0,1):[0,4,5,6], (0,2):[0,7,8,9,10,11], (1,0):[12,13,14]}[(kern,ROLE[0])][idx]
        e("s_memrealtime s[96:97]")
        e(f"s_sub_u32 s98, s44, {512*kern}"); e("s_subb_u32 s99, s45, 0")
        e("s_waitcnt lgkmcnt(0)")
        if slot == 0 or slot == 12: e("s_not_b32 s96, s96")
        e(f"v_mov_b32 v{tmp}, s96"); e(f"v_mov_b32 v{tmp+2}, {4*slot}")
        e("s_mov_b64 exec, 1")
        e(f"global_atomic_umax v{tmp+2}, v{tmp}, s[98:99]")
        e("s_mov_b64 exec, -1")
        return
    if not STAMP: return
    e("s_memrealtime s[96:97]")
    e("s_memtime s[100:101]")
    e("s_lshl_b32 s98, s2, 3"); e("s_add_u32 s98, s98, s3"); e("s_lshl_b32 s98, s98, 6")
    e(f"s_add_u32 s98, s98, {ST_OFF + kern*0x40000 + idx*8}")
    e("s_waitcnt lgkmcnt(0)")
    e(f"v_mov_b32 v{tmp}, s96"); e(f"v_mov_b32 v{tmp+1}, s100"); e(f"v_mov_b32 v{tmp+2}, s98")
    e(f"global_store_dwordx2 v{tmp+2}, v[{tmp}:{tmp+1}], s[{wsp}:{wsp+1}]")

P_U, P_LAR, P_AIM, P_CR, P_CI, P_LDT, P_DSK = 16, 18, 20, 22, 24, 26, 28
P_W1, P_B1, P_W2, P_B2, P_GW, P_OUT, P_DBG, P_WS = 32, 34, 36, 38, 40, 42, 44, 46
LOG2E = 1.4426950408889634
L_HI = struct.unpack("<f", struct.pack("<f", LOG2E))[0]
L_LO = LOG2E - L_HI
LN2 = 0.6931471805599453

def prologue(nwg):
    e(f"s_cmp_ge_u32 s2, {nwg}")
    e("s_cbranch_scc1 " + EXIT)
    e("s_load_dwordx16 s[16:31], s[0:1], 0")
    e("s_load_dwordx16 s[32:47], s[0:1], 64")
    e("v_lshrrev_b32 v2, 6, v0")
    e("v_and_b32 v1, 63, v0")
    e("v_readfirstlane_b32 s3, v2")
    e("s_and_b32 s4, s2, 7")
    e("s_lshr_b32 s5, s2, 3")

def gemm1():
    SX, SW, SH, SB = 48, 52, 56, 60
    XS = [0, 32768, 65536]; WB = 98304; WS_ = 16384
    cm("---- GEMM1: mt = s4, ft = s5; waves 0-3 compute, 4-7 load")
    e("s_lshl_b32 s8, s5, 8")
    e("s_cmp_lt_u32 s3, 4")
    e("s_cbranch_scc1 Lg_comp")
    vX0, vX1, vW = 2, 3, 4
    e("s_sub_u32 s11, s3, 4")
    e("s_lshl_b32 s6, s4, 18")
    e("s_lshl_b32 s7, s11, 16")
    e("v_lshrrev_b32 v5, 3, v1")
    e("v_lshrrev_b32 v6, 4, v1")
    e("v_and_b32 v7, 7, v1")
    e("v_xor_b32 v7, v7, v6")
    e("v_lshlrev_b32 v7, 4, v7")
    e(f"v_lshl_add_u32 v{vX0}, v5, 10, v7")
    e(f"v_add_u32 v{vX0}, s7, v{vX0}")
    e(f"v_xor_b32 v{vX1}, 64, v{vX0}")
    e(f"v_add_u32 v{vX1}, 0x2000, v{vX1}")
    e("s_mul_i32 s7, s11, %d" % (16*3584))
    e("s_add_u32 s7, s7, s8")
    e("v_and_b32 v7, 15, v1")
    e("v_lshlrev_b32 v5, 2, v6")
    e("v_xor_b32 v7, v7, v5")
    e("v_lshlrev_b32 v7, 4, v7")
    e("v_mul_u32_u24 v5, 3584, v6")
    e(f"v_add3_u32 v{vW}, v5, v7, s7")
    e("s_lshl_b32 s9, s11, 13")
    e("s_lshl_b32 s10, s11, 12")
    e(f"s_add_u32 s10, s10, {WB}")
    e("s_add_u32 s12, s4, s5")
    e("s_mov_b32 s13, 0")
    e("s_mov_b32 s66, 0")
    e("s_waitcnt lgkmcnt(0)")
    stamp(0, 0, P_WS)
    srd(SX, P_U, 262144, "s6")
    srd(SW, P_W1, 512*3584)
    lab("Lg_issue")
    e("s_and_b32 s12, s12, 7")
    e("s_lshl_b32 s14, s12, 7")
    e(f"s_mul_i32 s64, s12, {64*3584}")
    e("s_lshl_b32 s15, s13, 14")
    e("s_add_u32 m0, s10, s15")
    e("s_lshl_b32 s15, s13, 15")
    for i in range(4):
        e(f"buffer_load_dwordx4 v{vW}, {sr(SW,4)}, s64 offen{NTW1} lds")
        if i < 3:
            e("s_add_u32 m0, m0, 1024"); e(f"s_add_u32 s64, s64, {4*3584}")
    e("s_add_u32 m0, s9, s15")
    e("s_add_u32 s12, s12, 1")
    for i in range(8):
        e(f"buffer_load_dwordx4 v{vX1 if i & 1 else vX0}, {sr(SX,4)}, s14 offen lds")
        if i < 7:
            e("s_add_u32 m0, m0, 1024")
            e("s_add_u32 s14, s14, 16384" if i & 1 else "s_nop 0")
    e("s_add_u32 s13, s13, 1"); e("s_cmp_eq_u32 s13, 3"); e("s_cselect_b32 s13, 0, s13")
    e("s_add_u32 s66, s66, 1")
    e("s_cmp_eq_u32 s66, 1")
    e("s_cbranch_scc1 Lg_issue")
    e("s_waitcnt vmcnt(12)")
    e("s_barrier")
    e("s_cmp_lt_u32 s66, 8")
    e("s_cbranch_scc1 Lg_issue")
    e("s_waitcnt vmcnt(0)")
    e("s_barrier")
    e("s_endpgm")
    lab("Lg_comp")
    vXa, vXb, vWa, vH = 8, 12, 16, 18
    F = [32, 56]
    ACC = 128
    e("s_and_b32 s11, s3, 1")
    e("s_lshr_b32 s12, s3, 1")
    e("s_lshl_b32 s13, s12, 7")
    e("s_add_u32 s13, s13, s8")
    e("v_lshrrev_b32 v5, 5, v1")
    e("v_lshl_add_u32 v7, v5, 3, s13")
    e("s_waitcnt lgkmcnt(0)")
    stamp(0, 0, P_WS, 24)
    srd(SB, P_B1, 3584)
    srd(SH, P_WS, HF_SZ)
    for b in range(2):
        for j in range(4):
            e(f"buffer_load_dwordx2 {vr(80+8*b+2*j,2)}, v7, {sr(SB,4)}, 0 offen offset:{64*b+16*j}")
    e("v_and_b32 v6, 31, v1")
    e("v_bfe_u32 v7, v1, 1, 3")
    e("v_xor_b32 v7, v7, v5")
    e("v_lshlrev_b32 v7, 4, v7")
    e("v_lshl_add_u32 v7, v6, 7, v7")
    e("s_lshl_b32 s13, s11, 14")
    e(f"v_add_u32 v{vXa}, s13, v7")
    for ks in range(1, 4): e(f"v_xor_b32 v{vXa+ks}, {32*ks}, v{vXa}")
    for ks in range(4): e(f"v_add_u32 v{vXb+ks}, 0x10000, v{vXa+ks}")
    e("v_bfe_u32 v6, v1, 2, 2")
    e("v_lshl_add_u32 v7, v5, 3, v6")
    e("v_lshlrev_b32 v7, 8, v7")
    e("v_bfe_u32 v19, v1, 4, 1")
    e("v_bfe_u32 v20, v1, 1, 1")
    e("v_lshl_add_u32 v19, v19, 1, v20")
    e("s_lshl_b32 s13, s12, 3")
    e("v_add_u32 v19, s13, v19")
    e("v_lshlrev_b32 v6, 2, v6")
    e("v_xor_b32 v19, v19, v6")
    e("v_lshl_add_u32 v7, v19, 4, v7")
    e("v_and_b32 v20, 1, v1")
    e("v_lshl_add_u32 v7, v20, 3, v7")
    e(f"v_add_u32 v{vWa}, {WB}, v7")
    e(f"v_xor_b32 v{vWa+1}, 64, v{vWa}")
    e("s_lshl_b32 s13, s4, 3"); e("s_lshl_b32 s14, s11, 2"); e("s_add_u32 s13, s13, s14")
    e("s_mul_i32 s13, s13, 112")
    e("s_lshl_b32 s14, s5, 3"); e("s_add_u32 s13, s13, s14")
    e("s_lshl_b32 s14, s12, 2"); e("s_add_u32 s13, s13, s14")
    e("s_lshl_b32 s13, s13, 10")
    e(f"v_lshl_add_u32 v{vH}, v1, 4, s13")
    for a in range(1, 4): e(f"s_mov_b32 s{64+a}, {a*112*1024}")
    BI = 96
    e("s_waitcnt vmcnt(0)")
    for b in range(2):
        for j in range(8):
            src = 80 + 8*b + j
            e(f"v_lshlrev_b32 v{BI+16*b+2*j}, 16, v{src}")
            e(f"v_and_b32 v{BI+16*b+2*j+1}, 0xffff0000, v{src}")
    def rdlist(s, ks, fs):
        sl = s % 3
        xa = (vXb if sl == 2 else vXa) + ks
        xo = 0 if sl == 2 else XS[sl]
        L = []
        def w(b):
            for u in range(2):
                L.append(f"ds_read_b64_tr_b16 {vr(fs+16+4*b+2*u,2)}, v{vWa+b} offset:{sl*WS_+(16*ks+4*u)*256}")
        w(0)
        for a in range(4): L.append(f"ds_read_b128 {vr(fs+4*a,4)}, v{xa} offset:{xo+4096*a}")
        w(1)
        return L
    def mfmas(fs, rl, first=False):
        n = 0
        for b in range(2):
            for a in range(4):
                acc = vr(ACC+64*b+16*a, 16)
                e(f"v_mfma_f32_32x32x16_bf16 {acc}, {vr(fs+16+4*b,4)}, {vr(fs+4*a,4)}, {vr(BI+16*b,16) if first else acc}")
                for r in rl[2*n:2*n+2]: e(r)
                n += 1
    e("s_barrier")
    stamp(1, 0, P_WS, 24)
    for r in rdlist(0, 0, F[0]): e(r)
    for s in range(8):
        for ks in range(4):
            e("s_waitcnt lgkmcnt(0)")
            if ks < 3: rl = rdlist(s, ks+1, F[(ks+1) & 1])
            elif s < 7:
                e("s_barrier")
                rl = rdlist(s+1, 0, F[0])
            else: rl = []
            mfmas(F[ks & 1], rl, s == 0 and ks == 0)
    stamp(2, 0, P_WS, 24)
    e("s_nop 4")
    k = 0
    for b in range(2):
        for a in range(4):
            base = ACC+64*b+16*a
            for r in range(16): e(f"v_mul_f32 v{base+r}, v{base+r}, |v{base+r}|")
            dst = 32 + 8*(k % 8); k += 1
            for r in range(8): e(f"v_cvt_pk_bf16_f32 v{dst+r}, v{base+2*r}, v{base+2*r+1}")
            for r in range(8): e(f"v_pk_max_i16 v{dst+r}, v{dst+r}, 0")
            for s_ in range(2):
                e(f"buffer_store_dwordx4 {vr(dst+4*s_,4)}, v{vH}, {sr(SH,4)}, {'0' if a == 0 else 's%d' % (64+a)} offen offset:{2048*b+1024*s_}{SC1H}")
    if STAMP:
        e("s_waitcnt vmcnt(0)")
        stamp(3, 0, P_WS, 24)
    e("s_endpgm")

PITCH = 528
CR_SZ = 59*PITCH
R_OFF = 32*PITCH
UB = 4*CR_SZ
US = 4576
CS = 4160
LDS1 = UB + 8*US

def exp_acc(dst, x, t0, t1):
    e(f"v_mul_f32 v{t0}, s70, v{x}")
    e(f"v_fma_f32 v{t1}, v{x}, s70, -v{t0}")
    e(f"v_exp_f32 v{dst}, v{t0}")
    e(f"v_fmac_f32 v{t1}, {f32(L_LO)}, v{x}")
    e(f"v_mul_f32 v{t1}, {f32(LN2)}, v{t1}")
    e(f"v_fmac_f32 v{dst}, v{dst}, v{t1}")

def cexp(dr, di, zr2, zi2, p, t):
    if p == 1:
        e(f"v_exp_f32 v{t}, v{zr2}")
        e(f"v_fract_f32 v{di}, v{zi2}")
    else:
        e(f"v_mul_f32 v{t}, {f32(p)}, v{zr2}")
        e(f"v_mul_f32 v{di}, {f32(p)}, v{zi2}")
        e(f"v_exp_f32 v{t}, v{t}")
        e(f"v_fract_f32 v{di}, v{di}")
    e(f"v_cos_f32 v{dr}, v{di}")
    e(f"v_sin_f32 v{di}, v{di}")
    e(f"v_mul_f32 v{dr}, v{dr}, v{t}")
    e(f"v_mul_f32 v{di}, v{di}, v{t}")

def p2(r): return f"v[{r}:{r+1}]"
def cmulp(d, x, en, t):
    e(f"v_pk_mul_f32 {p2(t)}, {p2(x+2)}, {p2(en+2)}")
    e(f"v_pk_mul_f32 {p2(t+2)}, {p2(x+2)}, {p2(en)}")
    e(f"v_pk_fma_f32 {p2(d+2)}, {p2(x)}, {p2(en+2)}, {p2(t+2)}")
    e(f"v_pk_fma_f32 {p2(d)}, {p2(x)}, {p2(en)}, {p2(t)} neg_lo:[0,0,1] neg_hi:[0,0,1]")

CS2 = 4224
def conv():
    SU, SWS, SW2 = 48, 52, 56
    UR = 224
    cm("---- conv role: G = 16*s4 + s5 - 14")
    e("s_sub_u32 s5, s5, 14")
    e("s_lshl_b32 s6, s4, 4"); e("s_add_u32 s6, s6, s5")
    e("s_and_b32 s7, s3, 3")
    e("s_lshl_b32 s8, s6, 2"); e("s_add_u32 s8, s8, s7")
    e("s_lshl_b32 s9, s8, 8")
    e("v_lshl_add_u32 v2, v1, 2, s9")
    e("s_lshr_b32 s10, s8, 1"); e("s_lshl_b32 s10, s10, 2")
    e("s_lshl_b32 s11, s6, 3")
    e(f"s_mul_i32 s12, s7, {CR_SZ}")
    e("v_lshl_add_u32 v3, v1, 3, s12")
    e(f"s_mov_b32 s70, {f32(L_HI)}")
    e("s_lshl_b32 s64, s5, 17"); e("s_lshl_b32 s65, s3, 14"); e("s_add_u32 s64, s64, s65"); e("s_add_u32 s64, s64, s11")
    e("v_and_b32 v9, 15, v1"); e("v_lshl_add_u32 v9, v9, 10, s64")
    e("s_waitcnt lgkmcnt(0)")
    stamp(0, 0, P_WS)
    e(f"s_load_dword s13, {sr(P_LDT,2)}, s10")
    e(f"s_load_dwordx2 s[14:15], {sr(P_DSK,2)}, s11")
    e(f"global_load_dword v4, v2, {sr(P_LAR,2)}")
    e(f"global_load_dword v5, v2, {sr(P_AIM,2)}")
    e(f"global_load_dword v6, v2, {sr(P_CR,2)}")
    e(f"global_load_dword v7, v2, {sr(P_CI,2)}")
    e(f"global_load_dword v11, v9, {sr(P_U,2)}")
    srd(SWS, P_WS, WS_USED)
    srd(SU, P_U, 2048*1024)
    e("v_subrev_u32 v8, 256, v0")
    e("v_lshl_add_u32 v9, v8, 13, s11")
    e("v_subrev_u32 v10, 0x400, v9")
    e("s_movk_i32 s64, 4096")
    e("v_and_b32 v20, 31, v1"); e("v_lshrrev_b32 v21, 5, v1")
    e(f"v_mul_u32_u24 v22, {PITCH}, v20")
    e("v_lshl_add_u32 v22, v21, 4, v22")
    e("v_add_u32 v22, s12, v22")
    e("v_mov_b32 v23, v20")
    for thr in (11, 12, 15, 19, 23):
        e(f"v_cmp_le_u32 vcc, {thr}, v20")
        e("s_nop 1")
        e("v_subbrev_co_u32 v23, vcc, 0, v23, vcc")
    e(f"v_mul_u32_u24 v23, {PITCH}, v23")
    e("v_lshl_add_u32 v23, v21, 4, v23")
    e(f"s_add_u32 s66, s12, {R_OFF}")
    e("v_add_u32 v23, s66, v23")
    e("s_waitcnt lgkmcnt(0)")
    e("s_bitcmp1_b32 s8, 0")
    e("s_cselect_b32 s65, 0, 16")
    e("s_lshl_b32 s13, s13, s65")
    e("s_and_b32 s13, s13, 0xffff0000")
    e("v_mov_b32 v12, s13")
    exp_acc(13, 12, 14, 15)
    e("v_cvt_pk_bf16_f32 v13, v13, v13")
    e("v_and_b32 v13, 0xffff0000, v13")
    e("s_waitcnt vmcnt(3)")
    stamp(6, 0, P_WS)
    e("v_lshlrev_b32 v16, 16, v4"); e("v_and_b32 v17, 0xffff0000, v4")
    exp_acc(18, 16, 14, 15); exp_acc(19, 17, 24, 25)
    e("v_cvt_pk_bf16_f32 v18, v18, v19")
    e("v_lshlrev_b32 v16, 16, v18"); e("v_and_b32 v17, 0xffff0000, v18")
    e("v_lshlrev_b32 v18, 16, v5"); e("v_and_b32 v19, 0xffff0000, v5")
    for r in range(16, 20): e(f"v_mul_f32 v{r}, v{r}, v13")
    e(f"v_mul_f32 v16, {f32(-LOG2E)}, v16"); e(f"v_mul_f32 v17, {f32(-LOG2E)}, v17")
    e("v_mul_f32 v18, 0.15915494, v18"); e("v_mul_f32 v19, 0.15915494, v19")
    e("s_cmp_lt_u32 s3, 4")
    e("s_cbranch_scc0 Lc_rwave")
    ROLE[0] = 1
    E = 24; X = 28; T = 32; PK = 40
    cexp(E, E+2, 16, 18, 8, T); cexp(E+1, E+3, 17, 19, 8, T+1)
    e(f"v_mov_b32 v{X}, 1.0"); e(f"v_mov_b32 v{X+1}, 1.0"); e(f"v_mov_b32 v{X+2}, 0"); e(f"v_mov_b32 v{X+3}, 0")
    e("s_mov_b32 s66, 0")
    lab("Lc_lgen")
    for k in range(4):
        pk = PK + 2*k
        e(f"v_cvt_pk_bf16_f32 v{pk}, v{X}, v{X+2}")
        e(f"v_cvt_pk_bf16_f32 v{pk+1}, v{X+1}, v{X+3}")
        cmulp(X, X, E, T)
        e(f"ds_write_b64 v3, {vr(pk,2)} offset:{k*PITCH}")
    e(f"v_add_u32 v3, {4*PITCH}, v3")
    e("s_add_u32 s66, s66, 1"); e("s_cmp_lt_u32 s66, 8"); e("s_cbranch_scc1 Lc_lgen")
    e("v_and_b32 v4, 1, v1"); e("v_xor_b32 v4, 1, v4"); e(f"v_mul_u32_u24 v4, {CS2}, v4")
    e("v_bfe_u32 v5, v1, 1, 1"); e("v_lshl_add_u32 v4, v5, 3, v4")
    e("v_bfe_u32 v5, v1, 2, 2"); e("v_lshrrev_b32 v6, 4, v1"); e("v_add_u32 v5, v5, v6")
    e("v_lshl_add_u32 v4, v5, 4, v4"); e("s_add_u32 s66, s12, 8"); e("v_add_u32 v4, s66, v4")
    e("v_and_b32 v5, 1, v1"); e(f"v_mul_u32_u24 v5, {US}, v5")
    e("v_bfe_u32 v7, v1, 1, 3"); e("v_lshlrev_b32 v8, 2, v7"); e("v_sub_u32 v8, v8, v6")
    e("v_lshl_add_u32 v5, v8, 4, v5")
    e(f"s_mul_i32 s66, s7, {2*US}"); e(f"s_add_u32 s66, s66, {UB+448+48}")
    e("v_add_u32 v5, s66, v5")
    e("v_mul_u32_u24 v8, 272, v6"); e("v_and_b32 v9, 15, v1"); e("v_lshl_add_u32 v8, v9, 4, v8"); e("v_add_u32 v8, s12, v8")
    e("v_lshl_add_u32 v10, v1, 4, s12")
    e("v_bfe_u32 v12, v1, 4, 1"); e(f"v_mul_u32_u24 v12, {CS2}, v12"); e("v_lshl_add_u32 v12, v9, 2, v12"); e("v_add_u32 v12, s12, v12")
    e("v_mov_b32 v13, 0")
    e("v_and_b32 v14, 1, v1"); e("v_cmp_eq_u32 vcc, 0, v14")
    e("s_waitcnt lgkmcnt(0)")
    stamp(7, 0, P_WS)
    e("s_barrier")
    stamp(1, 0, P_WS)
    FR = 64; KA = 192
    def krd(ks):
        e(f"ds_read_b128 {vr(FR+8*ks,4)}, v23 offset:{32*ks}")
        e(f"ds_read_b128 {vr(FR+8*ks+4,4)}, v22 offset:{32*ks}")
    for ks in range(6): krd(ks)
    ACC = 24
    for ks in range(16):
        if ks + 6 < 16: krd(ks+6)
        e(f"s_waitcnt lgkmcnt({2*min(6, 15-ks)})")
        e(f"v_mfma_f32_32x32x16_bf16 {vr(KA,16)}, {vr(FR+8*ks,4)}, {vr(FR+8*ks+4,4)}, {'0' if ks == 0 else vr(KA,16)}")
        for r in range(2): e(f"v_mov_b32 v{ACC+2*ks+r}, 0")
    stamp(5, 0, P_WS)
    e("ds_write_b32 v12, v13")
    e("s_nop 7"); e("s_nop 1")
    D = 64; S = 80; k = KA
    e(f"v_cndmask_b32 v14, v{k+13}, v{k+12}, vcc")
    e(f"v_cndmask_b32 v15, v{k+15}, v{k+14}, vcc")
    pk = [(k,k+1),(k+2,k+3),(k+4,k+4),(k+5,k+6),
          (k+8,k+8),(k+8,k+9),(k+9,k+9),(k+10,k+10),
          (k+12,k+12),(k+12,k+12),(14,k+13),(k+13,k+13),
          (k+14,k+14),(k+14,k+14),(15,k+15),(k+15,k+15)]
    for i, (a, b) in enumerate(pk):
        e(f"v_cvt_pk_bf16_f32 v{D+i}, v{a}, v{b}")
        if i == 7:
            e(f"v_permlane32_swap_b32 v{D}, v{D+2}"); e(f"v_permlane32_swap_b32 v{D+1}, v{D+3}")
            e(f"ds_write_b128 v10, {vr(D+4,4)} offset:{64+1024}")
            e(f"ds_write_b128 v10, {vr(D,4)} offset:64")
        if i == 11: e(f"ds_write_b128 v10, {vr(D+8,4)} offset:{64+2048}")
    e(f"ds_write_b128 v10, {vr(D+12,4)} offset:{64+3072}")
    e(f"v_mov_b32 v{S}, 0")
    for q in range(1, 4): e(f"v_mov_b32_dpp v{S+4*q}, v{D+4*q-1} wave_ror:1 row_mask:0xf bank_mask:0xf")
    for q in range(4):
        for j in range(3): e(f"v_mov_b32 v{S+4*q+1+j}, v{D+4*q+j}")
        e(f"v_mov_b32_dpp v{S+4*q}, v{D+4*q+3} wave_shr:1 row_mask:0xf bank_mask:0xf")
        e(f"ds_write_b128 v10, {vr(S+4*q,4)} offset:{CS2+64+1024*q}")
    FS = [64, 128]
    e("s_waitcnt lgkmcnt(0)")
    stamp(4, 0, P_WS)
    e("s_barrier")
    stamp(2, 0, P_WS)
    def crl(fs):
        L = []
        for i in range(8):
            L.append(f"ds_read_b128 {vr(fs+32+4*i,4)}, v5 offset:{512*i}")
            L.append(f"ds_read_b64 {vr(fs+4*i,2)}, v4 offset:{512*i}")
            L.append(f"ds_read_b64 {vr(fs+4*i+2,2)}, v4 offset:{512*i+8}")
        return L
    for r in crl(FS[0]): e(r)
    e("v_add_u32 v4, 64, v4"); e("v_subrev_u32 v5, 64, v5")
    e("s_mov_b32 s66, 0")
    lab("Lc_loop")
    for half in range(2):
        cur, nxt = FS[half], FS[1-half]
        e("s_waitcnt lgkmcnt(0)")
        rl = crl(nxt)
        n = 0
        for i in range(8):
            for j in range(8 - i):
                acc = vr(ACC+4*(i+j), 4)
                e(f"v_mfma_f32_16x16x32_bf16 {acc}, {vr(cur+4*i,4)}, {vr(cur+32+4*j,4)}, {acc}")
                if n < 24: e(rl[n])
                if n == 24: e("v_add_u32 v4, 64, v4")
                if n == 25: e("v_subrev_u32 v5, 64, v5")
                if n == 26 and half == 1: e("s_add_u32 s66, s66, 1")
                if n == 27 and half == 1: e("s_cmp_lt_u32 s66, 4")
                n += 1
    e("s_cbranch_scc1 Lc_loop")
    e("s_waitcnt lgkmcnt(0)")
    stamp(3, 0, P_WS)
    for t in range(8):
        if t == 6: e("s_nop 1")
        e(f"ds_write_b128 v8, {vr(ACC+4*t,4)} offset:{1088*t}")
    e("s_waitcnt lgkmcnt(0)")
    e("s_barrier")
    e("s_endpgm")
    lab("Lc_rwave")
    ROLE[0] = 2
    E1 = 24; E256 = 28; T = 32; PK = 40
    R = {0: 48, 2: 52, 4: 56, 6: 60, 8: 64}; TMP = 68
    def uload(r):
        e(f"buffer_load_dwordx2 {vr(UR+2+2*r,2)}, v9, {sr(SU,4)}, {'0' if r < 4 else 's64'} offen offset:{1024*(r&3)}")
    e("s_waitcnt vmcnt(1)" if not STAMP else "s_waitcnt vmcnt(2)")
    e("v_add_f32 v13, v13, v13")
    e(f"v_lshlrev_b32 v{R[0]}, 16, v6"); e(f"v_and_b32 v{R[0]+1}, 0xffff0000, v6")
    e(f"v_lshlrev_b32 v{R[0]+2}, 16, v7"); e(f"v_and_b32 v{R[0]+3}, 0xffff0000, v7")
    e("s_mov_b64 exec, 1")
    e(f"buffer_load_dwordx2 {vr(UR,2)}, v10, {sr(SU,4)}, 0 offen")
    e("s_mov_b64 exec, -1")
    uload(0)
    cexp(E1, E1+2, 16, 18, 1, T); cexp(E1+1, E1+3, 17, 19, 1, T+1)
    cexp(E256, E256+2, 16, 18, 256, T); cexp(E256+1, E256+3, 17, 19, 256, T+1)
    for r in range(4): e(f"v_mul_f32 v{R[0]+r}, v{R[0]+r}, v13")
    cnt = [0]
    def putr(x, srow):
        pk = PK + 2*(cnt[0] % 4); cnt[0] += 1
        e(f"v_cvt_pk_bf16_f32 v{pk}, v{x}, -v{x+2}")
        e(f"v_cvt_pk_bf16_f32 v{pk+1}, v{x+1}, -v{x+3}")
        e(f"ds_write_b64 v3, {vr(pk,2)} offset:{R_OFF+srow*PITCH}")
        if cnt[0] in (3, 11, 19, 27): uload(1 + (cnt[0]-3)//8)
    putr(R[0], 0)
    cur = R[0]
    for p in range(1, 9):
        nx = R[p] if p in R else TMP
        cmulp(nx, cur, E1, T)
        if p < 8: putr(nx, p)
        cur = nx
    for xs, sr0 in (([0,2,4,6,8], 8), ([0,4,8], 13), ([0,4,8], 16), ([0,8], 19), ([0,8], 23), ([0,8], 21), ([0,8], 25)):
        for i, x in enumerate(xs):
            cmulp(R[x], R[x], E256, T)
            putr(R[x], sr0 + i)
    e("s_waitcnt lgkmcnt(0)")
    stamp(7, 0, P_WS)
    e("s_barrier")
    for r in range(5, 8): uload(r)
    stamp(1, 0, P_WS)
    e("s_mov_b32 s66, 0x05040100"); e("s_mov_b32 s67, 0x07060302")
    e("v_lshrrev_b32 v4, 5, v8"); e(f"v_mul_u32_u24 v4, {US}, v4")
    e("v_and_b32 v5, 31, v8"); e("v_min_u32 v5, 27, v5"); e("v_lshl_add_u32 v4, v5, 4, v4")
    for r in range(4): e(f"v_mov_b32 v{24+r}, 0")
    e(f"v_add_u32 v4, {UB}, v4")
    e(f"ds_write_b128 v4, {vr(24,4)}")
    e("v_lshlrev_b32 v4, 4, v8"); e(f"v_add_u32 v4, {UB+448}, v4")
    e("s_waitcnt vmcnt(0)")
    stamp(3, 0, P_WS)
    for hh in range(2): e(f"v_mov_b32_dpp v{UR+hh}, v{UR+16+hh} wave_shr:1 row_mask:0xf bank_mask:0xf")
    def row(r, c): return UR + 2 + 2*r + (c >> 1)
    k = 0
    for c in range(4):
        sel = "s67" if c & 1 else "s66"
        for b0 in (1, 0):
            d = 28 + 4*(k % 4); k += 1
            top = 7 if b0 else 6
            for i in range(4):
                e(f"v_perm_b32 v{d+i}, v{row(top-2*i-1,c)}, v{row(top-2*i,c)}, {sel}")
            e(f"ds_write_b128 v4, {vr(d,4)} offset:{(2*c+b0)*US}")
    e("s_waitcnt lgkmcnt(0)")
    e("s_barrier")
    stamp(2, 0, P_WS)
    e("s_cmp_ge_u32 s3, 6")
    e("s_cbranch_scc1 Lc_gate")
    if not OPT("nopf"):
        srd(SW2, P_W2, 1792*1024)
        e("s_lshl_b32 s68, s5, 1"); e("s_add_u32 s68, s68, s3"); e("s_sub_u32 s68, s68, 4")
        e(f"s_mul_i32 s68, s68, {448*128}")
        e("v_lshlrev_b32 v4, 7, v1")
        for t in range(7):
            e(f"buffer_load_dword v{64+t}, v4, {sr(SW2,4)}, s68 offen")
            if t < 6: e("s_add_u32 s68, s68, 8192")
    e("s_branch Lc_fin")
    lab("Lc_gate")
    e("s_lshl_b32 s68, s6, 4"); e("s_sub_u32 s69, s3, 6"); e("s_lshl_b32 s69, s69, 3"); e("s_add_u32 s68, s68, s69")
    e("s_lshl_b32 s69, s68, 10"); e("s_add_u32 s71, s69, 4096")
    e("v_lshlrev_b32 v4, 4, v1")
    e(f"global_load_dwordx4 {vr(60,4)}, v4, {sr(P_GW,2)}")
    for r in range(8):
        e(f"buffer_load_dwordx4 {vr(64+4*r,4)}, v4, {sr(SU,4)}, {'s69' if r < 4 else 's71'} offen offset:{1024*(r&3)}")
    e("s_waitcnt vmcnt(8)")
    for i in range(4):
        e(f"v_lshlrev_b32 v{100+2*i}, 16, v{60+i}"); e(f"v_and_b32 v{100+2*i+1}, 0xffff0000, v{60+i}")
    for r in range(8):
        e(f"s_waitcnt vmcnt({7-r})")
        for i in range(4):
            e(f"v_lshlrev_b32 v{110+2*i}, 16, v{64+4*r+i}"); e(f"v_and_b32 v{110+2*i+1}, 0xffff0000, v{64+4*r+i}")
        for i in range(8): e(f"v_mul_f32 v{110+i}, v{110+i}, v{100+i}")
        for i in range(4): e(f"v_cvt_pk_bf16_f32 v{120+i}, v{110+2*i}, v{110+2*i+1}")
        for i in range(4):
            e(f"v_lshlrev_b32 v{110+2*i}, 16, v{120+i}"); e(f"v_and_b32 v{110+2*i+1}, 0xffff0000, v{120+i}")
        for i in range(4): e(f"v_add_f32 v{110+i}, v{110+i}, v{114+i}")
        e("v_add_f32 v110, v110, v112"); e("v_add_f32 v111, v111, v113")
        e(f"v_add_f32 v{24+r}, v110, v111")
    for dpp in ("quad_perm:[1,0,3,2] row_mask:0xf", "quad_perm:[2,3,0,1] row_mask:0xf", "row_half_mirror row_mask:0xf",
                "row_mirror row_mask:0xf", "row_bcast:15 row_mask:0xa", "row_bcast:31 row_mask:0xc"):
        e("s_nop 1")
        for r in range(8): e(f"v_add_f32_dpp v{24+r}, v{24+r}, v{24+r} {dpp} bank_mask:0xf")
    e("s_nop 1")
    for r in range(8): e(f"v_readlane_b32 s{72+r}, v{24+r}, 63")
    e("s_nop 3")
    for r in range(8): e(f"v_writelane_b32 v32, s{72+r}, {r}")
    e("s_nop 1")
    e("v_cvt_pk_bf16_f32 v32, v32, v32"); e("v_and_b32 v32, 0xffff0000, v32")
    e(f"v_mul_f32 v32, {f32(-LOG2E)}, v32")
    e("v_exp_f32 v32, v32"); e("s_nop 0"); e("v_add_f32 v32, 1.0, v32"); e("v_rcp_f32 v32, v32"); e("s_nop 0")
    e("v_cvt_pk_bf16_f32 v32, v32, v32"); e("v_and_b32 v32, 0xffff0000, v32")
    e("v_sub_f32 v33, 1.0, v32")
    e("v_cvt_pk_bf16_f32 v33, v33, v33"); e("v_and_b32 v33, 0xffff0000, v33")
    e("v_lshlrev_b32 v4, 3, v1")
    e("s_lshl_b32 s68, s68, 3"); e(f"s_add_u32 s68, s68, {G_OFF}")
    e("s_mov_b64 exec, 0xff")
    e(f"buffer_store_dwordx2 v[32:33], v4, {sr(SWS,4)}, s68 offen{SC1A}")
    e("s_mov_b64 exec, -1")
    lab("Lc_fin")
    e("s_lshl_b32 s72, s14, 16"); e("s_and_b32 s73, s14, 0xffff0000")
    e("s_lshl_b32 s74, s15, 16"); e("s_and_b32 s75, s15, 0xffff0000")
    UF = 128
    for r in range(8):
        for hh in range(2):
            e(f"v_lshlrev_b32 v{UF+4*r+2*hh}, 16, v{UR+2+2*r+hh}")
            e(f"v_and_b32 v{UF+4*r+2*hh+1}, 0xffff0000, v{UR+2+2*r+hh}")
    e("v_lshrrev_b32 v4, 5, v8"); e("v_mul_u32_u24 v4, 1088, v4")
    e("v_and_b32 v5, 3, v8"); e("v_mul_u32_u24 v5, 272, v5")
    e("v_bfe_u32 v6, v8, 2, 3"); e("v_lshl_add_u32 v4, v6, 5, v4"); e("v_add_u32 v4, v4, v5")
    e(f"v_add_u32 v5, {2*CR_SZ}, v4")
    e("v_lshlrev_b32 v6, 6, v8")
    e("s_lshl_b32 s68, s6, 14"); e(f"s_add_u32 s68, s68, {A4_OFF}")
    e("s_waitcnt vmcnt(0)")
    e("s_barrier")
    stamp(4, 0, P_WS)
    Y = 160
    for c in range(4):
        for b0 in range(2):
            e(f"ds_read_b128 {vr(Y+8*c+4*b0,4)}, v{4 if c < 2 else 5} offset:{(c&1)*CR_SZ+16*b0}")
    for c in range(4):
        e(f"s_waitcnt lgkmcnt({6-2*c})")
        for l in range(8):
            e(f"v_fma_f32 v{UF+4*l+c}, v{UF+4*l+c}, s{72+c}, v{Y+8*c+4*(l&1)+(l>>1)}")
    O = 192
    for l in range(8):
        for hh in range(2): e(f"v_cvt_pk_bf16_f32 v{O+2*l+hh}, v{UF+4*l+2*hh}, v{UF+4*l+2*hh+1}")
    for i in range(4): e(f"buffer_store_dwordx4 {vr(O+4*i,4)}, v6, {sr(SWS,4)}, s68 offen offset:{16*i}{SC1A}")
    if STAMP:
        e("s_waitcnt vmcnt(0)")
        stamp(5, 0, P_WS)
    e("s_endpgm")

def gemm2():
    ROLE[0] = 0
    SWS, SO, SB2, SW2 = 48, 52, 56, 76
    DEPTH = 13
    ACC = 0; RING = 48; WFR = 208
    XB = DEPTH*8192
    cm("mt = 4*s4 + (s5&3), nt = s5>>2")
    e("s_and_b32 s6, s5, 3"); e("s_lshl_b32 s7, s4, 2"); e("s_add_u32 s6, s6, s7")
    e("s_lshr_b32 s7, s5, 2")
    e(f"s_mul_i32 s8, s3, {28*1024}")
    e(f"s_mul_i32 s9, s6, {2*112*1024}"); e("s_add_u32 s9, s9, s8")
    e("v_lshlrev_b32 v2, 4, v1")
    e("s_lshr_b32 s11, s3, 1"); e("s_and_b32 s12, s3, 1")
    e(f"s_mul_i32 s13, s12, {112*1024}"); e(f"s_sub_u32 s14, {112*1024}, s13")
    e("s_add_u32 s13, s13, s9"); e("s_add_u32 s14, s14, s9")
    e("v_add_u32 v3, s13, v2"); e("v_add_u32 v4, s14, v2")
    e(f"s_mul_i32 s10, s3, {448*1024}"); e("s_lshl_b32 s13, s7, 7"); e("s_add_u32 s10, s10, s13")
    e("v_lshrrev_b32 v5, 3, v1"); e("v_lshlrev_b32 v5, 10, v5")
    e("v_bfe_u32 v6, v1, 4, 1"); e("v_lshlrev_b32 v6, 2, v6"); e("v_and_b32 v7, 7, v1"); e("v_xor_b32 v6, v6, v7")
    e("v_lshl_add_u32 v5, v6, 4, v5"); e("v_add_u32 v5, s10, v5"); e("v_add_u32 v6, 0x2000, v5")
    e(f"s_mul_i32 s74, s3, {DEPTH*2048}")
    e("s_and_b32 s13, s5, 3"); e("s_lshl_b32 s13, s13, 1"); e("s_add_u32 s13, s13, s7")
    e("s_cmp_ge_u32 s13, 7"); e("s_cselect_b32 s14, 7, 0"); e("s_sub_u32 s13, s13, s14")
    e("s_lshl_b32 s60, s13, 12")
    for i in range(1, 7):
        e(f"s_add_u32 s{60+i}, s{59+i}, 4096"); e(f"s_cmp_eq_u32 s{60+i}, {7*4096}"); e(f"s_cselect_b32 s{60+i}, 0, s{60+i}")
    e("s_waitcnt lgkmcnt(0)")
    stamp(0, 1, P_WS, 36)
    srd(SWS, P_WS, WS_USED)
    srd(SW2, P_W2, 1792*1024)
    def loads(s):
        fs = RING + 8*(s % DEPTH)
        so = f"s{60 + s//4}"
        e(f"s_add_u32 m0, s74, {2048*(s % DEPTH)}")
        if s & 3 == 0: e(f"s_lshl_b32 s75, {so}, 4")
        else: e("s_add_u32 s75, s75, 16384")
        e(f"buffer_load_dwordx4 v5, {sr(SW2,4)}, s75 offen lds")
        e("s_add_u32 m0, m0, 1024")
        e(f"buffer_load_dwordx4 {vr(fs,4)}, v3, {sr(SWS,4)}, {so} offen offset:{1024*(s&3)}")
        e(f"buffer_load_dwordx4 v6, {sr(SW2,4)}, s75 offen lds")
        e(f"buffer_load_dwordx4 {vr(fs+4,4)}, v4, {sr(SWS,4)}, {so} offen offset:{1024*(s&3)}")
    for s in range(DEPTH): loads(s)
    e("v_bfe_u32 v44, v1, 2, 2"); e("v_lshrrev_b32 v45, 5, v1"); e("v_lshl_add_u32 v44, v45, 2, v44"); e("v_lshlrev_b32 v44, 7, v44")
    e("v_bfe_u32 v45, v1, 3, 1"); e("v_xor_b32 v45, s11, v45"); e("v_lshl_add_u32 v44, v45, 6, v44")
    e("v_bfe_u32 v45, v1, 4, 1"); e("v_lshl_add_u32 v44, v45, 5, v44")
    e("v_and_b32 v45, 3, v1"); e("v_lshl_add_u32 v44, v45, 3, v44")
    e("v_add_u32 v44, s74, v44"); e("v_xor_b32 v45, 64, v44")
    srd(SO, P_OUT, 2048*1024)
    srd(SB2, P_B2, 1024)
    e("s_lshl_b32 s13, s6, 1"); e("s_add_u32 s13, s13, s12"); e("s_lshl_b32 s13, s13, 5")
    e("s_lshl_b32 s14, s7, 1"); e("s_add_u32 s14, s14, s11"); e("s_lshl_b32 s14, s14, 5")
    e("v_and_b32 v7, 31, v1"); e("v_lshrrev_b32 v8, 5, v1")
    e("v_add_u32 v7, s13, v7")
    e("v_lshlrev_b32 v9, 3, v7")
    e("v_lshl_add_u32 v10, v8, 14, v9")
    e("s_lshl_b32 s15, s14, 12"); e(f"s_add_u32 s15, s15, {A4_OFF}")
    e("s_add_u32 s68, s15, 32768"); e("s_add_u32 s69, s68, 32768"); e("s_add_u32 s70, s69, 32768")
    e(f"s_mov_b32 s71, {G_OFF}")
    e("s_lshl_b32 s72, s14, 1")
    e("v_lshl_add_u32 v11, v8, 3, s72")
    EP = 16
    for j, so in enumerate(("s15", "s68", "s69", "s70")):
        e(f"buffer_load_dwordx2 {vr(EP+2*j,2)}, v10, {sr(SWS,4)}, {so} offen")
    for j in range(4): e(f"buffer_load_dwordx2 {vr(EP+8+2*j,2)}, v11, {sr(SB2,4)}, 0 offen offset:{16*j}")
    e(f"buffer_load_dwordx2 {vr(EP+16,2)}, v9, {sr(SWS,4)}, s71 offen")
    e("v_lshlrev_b32 v12, 10, v7"); e("v_lshl_add_u32 v12, v8, 4, v12"); e("v_add_u32 v12, s72, v12")
    for t in range(1, 4):
        e(f"s_xor_b32 s73, s3, {t}"); e("s_mul_i32 s73, s73, 12288"); e(f"s_add_u32 s73, s73, {XB}"); e(f"v_add_u32 v{39+t}, s73, v2")
    e("s_mul_i32 s73, s3, 12288"); e(f"s_add_u32 s73, s73, {XB}"); e("v_add_u32 v14, s73, v2")
    NE = 9
    def wrd(s):
        wf = WFR + 8*(s & 1)
        for b in range(2):
            for u in range(2):
                e(f"ds_read_b64_tr_b16 {vr(wf+4*b+2*u,2)}, v{44+b} offset:{2048*(s % DEPTH)+1024*u}")
    def vw(s, issued):
        e(f"s_waitcnt vmcnt({4*(issued-s-1) + (NE if s < DEPTH else 0)})")
    vw(0, DEPTH); wrd(0)
    issued = DEPTH
    for s in range(28):
        if s + 1 < 28:
            vw(s+1, issued); wrd(s+1)
            e("s_waitcnt lgkmcnt(4)")
        else: e("s_waitcnt lgkmcnt(0)")
        fs = RING + 8*(s % DEPTH); wf = WFR + 8*(s & 1)
        for b in range(2):
            for a in range(2):
                acc = ar(ACC+32*b+16*a, 16)
                e(f"v_mfma_f32_32x32x16_bf16 {acc}, {vr(wf+4*b,4)}, {vr(fs+4*a,4)}, {'0' if s == 0 else acc}")
        if s + DEPTH < 28: loads(s + DEPTH); issued += 1
    stamp(1, 1, P_WS, 36)
    AF = 160; BF = 176
    for i in range(8):
        e(f"v_lshlrev_b32 v{AF+2*i}, 16, v{EP+i}"); e(f"v_and_b32 v{AF+2*i+1}, 0xffff0000, v{EP+i}")
    for t in range(1, 4):
        for r in range(4):
            e(f"ds_write_b128 v{39+t}, {ar(ACC+16*t+4*r,4)} offset:{(t-1)*4096+r*1024}")
    for i in range(8):
        e(f"v_lshlrev_b32 v{BF+2*i}, 16, v{EP+8+i}"); e(f"v_and_b32 v{BF+2*i+1}, 0xffff0000, v{EP+8+i}")
    for i in range(16): e(f"v_mul_f32 v{AF+i}, v{AF+i}, v{EP+16}")
    for i in range(16): e(f"v_accvgpr_read_b32 v{RING+48+i}, a{i}")
    for i in range(16): e(f"v_add_f32 v{BF+i}, v{BF+i}, v{RING+48+i}")
    e("s_waitcnt lgkmcnt(0)")
    e("s_barrier")
    for t in range(3):
        for r in range(4):
            e(f"ds_read_b128 {vr(RING+16*t+4*r,4)}, v14 offset:{t*4096+r*1024}")
    for t in range(3):
        e(f"s_waitcnt lgkmcnt({8-4*t})")
        for i in range(16): e(f"v_add_f32 v{BF+i}, v{BF+i}, v{RING+16*t+i}")
    for i in range(16): e(f"v_fmac_f32 v{AF+i}, v{BF+i}, v{EP+17}")
    O = 192
    for i in range(8): e(f"v_cvt_pk_bf16_f32 v{O+i}, v{AF+2*i}, v{AF+2*i+1}")
    e("s_nop 1")
    for jj in range(2):
        e(f"v_permlane32_swap_b32 v{O+4*jj}, v{O+4*jj+2}")
        e(f"v_permlane32_swap_b32 v{O+4*jj+1}, v{O+4*jj+3}")
    for jj in range(2):
        e(f"buffer_store_dwordx4 {vr(O+4*jj,4)}, v12, {sr(SO,4)}, 0 offen offset:{32*jj}")
    if STAMP:
        e("s_waitcnt vmcnt(0)")
        stamp(2, 1, P_WS, 36)
    e("s_endpgm")

def kd(name, vgpr, accum):
    out.append(f""".amdhsa_kernel {name}
  .amdhsa_next_free_vgpr {vgpr}
  .amdhsa_next_free_sgpr 102
  .amdhsa_accum_offset {accum}
  .amdhsa_group_segment_fixed_size 0
  .amdhsa_kernarg_size 128
  .amdhsa_user_sgpr_count 2
  .amdhsa_user_sgpr_kernarg_segment_ptr 1
  .amdhsa_system_sgpr_workgroup_id_x 1
.end_amdhsa_kernel""")

hdr = open(f"cdna_kernels/{NAME}.s.ref").read().splitlines()
for l in hdr:
    if l.startswith(";") and "@launch" not in l and "Override" not in l and "Harness parses" not in l: out.append(l)
K1 = "gmix_a_kernel"; K2 = "gmix_b_kernel"
out.append(f"; @launch kernel={K1} grid=(240,1,1) block=(512,1,1) lds={LDS1}")
out.append(f"; @launch kernel={K2} grid=(256,1,1) block=(256,1,1) lds={13*8192+49152}")
out.append('.amdgcn_target "amdgcn-amd-amdhsa--gfx950"')
out.append(".text")
for k in (K1, K2): out.append(f".globl {k}")
out.append(".p2align 8"); out.append(f".type {K1},@function"); lab(K1)
EXIT = "La_exit"
prologue(240)
e("s_cmp_ge_u32 s5, 14")
e("s_cbranch_scc1 La_conv")
gemm1()
lab("La_conv")
conv()
lab(EXIT); e("s_endpgm")
out.append(".p2align 8"); out.append(f".type {K2},@function"); lab(K2)
EXIT = "Lb_exit"
prologue(256)
gemm2()
lab(EXIT); e("s_endpgm")
out.append('.section .rodata,"a"'); out.append(".p2align 6")
kd(K1, 256, 256)
out.append(".p2align 6")
kd(K2, 320, 256)
dst = [a for a in sys.argv[1:] if not a.startswith("--")]
open(dst[0] if dst else f"cdna_kernels/{NAME}.s", "w").write("\n".join(out) + "\n")
```

```python
import sys, struct
NAME = "gated_mix__ssm_conv_s4d__dense_activation_squared_relu__prompt"
STAMP = "--stamp" in sys.argv or "--dbg" in sys.argv

OPT = lambda k: ("--"+k) in sys.argv
SC1A = "" if OPT("nosc1") else " sc1"
SC1H = "" if OPT("nosc1") else " sc1"
NTW1 = " nt" if OPT("ntw1") else ""
DEP = int(([a[6:] for a in sys.argv if a.startswith("--dep=")] + ["5"])[0])
HF_OFF = 0
HF_SZ = 64*112*1024
WF_OFF = HF_SZ
WF_SZ = 16*112*1024
A4_OFF = WF_OFF + WF_SZ
A4_SZ = 128*2048*8
G_OFF = A4_OFF + A4_SZ
G_SZ = 2048*8
WS_USED = G_OFF + G_SZ
ST_OFF = 0x1000000

out = []
def e(s): out.append("    " + s)
def lab(s): out.append(s + ":")
def cm(s): out.append("    ; " + s)
def f32(x): return "0x%08x" % struct.unpack("<I", struct.pack("<f", x))[0]
def vr(a, n): return f"v[{a}:{a+n-1}]"
def ar(a, n): return f"a[{a}:{a+n-1}]"
def sr(a, n): return f"s[{a}:{a+n-1}]"
def srd(d, ptr, size, off=None):
    if off is None:
        e(f"s_mov_b32 s{d}, s{ptr}"); e(f"s_mov_b32 s{d+1}, s{ptr+1}")
    else:
        e(f"s_add_u32 s{d}, s{ptr}, {off}"); e(f"s_addc_u32 s{d+1}, s{ptr+1}, 0")
    e(f"s_mov_b32 s{d+2}, {size}"); e(f"s_mov_b32 s{d+3}, 0x20000")

DBG = "--dbg" in sys.argv
ROLE = [0]
def stamp(idx, kern, wsp, tmp=250):
    if DBG:
        slot = {(0,0):[0,1,2,3], (0,1):[0,4,5,6], (0,2):[0,7,8,9,10,11], (1,0):[12,13,14]}[(kern,ROLE[0])][idx]
        e("s_memrealtime s[96:97]")
        e(f"s_sub_u32 s98, s44, {512*kern}"); e("s_subb_u32 s99, s45, 0")
        e("s_waitcnt lgkmcnt(0)")
        if slot == 0 or slot == 12: e("s_not_b32 s96, s96")
        e(f"v_mov_b32 v{tmp}, s96"); e(f"v_mov_b32 v{tmp+2}, {4*slot}")
        e("s_mov_b64 exec, 1")
        e(f"global_atomic_umax v{tmp+2}, v{tmp}, s[98:99]")
        e("s_mov_b64 exec, -1")
        return
    if not STAMP: return
    e("s_memrealtime s[96:97]")
    e("s_memtime s[100:101]")
    e("s_lshl_b32 s98, s2, 3"); e("s_add_u32 s98, s98, s3"); e("s_lshl_b32 s98, s98, 6")
    e(f"s_add_u32 s98, s98, {ST_OFF + kern*0x40000 + idx*8}")
    e("s_waitcnt lgkmcnt(0)")
    e(f"v_mov_b32 v{tmp}, s96"); e(f"v_mov_b32 v{tmp+1}, s100"); e(f"v_mov_b32 v{tmp+2}, s98")
    e(f"global_store_dwordx2 v{tmp+2}, v[{tmp}:{tmp+1}], s[{wsp}:{wsp+1}]")

P_U, P_LAR, P_AIM, P_CR, P_CI, P_LDT, P_DSK = 16, 18, 20, 22, 24, 26, 28
P_W1, P_B1, P_W2, P_B2, P_GW, P_OUT, P_DBG, P_WS = 32, 34, 36, 38, 40, 42, 44, 46
LOG2E = 1.4426950408889634
L_HI = struct.unpack("<f", struct.pack("<f", LOG2E))[0]
L_LO = LOG2E - L_HI
LN2 = 0.6931471805599453

def prologue(nwg):
    e(f"s_cmp_ge_u32 s2, {nwg}")
    e("s_cbranch_scc1 " + EXIT)
    e("s_load_dwordx16 s[16:31], s[0:1], 0")
    e("s_load_dwordx16 s[32:47], s[0:1], 64")
    e("v_lshrrev_b32 v2, 6, v0")
    e("v_and_b32 v1, 63, v0")
    e("v_readfirstlane_b32 s3, v2")
    e("s_and_b32 s4, s2, 7")
    e("s_lshr_b32 s5, s2, 3")

def gemm1():
    SX, SW, SH, SB = 48, 52, 56, 60
    XS = [0, 32768, 65536]; WB = 98304; WS_ = 16384
    cm("---- GEMM1: mt = s4, ft = s5; waves 0-3 compute, 4-7 load")
    e("s_lshl_b32 s8, s5, 8")
    e("s_cmp_lt_u32 s3, 4")
    e("s_cbranch_scc1 Lg_comp")
    vX0, vX1, vW = 2, 3, 4
    e("s_sub_u32 s11, s3, 4")
    e("s_lshl_b32 s6, s4, 18")
    e("s_lshl_b32 s7, s11, 16")
    e("v_lshrrev_b32 v5, 3, v1")
    e("v_lshrrev_b32 v6, 4, v1")
    e("v_and_b32 v7, 7, v1")
    e("v_xor_b32 v7, v7, v6")
    e("v_lshlrev_b32 v7, 4, v7")
    e(f"v_lshl_add_u32 v{vX0}, v5, 10, v7")
    e(f"v_add_u32 v{vX0}, s7, v{vX0}")
    e(f"v_xor_b32 v{vX1}, 64, v{vX0}")
    e(f"v_add_u32 v{vX1}, 0x2000, v{vX1}")
    e("s_mul_i32 s7, s11, %d" % (16*3584))
    e("s_add_u32 s7, s7, s8")
    e("v_and_b32 v7, 15, v1")
    e("v_lshlrev_b32 v5, 2, v6")
    e("v_xor_b32 v7, v7, v5")
    e("v_lshlrev_b32 v7, 4, v7")
    e("v_mul_u32_u24 v5, 3584, v6")
    e(f"v_add3_u32 v{vW}, v5, v7, s7")
    e("s_lshl_b32 s9, s11, 13")
    e("s_lshl_b32 s10, s11, 12")
    e(f"s_add_u32 s10, s10, {WB}")
    e("s_add_u32 s12, s4, s5")
    e("s_mov_b32 s13, 0")
    e("s_mov_b32 s66, 0")
    e("s_waitcnt lgkmcnt(0)")
    stamp(0, 0, P_WS)
    srd(SX, P_U, 262144, "s6")
    srd(SW, P_W1, 512*3584)
    lab("Lg_issue")
    e("s_and_b32 s12, s12, 7")
    e("s_lshl_b32 s14, s12, 7")
    e(f"s_mul_i32 s64, s12, {64*3584}")
    e("s_lshl_b32 s15, s13, 14")
    e("s_add_u32 m0, s10, s15")
    e("s_lshl_b32 s15, s13, 15")
    for i in range(4):
        e(f"buffer_load_dwordx4 v{vW}, {sr(SW,4)}, s64 offen{NTW1} lds")
        if i < 3:
            e("s_add_u32 m0, m0, 1024"); e(f"s_add_u32 s64, s64, {4*3584}")
    e("s_add_u32 m0, s9, s15")
    e("s_add_u32 s12, s12, 1")
    for i in range(8):
        e(f"buffer_load_dwordx4 v{vX1 if i & 1 else vX0}, {sr(SX,4)}, s14 offen lds")
        if i < 7:
            e("s_add_u32 m0, m0, 1024")
            e("s_add_u32 s14, s14, 16384" if i & 1 else "s_nop 0")
    e("s_add_u32 s13, s13, 1"); e("s_cmp_eq_u32 s13, 3"); e("s_cselect_b32 s13, 0, s13")
    e("s_add_u32 s66, s66, 1")
    e("s_cmp_eq_u32 s66, 1")
    e("s_cbranch_scc1 Lg_issue")
    e("s_waitcnt vmcnt(12)")
    e("s_barrier")
    e("s_cmp_lt_u32 s66, 8")
    e("s_cbranch_scc1 Lg_issue")
    e("s_waitcnt vmcnt(0)")
    e("s_barrier")
    e("s_endpgm")
    lab("Lg_comp")
    vXa, vXb, vWa, vH = 8, 12, 16, 18
    F = [32, 56]
    ACC = 128
    e("s_and_b32 s11, s3, 1")
    e("s_lshr_b32 s12, s3, 1")
    e("s_lshl_b32 s13, s12, 7")
    e("s_add_u32 s13, s13, s8")
    e("v_lshrrev_b32 v5, 5, v1")
    e("v_lshl_add_u32 v7, v5, 3, s13")
    e("s_waitcnt lgkmcnt(0)")
    stamp(0, 0, P_WS, 24)
    srd(SB, P_B1, 3584)
    srd(SH, P_WS, HF_SZ)
    for b in range(2):
        for j in range(4):
            e(f"buffer_load_dwordx2 {vr(80+8*b+2*j,2)}, v7, {sr(SB,4)}, 0 offen offset:{64*b+16*j}")
    e("v_and_b32 v6, 31, v1")
    e("v_bfe_u32 v7, v1, 1, 3")
    e("v_xor_b32 v7, v7, v5")
    e("v_lshlrev_b32 v7, 4, v7")
    e("v_lshl_add_u32 v7, v6, 7, v7")
    e("s_lshl_b32 s13, s11, 14")
    e(f"v_add_u32 v{vXa}, s13, v7")
    for ks in range(1, 4): e(f"v_xor_b32 v{vXa+ks}, {32*ks}, v{vXa}")
    for ks in range(4): e(f"v_add_u32 v{vXb+ks}, 0x10000, v{vXa+ks}")
    e("v_bfe_u32 v6, v1, 2, 2")
    e("v_lshl_add_u32 v7, v5, 3, v6")
    e("v_lshlrev_b32 v7, 8, v7")
    e("v_bfe_u32 v19, v1, 4, 1")
    e("v_bfe_u32 v20, v1, 1, 1")
    e("v_lshl_add_u32 v19, v19, 1, v20")
    e("s_lshl_b32 s13, s12, 3")
    e("v_add_u32 v19, s13, v19")
    e("v_lshlrev_b32 v6, 2, v6")
    e("v_xor_b32 v19, v19, v6")
    e("v_lshl_add_u32 v7, v19, 4, v7")
    e("v_and_b32 v20, 1, v1")
    e("v_lshl_add_u32 v7, v20, 3, v7")
    e(f"v_add_u32 v{vWa}, {WB}, v7")
    e(f"v_xor_b32 v{vWa+1}, 64, v{vWa}")
    e("s_lshl_b32 s13, s4, 3"); e("s_lshl_b32 s14, s11, 2"); e("s_add_u32 s13, s13, s14")
    e("s_mul_i32 s13, s13, 112")
    e("s_lshl_b32 s14, s5, 3"); e("s_add_u32 s13, s13, s14")
    e("s_lshl_b32 s14, s12, 2"); e("s_add_u32 s13, s13, s14")
    e("s_lshl_b32 s13, s13, 10")
    e(f"v_lshl_add_u32 v{vH}, v1, 4, s13")
    for a in range(1, 4): e(f"s_mov_b32 s{64+a}, {a*112*1024}")
    BI = 96
    e("s_waitcnt vmcnt(0)")
    for b in range(2):
        for j in range(8):
            src = 80 + 8*b + j
            e(f"v_lshlrev_b32 v{BI+16*b+2*j}, 16, v{src}")
            e(f"v_and_b32 v{BI+16*b+2*j+1}, 0xffff0000, v{src}")
    def rdlist(s, ks, fs):
        sl = s % 3
        xa = (vXb if sl == 2 else vXa) + ks
        xo = 0 if sl == 2 else XS[sl]
        L = []
        def w(b):
            for u in range(2):
                L.append(f"ds_read_b64_tr_b16 {vr(fs+16+4*b+2*u,2)}, v{vWa+b} offset:{sl*WS_+(16*ks+4*u)*256}")
        w(0)
        for a in range(4): L.append(f"ds_read_b128 {vr(fs+4*a,4)}, v{xa} offset:{xo+4096*a}")
        w(1)
        return L
    def mfmas(fs, rl, first=False):
        n = 0
        for b in range(2):
            for a in range(4):
                acc = vr(ACC+64*b+16*a, 16)
                e(f"v_mfma_f32_32x32x16_bf16 {acc}, {vr(fs+16+4*b,4)}, {vr(fs+4*a,4)}, {vr(BI+16*b,16) if first else acc}")
                for r in rl[2*n:2*n+2]: e(r)
                n += 1
    e("s_barrier")
    stamp(1, 0, P_WS, 24)
    for r in rdlist(0, 0, F[0]): e(r)
    for s in range(8):
        for ks in range(4):
            e("s_waitcnt lgkmcnt(0)")
            if ks < 3: rl = rdlist(s, ks+1, F[(ks+1) & 1])
            elif s < 7:
                e("s_barrier")
                rl = rdlist(s+1, 0, F[0])
            else: rl = []
            mfmas(F[ks & 1], rl, s == 0 and ks == 0)
    stamp(2, 0, P_WS, 24)
    e("s_nop 4")
    k = 0
    for b in range(2):
        for a in range(4):
            base = ACC+64*b+16*a
            for r in range(16): e(f"v_mul_f32 v{base+r}, v{base+r}, |v{base+r}|")
            dst = 32 + 8*(k % 8); k += 1
            for r in range(8): e(f"v_cvt_pk_bf16_f32 v{dst+r}, v{base+2*r}, v{base+2*r+1}")
            for r in range(8): e(f"v_pk_max_i16 v{dst+r}, v{dst+r}, 0")
            for s_ in range(2):
                e(f"buffer_store_dwordx4 {vr(dst+4*s_,4)}, v{vH}, {sr(SH,4)}, {'0' if a == 0 else 's%d' % (64+a)} offen offset:{2048*b+1024*s_}{SC1H}")
    if STAMP:
        e("s_waitcnt vmcnt(0)")
        stamp(3, 0, P_WS, 24)
    e("s_endpgm")

PITCH = 528
CR_SZ = 59*PITCH
R_OFF = 32*PITCH
UB = 4*CR_SZ
US = 4576
CS = 4160
LDS1 = UB + 8*US

def exp_acc(dst, x, t0, t1):
    e(f"v_mul_f32 v{t0}, s70, v{x}")
    e(f"v_fma_f32 v{t1}, v{x}, s70, -v{t0}")
    e(f"v_exp_f32 v{dst}, v{t0}")
    e(f"v_fmac_f32 v{t1}, {f32(L_LO)}, v{x}")
    e(f"v_mul_f32 v{t1}, {f32(LN2)}, v{t1}")
    e(f"v_fmac_f32 v{dst}, v{dst}, v{t1}")

def cexp(dr, di, zr2, zi2, p, t):
    if p == 1:
        e(f"v_exp_f32 v{t}, v{zr2}")
        e(f"v_fract_f32 v{di}, v{zi2}")
    else:
        e(f"v_mul_f32 v{t}, {f32(p)}, v{zr2}")
        e(f"v_mul_f32 v{di}, {f32(p)}, v{zi2}")
        e(f"v_exp_f32 v{t}, v{t}")
        e(f"v_fract_f32 v{di}, v{di}")
    e(f"v_cos_f32 v{dr}, v{di}")
    e(f"v_sin_f32 v{di}, v{di}")
    e(f"v_mul_f32 v{dr}, v{dr}, v{t}")
    e(f"v_mul_f32 v{di}, v{di}, v{t}")

def p2(r): return f"v[{r}:{r+1}]"
def cmulp(d, x, en, t):
    e(f"v_pk_mul_f32 {p2(t)}, {p2(x+2)}, {p2(en+2)}")
    e(f"v_pk_mul_f32 {p2(t+2)}, {p2(x+2)}, {p2(en)}")
    e(f"v_pk_fma_f32 {p2(d+2)}, {p2(x)}, {p2(en+2)}, {p2(t+2)}")
    e(f"v_pk_fma_f32 {p2(d)}, {p2(x)}, {p2(en)}, {p2(t)} neg_lo:[0,0,1] neg_hi:[0,0,1]")

CS2 = 4224
def conv():
    SU, SWS, SW2 = 48, 52, 56
    UR = 224
    cm("---- conv role: G = 16*s4 + s5 - 14")
    e("s_sub_u32 s5, s5, 14")
    e("s_lshl_b32 s6, s4, 4"); e("s_add_u32 s6, s6, s5")
    e("s_and_b32 s7, s3, 3")
    e("s_lshl_b32 s8, s6, 2"); e("s_add_u32 s8, s8, s7")
    e("s_lshl_b32 s9, s8, 8")
    e("v_lshl_add_u32 v2, v1, 2, s9")
    e("s_lshr_b32 s10, s8, 1"); e("s_lshl_b32 s10, s10, 2")
    e("s_lshl_b32 s11, s6, 3")
    e(f"s_mul_i32 s12, s7, {CR_SZ}")
    e("v_lshl_add_u32 v3, v1, 3, s12")
    e(f"s_mov_b32 s70, {f32(L_HI)}")
    e("s_lshl_b32 s64, s5, 17"); e("s_lshl_b32 s65, s3, 14"); e("s_add_u32 s64, s64, s65"); e("s_add_u32 s64, s64, s11")
    e("v_and_b32 v9, 15, v1"); e("v_lshl_add_u32 v9, v9, 10, s64")
    e("s_waitcnt lgkmcnt(0)")
    stamp(0, 0, P_WS)
    e(f"s_load_dword s13, {sr(P_LDT,2)}, s10")
    e(f"s_load_dwordx2 s[14:15], {sr(P_DSK,2)}, s11")
    e(f"global_load_dword v4, v2, {sr(P_LAR,2)}")
    e(f"global_load_dword v5, v2, {sr(P_AIM,2)}")
    e(f"global_load_dword v6, v2, {sr(P_CR,2)}")
    e(f"global_load_dword v7, v2, {sr(P_CI,2)}")
    e(f"global_load_dword v11, v9, {sr(P_U,2)}")
    srd(SWS, P_WS, WS_USED)
    srd(SU, P_U, 2048*1024)
    e("v_subrev_u32 v8, 256, v0")
    e("v_lshl_add_u32 v9, v8, 13, s11")
    e("v_subrev_u32 v10, 0x400, v9")
    e("s_movk_i32 s64, 4096")
    e("v_and_b32 v20, 31, v1"); e("v_lshrrev_b32 v21, 5, v1")
    e(f"v_mul_u32_u24 v22, {PITCH}, v20")
    e("v_lshl_add_u32 v22, v21, 4, v22")
    e("v_add_u32 v22, s12, v22")
    e("v_mov_b32 v23, v20")
    for thr in (11, 12, 15, 19, 23):
        e(f"v_cmp_le_u32 vcc, {thr}, v20")
        e("s_nop 1")
        e("v_subbrev_co_u32 v23, vcc, 0, v23, vcc")
    e(f"v_mul_u32_u24 v23, {PITCH}, v23")
    e("v_lshl_add_u32 v23, v21, 4, v23")
    e(f"s_add_u32 s66, s12, {R_OFF}")
    e("v_add_u32 v23, s66, v23")
    e("s_waitcnt lgkmcnt(0)")
    e("s_bitcmp1_b32 s8, 0")
    e("s_cselect_b32 s65, 0, 16")
    e("s_lshl_b32 s13, s13, s65")
    e("s_and_b32 s13, s13, 0xffff0000")
    e("v_mov_b32 v12, s13")
    exp_acc(13, 12, 14, 15)
    e("v_cvt_pk_bf16_f32 v13, v13, v13")
    e("v_and_b32 v13, 0xffff0000, v13")
    e("s_waitcnt vmcnt(3)")
    stamp(6, 0, P_WS)
    e("v_lshlrev_b32 v16, 16, v4"); e("v_and_b32 v17, 0xffff0000, v4")
    exp_acc(18, 16, 14, 15); exp_acc(19, 17, 24, 25)
    e("v_cvt_pk_bf16_f32 v18, v18, v19")
    e("v_lshlrev_b32 v16, 16, v18"); e("v_and_b32 v17, 0xffff0000, v18")
    e("v_lshlrev_b32 v18, 16, v5"); e("v_and_b32 v19, 0xffff0000, v5")
    for r in range(16, 20): e(f"v_mul_f32 v{r}, v{r}, v13")
    e(f"v_mul_f32 v16, {f32(-LOG2E)}, v16"); e(f"v_mul_f32 v17, {f32(-LOG2E)}, v17")
    e("v_mul_f32 v18, 0.15915494, v18"); e("v_mul_f32 v19, 0.15915494, v19")
    e("s_cmp_lt_u32 s3, 4")
    e("s_cbranch_scc0 Lc_rwave")
    ROLE[0] = 1
    E = 24; X = 28; T = 32; PK = 40
    cexp(E, E+2, 16, 18, 8, T); cexp(E+1, E+3, 17, 19, 8, T+1)
    e(f"v_mov_b32 v{X}, 1.0"); e(f"v_mov_b32 v{X+1}, 1.0"); e(f"v_mov_b32 v{X+2}, 0"); e(f"v_mov_b32 v{X+3}, 0")
    e("s_mov_b32 s66, 0")
    lab("Lc_lgen")
    for k in range(4):
        pk = PK + 2*k
        e(f"v_cvt_pk_bf16_f32 v{pk}, v{X}, v{X+2}")
        e(f"v_cvt_pk_bf16_f32 v{pk+1}, v{X+1}, v{X+3}")
        cmulp(X, X, E, T)
        e(f"ds_write_b64 v3, {vr(pk,2)} offset:{k*PITCH}")
    e(f"v_add_u32 v3, {4*PITCH}, v3")
    e("s_add_u32 s66, s66, 1"); e("s_cmp_lt_u32 s66, 8"); e("s_cbranch_scc1 Lc_lgen")
    e("v_and_b32 v4, 1, v1"); e("v_xor_b32 v4, 1, v4"); e(f"v_mul_u32_u24 v4, {CS2}, v4")
    e("v_bfe_u32 v5, v1, 1, 1"); e("v_lshl_add_u32 v4, v5, 3, v4")
    e("v_bfe_u32 v5, v1, 2, 2"); e("v_lshrrev_b32 v6, 4, v1"); e("v_add_u32 v5, v5, v6")
    e("v_lshl_add_u32 v4, v5, 4, v4"); e("s_add_u32 s66, s12, 8"); e("v_add_u32 v4, s66, v4")
    e("v_and_b32 v5, 1, v1"); e(f"v_mul_u32_u24 v5, {US}, v5")
    e("v_bfe_u32 v7, v1, 1, 3"); e("v_lshlrev_b32 v8, 2, v7"); e("v_sub_u32 v8, v8, v6")
    e("v_lshl_add_u32 v5, v8, 4, v5")
    e(f"s_mul_i32 s66, s7, {2*US}"); e(f"s_add_u32 s66, s66, {UB+448+48}")
    e("v_add_u32 v5, s66, v5")
    e("v_mul_u32_u24 v8, 272, v6"); e("v_and_b32 v9, 15, v1"); e("v_lshl_add_u32 v8, v9, 4, v8"); e("v_add_u32 v8, s12, v8")
    e("v_lshl_add_u32 v10, v1, 4, s12")
    e("v_bfe_u32 v12, v1, 4, 1"); e(f"v_mul_u32_u24 v12, {CS2}, v12"); e("v_lshl_add_u32 v12, v9, 2, v12"); e("v_add_u32 v12, s12, v12")
    e("v_mov_b32 v13, 0")
    e("v_and_b32 v14, 1, v1"); e("v_cmp_eq_u32 vcc, 0, v14")
    e("s_waitcnt lgkmcnt(0)")
    stamp(7, 0, P_WS)
    e("s_barrier")
    stamp(1, 0, P_WS)
    FR = 64; KA = 192
    def krd(ks):
        e(f"ds_read_b128 {vr(FR+8*ks,4)}, v23 offset:{32*ks}")
        e(f"ds_read_b128 {vr(FR+8*ks+4,4)}, v22 offset:{32*ks}")
    for ks in range(6): krd(ks)
    ACC = 24
    for ks in range(16):
        if ks + 6 < 16: krd(ks+6)
        e(f"s_waitcnt lgkmcnt({2*min(6, 15-ks)})")
        e(f"v_mfma_f32_32x32x16_bf16 {vr(KA,16)}, {vr(FR+8*ks,4)}, {vr(FR+8*ks+4,4)}, {'0' if ks == 0 else vr(KA,16)}")
        for r in range(2): e(f"v_mov_b32 v{ACC+2*ks+r}, 0")
    stamp(5, 0, P_WS)
    e("ds_write_b32 v12, v13")
    e("s_nop 7"); e("s_nop 1")
    D = 64; S = 80; k = KA
    e(f"v_cndmask_b32 v14, v{k+13}, v{k+12}, vcc")
    e(f"v_cndmask_b32 v15, v{k+15}, v{k+14}, vcc")
    pk = [(k,k+1),(k+2,k+3),(k+4,k+4),(k+5,k+6),
          (k+8,k+8),(k+8,k+9),(k+9,k+9),(k+10,k+10),
          (k+12,k+12),(k+12,k+12),(14,k+13),(k+13,k+13),
          (k+14,k+14),(k+14,k+14),(15,k+15),(k+15,k+15)]
    for i, (a, b) in enumerate(pk):
        e(f"v_cvt_pk_bf16_f32 v{D+i}, v{a}, v{b}")
        if i == 7:
            e(f"v_permlane32_swap_b32 v{D}, v{D+2}"); e(f"v_permlane32_swap_b32 v{D+1}, v{D+3}")
            e(f"ds_write_b128 v10, {vr(D+4,4)} offset:{64+1024}")
            e(f"ds_write_b128 v10, {vr(D,4)} offset:64")
        if i == 11: e(f"ds_write_b128 v10, {vr(D+8,4)} offset:{64+2048}")
    e(f"ds_write_b128 v10, {vr(D+12,4)} offset:{64+3072}")
    e(f"v_mov_b32 v{S}, 0")
    for q in range(1, 4): e(f"v_mov_b32_dpp v{S+4*q}, v{D+4*q-1} wave_ror:1 row_mask:0xf bank_mask:0xf")
    for q in range(4):
        for j in range(3): e(f"v_mov_b32 v{S+4*q+1+j}, v{D+4*q+j}")
        e(f"v_mov_b32_dpp v{S+4*q}, v{D+4*q+3} wave_shr:1 row_mask:0xf bank_mask:0xf")
        e(f"ds_write_b128 v10, {vr(S+4*q,4)} offset:{CS2+64+1024*q}")
    FS = [64, 128]
    e("s_waitcnt lgkmcnt(0)")
    stamp(4, 0, P_WS)
    e("s_barrier")
    stamp(2, 0, P_WS)
    def crl(fs):
        L = []
        for i in range(8):
            L.append(f"ds_read_b128 {vr(fs+32+4*i,4)}, v5 offset:{512*i}")
            L.append(f"ds_read_b64 {vr(fs+4*i,2)}, v4 offset:{512*i}")
            L.append(f"ds_read_b64 {vr(fs+4*i+2,2)}, v4 offset:{512*i+8}")
        return L
    for r in crl(FS[0]): e(r)
    e("v_add_u32 v4, 64, v4"); e("v_subrev_u32 v5, 64, v5")
    e("s_mov_b32 s66, 0")
    lab("Lc_loop")
    for half in range(2):
        cur, nxt = FS[half], FS[1-half]
        e("s_waitcnt lgkmcnt(0)")
        rl = crl(nxt)
        n = 0
        for i in range(8):
            for j in range(8 - i):
                acc = vr(ACC+4*(i+j), 4)
                e(f"v_mfma_f32_16x16x32_bf16 {acc}, {vr(cur+4*i,4)}, {vr(cur+32+4*j,4)}, {acc}")
                if n < 24: e(rl[n])
                if n == 24: e("v_add_u32 v4, 64, v4")
                if n == 25: e("v_subrev_u32 v5, 64, v5")
                if n == 26 and half == 1: e("s_add_u32 s66, s66, 1")
                if n == 27 and half == 1: e("s_cmp_lt_u32 s66, 4")
                n += 1
    e("s_cbranch_scc1 Lc_loop")
    e("s_waitcnt lgkmcnt(0)")
    stamp(3, 0, P_WS)
    for t in range(8):
        if t == 6: e("s_nop 1")
        e(f"ds_write_b128 v8, {vr(ACC+4*t,4)} offset:{1088*t}")
    e("s_waitcnt lgkmcnt(0)")
    e("s_barrier")
    e("s_endpgm")
    lab("Lc_rwave")
    ROLE[0] = 2
    E1 = 24; E256 = 28; T = 32; PK = 40
    R = {0: 48, 2: 52, 4: 56, 6: 60, 8: 64}; TMP = 68
    def uload(r):
        e(f"buffer_load_dwordx2 {vr(UR+2+2*r,2)}, v9, {sr(SU,4)}, {'0' if r < 4 else 's64'} offen offset:{1024*(r&3)}")
    e("s_waitcnt vmcnt(1)" if not STAMP else "s_waitcnt vmcnt(2)")
    e("v_add_f32 v13, v13, v13")
    e(f"v_lshlrev_b32 v{R[0]}, 16, v6"); e(f"v_and_b32 v{R[0]+1}, 0xffff0000, v6")
    e(f"v_lshlrev_b32 v{R[0]+2}, 16, v7"); e(f"v_and_b32 v{R[0]+3}, 0xffff0000, v7")
    e("s_mov_b64 exec, 1")
    e(f"buffer_load_dwordx2 {vr(UR,2)}, v10, {sr(SU,4)}, 0 offen")
    e("s_mov_b64 exec, -1")
    uload(0)
    cexp(E1, E1+2, 16, 18, 1, T); cexp(E1+1, E1+3, 17, 19, 1, T+1)
    cexp(E256, E256+2, 16, 18, 256, T); cexp(E256+1, E256+3, 17, 19, 256, T+1)
    for r in range(4): e(f"v_mul_f32 v{R[0]+r}, v{R[0]+r}, v13")
    cnt = [0]
    def putr(x, srow):
        pk = PK + 2*(cnt[0] % 4); cnt[0] += 1
        e(f"v_cvt_pk_bf16_f32 v{pk}, v{x}, -v{x+2}")
        e(f"v_cvt_pk_bf16_f32 v{pk+1}, v{x+1}, -v{x+3}")
        e(f"ds_write_b64 v3, {vr(pk,2)} offset:{R_OFF+srow*PITCH}")
        if cnt[0] in (3, 11, 19, 27): uload(1 + (cnt[0]-3)//8)
    putr(R[0], 0)
    cur = R[0]
    for p in range(1, 9):
        nx = R[p] if p in R else TMP
        cmulp(nx, cur, E1, T)
        if p < 8: putr(nx, p)
        cur = nx
    for xs, sr0 in (([0,2,4,6,8], 8), ([0,4,8], 13), ([0,4,8], 16), ([0,8], 19), ([0,8], 23), ([0,8], 21), ([0,8], 25)):
        for i, x in enumerate(xs):
            cmulp(R[x], R[x], E256, T)
            putr(R[x], sr0 + i)
    e("s_waitcnt lgkmcnt(0)")
    stamp(7, 0, P_WS)
    e("s_barrier")
    for r in range(5, 8): uload(r)
    stamp(1, 0, P_WS)
    e("s_mov_b32 s66, 0x05040100"); e("s_mov_b32 s67, 0x07060302")
    e("v_lshrrev_b32 v4, 5, v8"); e(f"v_mul_u32_u24 v4, {US}, v4")
    e("v_and_b32 v5, 31, v8"); e("v_min_u32 v5, 27, v5"); e("v_lshl_add_u32 v4, v5, 4, v4")
    for r in range(4): e(f"v_mov_b32 v{24+r}, 0")
    e(f"v_add_u32 v4, {UB}, v4")
    e(f"ds_write_b128 v4, {vr(24,4)}")
    e("v_lshlrev_b32 v4, 4, v8"); e(f"v_add_u32 v4, {UB+448}, v4")
    e("s_waitcnt vmcnt(0)")
    stamp(3, 0, P_WS)
    for hh in range(2): e(f"v_mov_b32_dpp v{UR+hh}, v{UR+16+hh} wave_shr:1 row_mask:0xf bank_mask:0xf")
    def row(r, c): return UR + 2 + 2*r + (c >> 1)
    k = 0
    for c in range(4):
        sel = "s67" if c & 1 else "s66"
        for b0 in (1, 0):
            d = 28 + 4*(k % 4); k += 1
            top = 7 if b0 else 6
            for i in range(4):
                e(f"v_perm_b32 v{d+i}, v{row(top-2*i-1,c)}, v{row(top-2*i,c)}, {sel}")
            e(f"ds_write_b128 v4, {vr(d,4)} offset:{(2*c+b0)*US}")
    e("s_waitcnt lgkmcnt(0)")
    e("s_barrier")
    stamp(2, 0, P_WS)
    e("s_cmp_ge_u32 s3, 6")
    e("s_cbranch_scc1 Lc_gate")
    if not OPT("nopf"):
        srd(SW2, P_W2, 1792*1024)
        e("s_lshl_b32 s68, s5, 1"); e("s_add_u32 s68, s68, s3"); e("s_sub_u32 s68, s68, 4")
        e(f"s_mul_i32 s68, s68, {448*128}")
        e("v_lshlrev_b32 v4, 7, v1")
        for t in range(7):
            e(f"buffer_load_dword v{64+t}, v4, {sr(SW2,4)}, s68 offen")
            if t < 6: e("s_add_u32 s68, s68, 8192")
    e("s_branch Lc_fin")
    lab("Lc_gate")
    e("s_lshl_b32 s68, s6, 4"); e("s_sub_u32 s69, s3, 6"); e("s_lshl_b32 s69, s69, 3"); e("s_add_u32 s68, s68, s69")
    e("s_lshl_b32 s69, s68, 10"); e("s_add_u32 s71, s69, 4096")
    e("v_lshlrev_b32 v4, 4, v1")
    e(f"global_load_dwordx4 {vr(60,4)}, v4, {sr(P_GW,2)}")
    for r in range(8):
        e(f"buffer_load_dwordx4 {vr(64+4*r,4)}, v4, {sr(SU,4)}, {'s69' if r < 4 else 's71'} offen offset:{1024*(r&3)}")
    e("s_waitcnt vmcnt(8)")
    for i in range(4):
        e(f"v_lshlrev_b32 v{100+2*i}, 16, v{60+i}"); e(f"v_and_b32 v{100+2*i+1}, 0xffff0000, v{60+i}")
    for r in range(8):
        e(f"s_waitcnt vmcnt({7-r})")
        for i in range(4):
            e(f"v_lshlrev_b32 v{110+2*i}, 16, v{64+4*r+i}"); e(f"v_and_b32 v{110+2*i+1}, 0xffff0000, v{64+4*r+i}")
        for i in range(8): e(f"v_mul_f32 v{110+i}, v{110+i}, v{100+i}")
        for i in range(4): e(f"v_cvt_pk_bf16_f32 v{120+i}, v{110+2*i}, v{110+2*i+1}")
        for i in range(4):
            e(f"v_lshlrev_b32 v{110+2*i}, 16, v{120+i}"); e(f"v_and_b32 v{110+2*i+1}, 0xffff0000, v{120+i}")
        for i in range(4): e(f"v_add_f32 v{110+i}, v{110+i}, v{114+i}")
        e("v_add_f32 v110, v110, v112"); e("v_add_f32 v111, v111, v113")
        e(f"v_add_f32 v{24+r}, v110, v111")
    for dpp in ("quad_perm:[1,0,3,2] row_mask:0xf", "quad_perm:[2,3,0,1] row_mask:0xf", "row_half_mirror row_mask:0xf",
                "row_mirror row_mask:0xf", "row_bcast:15 row_mask:0xa", "row_bcast:31 row_mask:0xc"):
        e("s_nop 1")
        for r in range(8): e(f"v_add_f32_dpp v{24+r}, v{24+r}, v{24+r} {dpp} bank_mask:0xf")
    e("s_nop 1")
    for r in range(8): e(f"v_readlane_b32 s{72+r}, v{24+r}, 63")
    e("s_nop 3")
    for r in range(8): e(f"v_writelane_b32 v32, s{72+r}, {r}")
    e("s_nop 1")
    e("v_cvt_pk_bf16_f32 v32, v32, v32"); e("v_and_b32 v32, 0xffff0000, v32")
    e(f"v_mul_f32 v32, {f32(-LOG2E)}, v32")
    e("v_exp_f32 v32, v32"); e("s_nop 0"); e("v_add_f32 v32, 1.0, v32"); e("v_rcp_f32 v32, v32"); e("s_nop 0")
    e("v_cvt_pk_bf16_f32 v32, v32, v32"); e("v_and_b32 v32, 0xffff0000, v32")
    e("v_sub_f32 v33, 1.0, v32")
    e("v_cvt_pk_bf16_f32 v33, v33, v33"); e("v_and_b32 v33, 0xffff0000, v33")
    e("v_lshlrev_b32 v4, 3, v1")
    e("s_lshl_b32 s68, s68, 3"); e(f"s_add_u32 s68, s68, {G_OFF}")
    e("s_mov_b64 exec, 0xff")
    e(f"buffer_store_dwordx2 v[32:33], v4, {sr(SWS,4)}, s68 offen{SC1A}")
    e("s_mov_b64 exec, -1")
    lab("Lc_fin")
    e("s_lshl_b32 s72, s14, 16"); e("s_and_b32 s73, s14, 0xffff0000")
    e("s_lshl_b32 s74, s15, 16"); e("s_and_b32 s75, s15, 0xffff0000")
    UF = 128
    for r in range(8):
        for hh in range(2):
            e(f"v_lshlrev_b32 v{UF+4*r+2*hh}, 16, v{UR+2+2*r+hh}")
            e(f"v_and_b32 v{UF+4*r+2*hh+1}, 0xffff0000, v{UR+2+2*r+hh}")
    e("v_lshrrev_b32 v4, 5, v8"); e("v_mul_u32_u24 v4, 1088, v4")
    e("v_and_b32 v5, 3, v8"); e("v_mul_u32_u24 v5, 272, v5")
    e("v_bfe_u32 v6, v8, 2, 3"); e("v_lshl_add_u32 v4, v6, 5, v4"); e("v_add_u32 v4, v4, v5")
    e(f"v_add_u32 v5, {2*CR_SZ}, v4")
    e("v_lshlrev_b32 v6, 4, v8")
    e("s_lshl_b32 s68, s6, 14"); e(f"s_add_u32 s68, s68, {A4_OFF}")
    for i in range(1, 4): e(f"s_add_u32 s{68+i}, s68, {4096*i}")
    e("s_waitcnt vmcnt(0)")
    e("s_barrier")
    stamp(4, 0, P_WS)
    Y = 160
    for c in range(4):
        for b0 in range(2):
            e(f"ds_read_b128 {vr(Y+8*c+4*b0,4)}, v{4 if c < 2 else 5} offset:{(c&1)*CR_SZ+16*b0}")
    for c in range(4):
        e(f"s_waitcnt lgkmcnt({6-2*c})")
        for l in range(8):
            e(f"v_fma_f32 v{UF+4*l+c}, v{UF+4*l+c}, s{72+c}, v{Y+8*c+4*(l&1)+(l>>1)}")
    O = 192
    for l in range(8):
        for hh in range(2): e(f"v_cvt_pk_bf16_f32 v{O+2*l+hh}, v{UF+4*l+2*hh}, v{UF+4*l+2*hh+1}")
    for i in range(4): e(f"buffer_store_dwordx4 {vr(O+4*i,4)}, v6, {sr(SWS,4)}, s{68+i} offen{SC1A}")
    if STAMP:
        e("s_waitcnt vmcnt(0)")
        stamp(5, 0, P_WS)
    e("s_endpgm")

def gemm2():
    ROLE[0] = 0
    SWS, SO, SB2, SW2 = 48, 52, 56, 76
    DEPTH = DEP
    ACC = 0; RING = 48; WFR = 208
    XB = DEPTH*8192
    cm("mt = 4*s4 + (s5&3), nt = s5>>2")
    e("s_and_b32 s6, s5, 3"); e("s_lshl_b32 s7, s4, 2"); e("s_add_u32 s6, s6, s7")
    e("s_lshr_b32 s7, s5, 2")
    e(f"s_mul_i32 s8, s3, {28*1024}")
    e(f"s_mul_i32 s9, s6, {2*112*1024}"); e("s_add_u32 s9, s9, s8")
    e("v_lshlrev_b32 v2, 4, v1")
    e("s_lshr_b32 s11, s3, 1"); e("s_and_b32 s12, s3, 1")
    e(f"s_mul_i32 s13, s12, {112*1024}"); e(f"s_sub_u32 s14, {112*1024}, s13")
    e("s_add_u32 s13, s13, s9"); e("s_add_u32 s14, s14, s9")
    e("v_add_u32 v3, s13, v2"); e("v_add_u32 v4, s14, v2")
    e(f"s_mul_i32 s10, s3, {448*1024}"); e("s_lshl_b32 s13, s7, 7"); e("s_add_u32 s10, s10, s13")
    e("v_lshrrev_b32 v5, 3, v1"); e("v_lshlrev_b32 v5, 10, v5")
    e("v_bfe_u32 v6, v1, 4, 1"); e("v_lshlrev_b32 v6, 2, v6"); e("v_and_b32 v7, 7, v1"); e("v_xor_b32 v6, v6, v7")
    e("v_lshl_add_u32 v5, v6, 4, v5"); e("v_add_u32 v5, s10, v5"); e("v_add_u32 v6, 0x2000, v5")
    e(f"s_mul_i32 s74, s3, {DEPTH*2048}")
    e("s_and_b32 s13, s5, 3"); e("s_lshl_b32 s13, s13, 1"); e("s_add_u32 s13, s13, s7")
    e("s_cmp_ge_u32 s13, 7"); e("s_cselect_b32 s14, 7, 0"); e("s_sub_u32 s13, s13, s14")
    e("s_lshl_b32 s60, s13, 12")
    for i in range(1, 7):
        e(f"s_add_u32 s{60+i}, s{59+i}, 4096"); e(f"s_cmp_eq_u32 s{60+i}, {7*4096}"); e(f"s_cselect_b32 s{60+i}, 0, s{60+i}")
    e("s_waitcnt lgkmcnt(0)")
    stamp(0, 1, P_WS, 36)
    srd(SWS, P_WS, WS_USED)
    srd(SW2, P_W2, 1792*1024)
    def loads(s):
        fs = RING + 8*(s % DEPTH)
        so = f"s{60 + s//4}"
        e(f"s_add_u32 m0, s74, {2048*(s % DEPTH)}")
        if s & 3 == 0: e(f"s_lshl_b32 s75, {so}, 4")
        else: e("s_add_u32 s75, s75, 16384")
        e(f"buffer_load_dwordx4 v5, {sr(SW2,4)}, s75 offen lds")
        e("s_add_u32 m0, m0, 1024")
        e(f"buffer_load_dwordx4 {vr(fs,4)}, v3, {sr(SWS,4)}, {so} offen offset:{1024*(s&3)}")
        e(f"buffer_load_dwordx4 v6, {sr(SW2,4)}, s75 offen lds")
        e(f"buffer_load_dwordx4 {vr(fs+4,4)}, v4, {sr(SWS,4)}, {so} offen offset:{1024*(s&3)}")
    for s in range(DEPTH): loads(s)
    e("v_bfe_u32 v44, v1, 2, 2"); e("v_lshrrev_b32 v45, 5, v1"); e("v_lshl_add_u32 v44, v45, 2, v44"); e("v_lshlrev_b32 v44, 7, v44")
    e("v_bfe_u32 v45, v1, 3, 1"); e("v_xor_b32 v45, s11, v45"); e("v_lshl_add_u32 v44, v45, 6, v44")
    e("v_bfe_u32 v45, v1, 4, 1"); e("v_lshl_add_u32 v44, v45, 5, v44")
    e("v_and_b32 v45, 3, v1"); e("v_lshl_add_u32 v44, v45, 3, v44")
    e("v_add_u32 v44, s74, v44"); e("v_xor_b32 v45, 64, v44")
    srd(SO, P_OUT, 2048*1024)
    srd(SB2, P_B2, 1024)
    e("s_lshl_b32 s13, s6, 1"); e("s_add_u32 s13, s13, s12"); e("s_lshl_b32 s13, s13, 5")
    e("s_lshl_b32 s14, s7, 1"); e("s_add_u32 s14, s14, s11"); e("s_lshl_b32 s14, s14, 5")
    e("v_and_b32 v7, 31, v1"); e("v_lshrrev_b32 v8, 5, v1")
    e("v_add_u32 v7, s13, v7")
    e("v_lshlrev_b32 v9, 3, v7")
    e("v_bfe_u32 v10, v7, 1, 2"); e("v_lshl_add_u32 v10, v8, 2, v10"); e("v_lshlrev_b32 v10, 12, v10")
    e("v_lshrrev_b32 v11, 3, v7"); e("v_lshl_add_u32 v10, v11, 4, v10"); e("v_and_b32 v11, 1, v7"); e("v_lshl_add_u32 v10, v11, 3, v10")
    e("s_lshl_b32 s15, s14, 12"); e(f"s_add_u32 s15, s15, {A4_OFF}")
    e("s_add_u32 s68, s15, 32768"); e("s_add_u32 s69, s68, 32768"); e("s_add_u32 s70, s69, 32768")
    e(f"s_mov_b32 s71, {G_OFF}")
    e("s_lshl_b32 s72, s14, 1")
    e("v_lshl_add_u32 v11, v8, 3, s72")
    EP = 16
    def eploads():
        for j, so in enumerate(("s15", "s68", "s69", "s70")):
            e(f"buffer_load_dwordx2 {vr(EP+2*j,2)}, v10, {sr(SWS,4)}, {so} offen")
        for j in range(4): e(f"buffer_load_dwordx2 {vr(EP+8+2*j,2)}, v11, {sr(SB2,4)}, 0 offen offset:{16*j}")
        e(f"buffer_load_dwordx2 {vr(EP+16,2)}, v9, {sr(SWS,4)}, s71 offen")
    e("v_lshlrev_b32 v12, 10, v7"); e("v_lshl_add_u32 v12, v8, 4, v12"); e("v_add_u32 v12, s72, v12")
    for t in range(1, 4):
        e(f"s_xor_b32 s73, s3, {t}"); e("s_mul_i32 s73, s73, 12288"); e(f"s_add_u32 s73, s73, {XB}"); e(f"v_add_u32 v{39+t}, s73, v2")
    e("s_mul_i32 s73, s3, 12288"); e(f"s_add_u32 s73, s73, {XB}"); e("v_add_u32 v14, s73, v2")
    NE = 9
    def wrd(s):
        wf = WFR + 8*(s & 1)
        for b in range(2):
            for u in range(2):
                e(f"ds_read_b64_tr_b16 {vr(wf+4*b+2*u,2)}, v{44+b} offset:{2048*(s % DEPTH)+1024*u}")
    def vw(s, issued):
        e(f"s_waitcnt vmcnt({4*(issued-s-1) + (NE if issued == 28 else 0)})")
    vw(0, DEPTH); wrd(0)
    issued = DEPTH
    for s in range(28):
        if s + 1 < 28:
            vw(s+1, issued); wrd(s+1)
            e("s_waitcnt lgkmcnt(4)")
        else: e("s_waitcnt lgkmcnt(0)")
        if STAMP and s in (0, 7, 14, 21):
            e(f"s_memtime s[{80+2*(s//7)}:{81+2*(s//7)}]")
        fs = RING + 8*(s % DEPTH); wf = WFR + 8*(s & 1)
        for b in range(2):
            for a in range(2):
                acc = ar(ACC+32*b+16*a, 16)
                e(f"v_mfma_f32_32x32x16_bf16 {acc}, {vr(wf+4*b,4)}, {vr(fs+4*a,4)}, {'0' if s == 0 else acc}")
        if s + DEPTH < 28: loads(s + DEPTH); issued += 1
        if s + DEPTH == 27: eploads()
    stamp(1, 1, P_WS, 36)
    AF = 160; BF = 176
    e("s_nop 7"); e("s_nop 7")
    for t in range(1, 4):
        for r in range(4):
            e(f"ds_write_b128 v{39+t}, {ar(ACC+16*t+4*r,4)} offset:{(t-1)*4096+r*1024}")
    e("s_waitcnt vmcnt(0)")
    for i in range(8):
        e(f"v_lshlrev_b32 v{AF+2*i}, 16, v{EP+i}"); e(f"v_and_b32 v{AF+2*i+1}, 0xffff0000, v{EP+i}")
    for i in range(8):
        e(f"v_lshlrev_b32 v{BF+2*i}, 16, v{EP+8+i}"); e(f"v_and_b32 v{BF+2*i+1}, 0xffff0000, v{EP+8+i}")
    for i in range(16): e(f"v_mul_f32 v{AF+i}, v{AF+i}, v{EP+16}")
    for i in range(16): e(f"v_accvgpr_read_b32 v{RING+48+i}, a{i}")
    for i in range(16): e(f"v_add_f32 v{BF+i}, v{BF+i}, v{RING+48+i}")
    e("s_waitcnt lgkmcnt(0)")
    e("s_barrier")
    for t in range(3):
        for r in range(4):
            e(f"ds_read_b128 {vr(RING+16*t+4*r,4)}, v14 offset:{t*4096+r*1024}")
    for t in range(3):
        e(f"s_waitcnt lgkmcnt({8-4*t})")
        for i in range(16): e(f"v_add_f32 v{BF+i}, v{BF+i}, v{RING+16*t+i}")
    for i in range(16): e(f"v_fmac_f32 v{AF+i}, v{BF+i}, v{EP+17}")
    O = 192
    for i in range(8): e(f"v_cvt_pk_bf16_f32 v{O+i}, v{AF+2*i}, v{AF+2*i+1}")
    e("s_nop 1")
    for jj in range(2):
        e(f"v_permlane32_swap_b32 v{O+4*jj}, v{O+4*jj+2}")
        e(f"v_permlane32_swap_b32 v{O+4*jj+1}, v{O+4*jj+3}")
    for jj in range(2):
        e(f"buffer_store_dwordx4 {vr(O+4*jj,4)}, v12, {sr(SO,4)}, 0 offen offset:{32*jj}")
    if STAMP:
        e("s_waitcnt vmcnt(0)")
        stamp(2, 1, P_WS, 36)
        for i in range(4):
            e(f"v_mov_b32 v36, s96"); e(f"v_mov_b32 v37, s{80+2*i}"); e(f"v_add_u32 v38, {8}, v38")
            e(f"global_store_dwordx2 v38, v[36:37], s[{P_WS}:{P_WS+1}]")
            e("s_nop 1")
    e("s_endpgm")

def kd(name, vgpr, accum):
    out.append(f""".amdhsa_kernel {name}
  .amdhsa_next_free_vgpr {vgpr}
  .amdhsa_next_free_sgpr 102
  .amdhsa_accum_offset {accum}
  .amdhsa_group_segment_fixed_size 0
  .amdhsa_kernarg_size 128
  .amdhsa_user_sgpr_count 2
  .amdhsa_user_sgpr_kernarg_segment_ptr 1
  .amdhsa_system_sgpr_workgroup_id_x 1
.end_amdhsa_kernel""")

hdr = open(f"cdna_kernels/{NAME}.s.ref").read().splitlines()
for l in hdr:
    if l.startswith(";") and "@launch" not in l and "Override" not in l and "Harness parses" not in l: out.append(l)
K1 = "gmix_a_kernel"; K2 = "gmix_b_kernel"
out.append(f"; @launch kernel={K1} grid=(240,1,1) block=(512,1,1) lds={LDS1}")
out.append(f"; @launch kernel={K2} grid=(256,1,1) block=(256,1,1) lds={max(DEP*8192+49152, 90112)}")
out.append('.amdgcn_target "amdgcn-amd-amdhsa--gfx950"')
out.append(".text")
for k in (K1, K2): out.append(f".globl {k}")
out.append(".p2align 8"); out.append(f".type {K1},@function"); lab(K1)
EXIT = "La_exit"
prologue(240)
e("s_cmp_ge_u32 s5, 14")
e("s_cbranch_scc1 La_conv")
gemm1()
lab("La_conv")
conv()
lab(EXIT); e("s_endpgm")
out.append(".p2align 8"); out.append(f".type {K2},@function"); lab(K2)
EXIT = "Lb_exit"
prologue(256)
gemm2()
lab(EXIT); e("s_endpgm")
out.append('.section .rodata,"a"'); out.append(".p2align 6")
kd(K1, 256, 256)
out.append(".p2align 6")
kd(K2, 320, 256)
dst = [a for a in sys.argv[1:] if not a.startswith("--")]
open(dst[0] if dst else f"cdna_kernels/{NAME}.s", "w").write("\n".join(out) + "\n")
```

```python
import sys, struct
NAME = "gated_mix__ssm_conv_s4d__dense_activation_squared_relu__prompt"
STAMP = "--stamp" in sys.argv or "--dbg" in sys.argv

OPT = lambda k: ("--"+k) in sys.argv
SC1A = "" if OPT("nosc1") else " sc1"
SC1H = "" if OPT("nosc1") else " sc1"
NTW1 = " nt" if OPT("ntw1") else ""
DEP = int(([a[6:] for a in sys.argv if a.startswith("--dep=")] + ["5"])[0])
HF_OFF = 0
HF_SZ = 64*112*1024
WF_OFF = HF_SZ
WF_SZ = 16*112*1024
A4_OFF = WF_OFF + WF_SZ
A4_SZ = 128*2048*8
G_OFF = A4_OFF + A4_SZ
G_SZ = 2048*8
FH_OFF = G_OFF + G_SZ
FS = int(([a[5:] for a in sys.argv if a.startswith('--fs=')] + ['5'])[0])
FC_OFF = FH_OFF + (2048 << FS)
FG_OFF = FC_OFF + (2048 << FS)
WS_USED = FG_OFF + (256 << FS)
SLP = int(([a[6:] for a in sys.argv if a.startswith("--slp=")] + ["6"])[0])
SPIN = 40000
HL = '' if OPT('hplain') else ' nt' if OPT('hnt') else ' sc1'
XV = int(([a[5:] for a in sys.argv if a.startswith('--xv=')] + ['1'])[0])
ST_OFF = 0x1000000

out = []
def e(s): out.append("    " + s)
def lab(s): out.append(s + ":")
def cm(s): out.append("    ; " + s)
def f32(x): return "0x%08x" % struct.unpack("<I", struct.pack("<f", x))[0]
def vr(a, n): return f"v[{a}:{a+n-1}]"
def ar(a, n): return f"a[{a}:{a+n-1}]"
def sr(a, n): return f"s[{a}:{a+n-1}]"
def srd(d, ptr, size, off=None):
    if off is None:
        e(f"s_mov_b32 s{d}, s{ptr}"); e(f"s_mov_b32 s{d+1}, s{ptr+1}")
    else:
        e(f"s_add_u32 s{d}, s{ptr}, {off}"); e(f"s_addc_u32 s{d+1}, s{ptr+1}, 0")
    e(f"s_mov_b32 s{d+2}, {size}"); e(f"s_mov_b32 s{d+3}, 0x20000")

DBG = "--dbg" in sys.argv
ROLE = [0]
def stamp(idx, kern, wsp, tmp=250):
    if DBG:
        slot = {(0,0):[0,1,2,3], (0,1):[0,4,5,6], (0,2):[0,7,8,9,10,11], (1,0):[12,13,14]}[(kern,ROLE[0])][idx]
        e("s_memrealtime s[96:97]")
        e(f"s_sub_u32 s98, s44, {512*kern}"); e("s_subb_u32 s99, s45, 0")
        e("s_waitcnt lgkmcnt(0)")
        if slot == 0 or slot == 12: e("s_not_b32 s96, s96")
        e(f"v_mov_b32 v{tmp}, s96"); e(f"v_mov_b32 v{tmp+2}, {4*slot}")
        e("s_mov_b64 exec, 1")
        e(f"global_atomic_umax v{tmp+2}, v{tmp}, s[98:99]")
        e("s_mov_b64 exec, -1")
        return
    if not STAMP: return
    e("s_memrealtime s[96:97]")
    e("s_memtime s[100:101]")
    e("s_lshl_b32 s98, s2, 3"); e("s_add_u32 s98, s98, s3"); e("s_lshl_b32 s98, s98, 6")
    e(f"s_add_u32 s98, s98, {ST_OFF + kern*0x40000 + idx*8}")
    e("s_waitcnt lgkmcnt(0)")
    e(f"v_mov_b32 v{tmp}, s96"); e(f"v_mov_b32 v{tmp+1}, s100"); e(f"v_mov_b32 v{tmp+2}, s98")
    e(f"global_store_dwordx2 v{tmp+2}, v[{tmp}:{tmp+1}], s[{wsp}:{wsp+1}]")

P_U, P_LAR, P_AIM, P_CR, P_CI, P_LDT, P_DSK = 16, 18, 20, 22, 24, 26, 28
P_W1, P_B1, P_W2, P_B2, P_GW, P_OUT, P_DBG, P_WS = 32, 34, 36, 38, 40, 42, 44, 46
LOG2E = 1.4426950408889634
L_HI = struct.unpack("<f", struct.pack("<f", LOG2E))[0]
L_LO = LOG2E - L_HI
LN2 = 0.6931471805599453

def prologue(nwg):
    e(f"s_cmp_ge_u32 s2, {nwg}")
    e("s_cbranch_scc1 " + EXIT)
    e("s_load_dwordx16 s[16:31], s[0:1], 0")
    e("s_load_dwordx16 s[32:47], s[0:1], 64")
    e("v_lshrrev_b32 v2, 6, v0")
    e("v_and_b32 v1, 63, v0")
    e("v_readfirstlane_b32 s3, v2")
    e("s_and_b32 s4, s2, 7")
    e("s_lshr_b32 s5, s2, 3")


SG = 80
SA_, SB_, SC_, ST_, SSTR, STAG, SW2P = 87, 88, 89, 90, 78, 79, 92
WR = 128; WD = 240; AC2 = 64
HD = int(([a[5:] for a in sys.argv if a.startswith("--hd=")] + ["8"])[0])
HREG = list(range(192, 240, 8)) + [16, 24, 32, 48, 56]
VW0, VW1, VT = 44, 45, 43
uid = [0]
def p2_setup(gemm_map, vw0, vw1, vt, t0):
    e("s_sub_u32 s77, s3, 4")
    e("s_bfe_u32 s76, s2, 0x30003")
    e(f"s_mul_i32 s91, s77, {448*1024}"); e("s_lshl_b32 s80, s76, 7"); e("s_add_u32 s91, s91, s80")
    e(f"v_lshrrev_b32 v{vw0}, 3, v1"); e(f"v_lshlrev_b32 v{vw0}, 10, v{vw0}")
    e(f"v_bfe_u32 v{vw1}, v1, 4, 1"); e(f"v_lshlrev_b32 v{vw1}, 2, v{vw1}"); e(f"v_and_b32 v{t0}, 7, v1"); e(f"v_xor_b32 v{vw1}, v{vw1}, v{t0}")
    e(f"v_lshl_add_u32 v{vw0}, v{vw1}, 4, v{vw0}"); e(f"v_add_u32 v{vw0}, s91, v{vw0}"); e(f"v_add_u32 v{vw1}, 0x2000, v{vw0}")
    if OPT("lin"):
        e("s_mul_i32 s91, s76, 229376"); e("s_mul_i32 s80, s77, 57344"); e("s_add_u32 s91, s91, s80")
        e(f"v_lshl_add_u32 v{vw0}, v1, 4, s91"); e(f"v_add_u32 v{vw1}, 0x400, v{vw0}")
    e("s_lshr_b32 s80, s2, 6"); e("s_lshl_b32 s80, s80, 1"); e("s_add_u32 s80, s80, s76")
    e("s_cmp_ge_u32 s80, 7"); e("s_cselect_b32 s81, 7, 0"); e("s_sub_u32 s80, s80, s81")
    e("s_lshl_b32 s80, s80, 12")
    for i in range(1, 7):
        e(f"s_add_u32 s{80+i}, s{79+i}, 4096"); e(f"s_cmp_eq_u32 s{80+i}, {7*4096}"); e(f"s_cselect_b32 s{80+i}, 0, s{80+i}")
    e("s_lshr_b32 s76, s77, 1")
    e(f"v_bfe_u32 v{vt}, v1, 2, 2"); e(f"v_lshrrev_b32 v{t0}, 5, v1"); e(f"v_lshl_add_u32 v{vt}, v{t0}, 2, v{vt}"); e(f"v_lshlrev_b32 v{vt}, 7, v{vt}")
    e(f"v_bfe_u32 v{t0}, v1, 3, 1"); e(f"v_xor_b32 v{t0}, s76, v{t0}"); e(f"v_lshl_add_u32 v{vt}, v{t0}, 6, v{vt}")
    e(f"v_bfe_u32 v{t0}, v1, 4, 1"); e(f"v_lshl_add_u32 v{vt}, v{t0}, 5, v{vt}")
    e(f"v_and_b32 v{t0}, 3, v1"); e(f"v_lshl_add_u32 v{vt}, v{t0}, 3, v{vt}")
    p2_map(77)
    e(f"s_add_u32 s{SA_}, s{ST_}, 8704"); e(f"s_add_u32 s{SB_}, s{ST_}, 29184")
    if gemm_map:
        e(f"s_mul_i32 s{SSTR}, s77, 12288"); e(f"s_add_u32 s{SSTR}, s{SSTR}, 98304")
        e(f"s_lshl_b32 s{SC_}, s77, 12"); e(f"s_add_u32 s{SC_}, s{SC_}, 147456")
    srd(SW2P, P_W2, 1792*1024)
def p2_map(q):
    e(f"s_mul_i32 s{ST_}, s{q}, 40960")
def wdma(s0, n, base, vw0=VW0, vw1=VW1, slot0=0):
    for i in range(n):
        s = s0 + i
        e(f"s_add_u32 m0, s{base}, {2048*(i+slot0)}")
        if i == 0 or s & 3 == 0:
            e(f"s_lshl_b32 s91, s{SG + s//4}, {1 if OPT('lin') else 4}")
            if s & 3: e(f"s_add_u32 s91, s91, {(2048 if OPT('lin') else 16384)*(s&3)}")
        else: e(f"s_add_u32 s91, s91, {2048 if OPT('lin') else 16384}")
        e(f"buffer_load_dwordx4 v{vw0}, {sr(SW2P,4)}, s91 offen lds")
        e("s_add_u32 m0, m0, 1024"); e("s_nop 0")
        e(f"buffer_load_dwordx4 v{vw1}, {sr(SW2P,4)}, s91 offen lds")
def wrd_regs(s0, n, base, vt=VT):
    e(f"v_add_u32 v{WD}, s{base}, v{vt}"); e(f"v_xor_b32 v{WD+1}, 64, v{WD}")
    for i in range(n):
        for b in range(2):
            for u in range(2):
                e(f"ds_read_b64_tr_b16 {vr(WR+8*(s0+i)+4*b+2*u,2)}, v{WD+b} offset:{2048*i+1024*u}")
def wpre_conv(mid):
    wdma(0, 8, SA_); wdma(16, 2, SA_, slot0=8)
    mid()
    if STAMP: e("s_memrealtime s[56:57]")
    wrd_regs(0, 8, SA_)
    e("s_waitcnt lgkmcnt(0)")
    wdma(8, 8, SA_)
    if STAMP: e("s_memrealtime s[58:59]")
def tag_issue(v):
    e(f"v_mov_b32 v{v}, 0")
    e(f"global_load_dword v{v}, v{v}, {sr(P_DBG,2)}")
def tag_get(v, t):
    uid[0] += 1; L = f"Ltag{uid[0]}"
    e(f"v_readfirstlane_b32 s{STAG}, v{v}")
    e(f"s_cmp_lg_u32 s{STAG}, 0"); e(f"s_cbranch_scc1 {L}")
    e("s_memrealtime s[76:77]"); e(f"v_mov_b32 v{t+1}, 0"); e(f"v_mov_b32 v{t+2}, 0")
    e("s_waitcnt lgkmcnt(0)")
    e("s_or_b32 s76, s76, 1"); e(f"v_mov_b32 v{t}, s76")
    e("s_mov_b64 exec, 1")
    e(f"global_atomic_cmpswap v{v}, v{t+2}, {vr(t,2)}, {sr(P_DBG,2)} sc0 sc1")
    e("s_waitcnt vmcnt(0)")
    e(f"v_readfirstlane_b32 s{STAG}, v{v}")
    e("s_mov_b64 exec, -1")
    e(f"s_cmp_eq_u32 s{STAG}, 0"); e(f"s_cselect_b32 s{STAG}, s76, s{STAG}")
    lab(L)
def publish(soff, t):
    e(f"v_mov_b32 v{t}, s{STAG}"); e(f"v_mov_b32 v{t+1}, s{soff}")
    e("s_mov_b64 exec, 1")
    e(f"global_store_dword v{t+1}, v{t}, {sr(P_WS,2)} sc1")
    e("s_mov_b64 exec, -1")
def poll(va, vd):
    uid[0] += 1; L = f"Lpoll{uid[0]}"
    e(f"s_mov_b32 s76, {SPIN}")
    lab(L)
    e(f"global_load_dword v{vd}, v{va}, {sr(P_WS,2)} sc1")
    e("s_sub_u32 s76, s76, 1")
    e("s_waitcnt vmcnt(0)")
    e(f"v_cmp_ne_u32 vcc, s{STAG}, v{vd}")
    e("s_cmp_eq_u32 s76, 0"); e(f"s_cbranch_scc1 {L}x")
    e(f"s_cbranch_vccz {L}x")
    e(f"s_sleep {SLP}")
    e(f"s_branch {L}")
    lab(L + "x")

def gemm1():
    SX, SW, SH, SB = 48, 52, 56, 60
    SL = 49152; WB = 32768
    cm("---- GEMM1: mt = s4, ft = s5; waves 0-3 compute, 4-7 load")
    e("s_lshl_b32 s8, s5, 8")
    e("s_cmp_lt_u32 s3, 4")
    e("s_cbranch_scc1 Lg_comp")
    vX0, vX1, vW = 2, 3, 4
    e("s_sub_u32 s11, s3, 4")
    for r in (VT, VW0, VW1): e(f"v_mov_b32 v{r}, 0")
    e("s_lshl_b32 s6, s4, 18")
    e("s_lshl_b32 s7, s11, 16")
    e("v_lshrrev_b32 v5, 3, v1")
    e("v_lshrrev_b32 v6, 4, v1")
    e("v_and_b32 v7, 7, v1")
    e("v_xor_b32 v7, v7, v6")
    e("v_lshlrev_b32 v7, 4, v7")
    e(f"v_lshl_add_u32 v{vX0}, v5, 10, v7")
    e(f"v_add_u32 v{vX0}, s7, v{vX0}")
    e(f"v_xor_b32 v{vX1}, 64, v{vX0}")
    e(f"v_add_u32 v{vX1}, 0x2000, v{vX1}")
    e("s_mul_i32 s7, s11, %d" % (16*3584))
    e("s_add_u32 s7, s7, s8")
    e("v_and_b32 v7, 15, v1")
    e("v_lshlrev_b32 v5, 2, v6")
    e("v_xor_b32 v7, v7, v5")
    e("v_lshlrev_b32 v7, 4, v7")
    e("v_mul_u32_u24 v5, 3584, v6")
    e(f"v_add3_u32 v{vW}, v5, v7, s7")
    e("s_lshl_b32 s9, s11, 13")
    e("s_lshl_b32 s10, s11, 12")
    e(f"s_add_u32 s10, s10, {WB}")
    e("s_add_u32 s12, s4, s5")
    e("s_mov_b32 s13, 0")
    e("s_mov_b32 s66, 0")
    e("s_waitcnt lgkmcnt(0)")
    stamp(0, 0, P_WS)
    srd(SX, P_U, 262144, "s6")
    srd(SW, P_W1, 512*3584)
    lab("Lg_issue")
    e("s_and_b32 s12, s12, 7")
    e("s_lshl_b32 s14, s12, 7")
    e(f"s_mul_i32 s64, s12, {64*3584}")
    e(f"s_mul_i32 s15, s13, {SL}")
    e("s_add_u32 m0, s10, s15")
    e("s_nop 0")
    for i in range(4):
        e(f"buffer_load_dwordx4 v{vW}, {sr(SW,4)}, s64 offen{NTW1} lds")
        if i < 3:
            e("s_add_u32 m0, m0, 1024"); e(f"s_add_u32 s64, s64, {4*3584}")
    e("s_add_u32 m0, s9, s15")
    e("s_add_u32 s12, s12, 1")
    for i in range(8):
        e(f"buffer_load_dwordx4 v{vX1 if i & 1 else vX0}, {sr(SX,4)}, s14 offen lds")
        if i < 7:
            e("s_add_u32 m0, m0, 1024")
            e("s_add_u32 s14, s14, 16384" if i & 1 else "s_nop 0")
    e("s_add_u32 s13, s13, 1"); e("s_cmp_eq_u32 s13, 3"); e("s_cselect_b32 s13, 0, s13")
    e("s_add_u32 s66, s66, 1")
    e("s_cmp_eq_u32 s66, 1")
    e("s_cbranch_scc1 Lg_issue")
    e("s_cmp_eq_u32 s66, 8")
    e("s_cbranch_scc1 Lg_tail")
    e("s_cmp_lg_u32 s66, 2")
    e("s_cbranch_scc1 Lg_nosetup")
    p2_setup(True, VW0, VW1, VT, 5)
    lab("Lg_nosetup")
    e("s_waitcnt vmcnt(12)")
    e("s_barrier")
    e("s_branch Lg_issue")
    lab("Lg_tail")
    srd(SW2P, P_W2, 1792*1024)
    wdma(0, 2, SC_)
    e("s_waitcnt vmcnt(16)")
    e("s_barrier")
    wdma(2, 6, SSTR)
    e("s_waitcnt vmcnt(16)")
    e("s_barrier")
    e("s_waitcnt vmcnt(0)")
    if STAMP: e("s_memrealtime s[56:57]")
    wrd_regs(0, 2, SC_); wrd_regs(2, 6, SSTR)
    e("s_waitcnt lgkmcnt(0)")
    if XV: e("s_barrier")
    if STAMP: e("s_memrealtime s[58:59]")
    if XV: wdma(8, 15, SA_)
    e("s_branch Lp2_main")
    lab("Lg_comp")
    vXa, vXb, vWa, vH, vWb = 8, 12, 16, 18, 22
    F = [32, 56]
    ACC = 128
    e("s_and_b32 s11, s3, 1")
    e("s_lshr_b32 s12, s3, 1")
    e("s_lshl_b32 s13, s12, 7")
    e("s_add_u32 s13, s13, s8")
    e("v_lshrrev_b32 v5, 5, v1")
    e("v_lshl_add_u32 v7, v5, 3, s13")
    e("s_waitcnt lgkmcnt(0)")
    stamp(0, 0, P_WS, 24)
    srd(SB, P_B1, 3584)
    srd(SH, P_WS, HF_SZ)
    for b in range(2):
        for j in range(4):
            e(f"buffer_load_dwordx2 {vr(80+8*b+2*j,2)}, v7, {sr(SB,4)}, 0 offen offset:{64*b+16*j}")
    e("v_and_b32 v6, 31, v1")
    e("v_bfe_u32 v7, v1, 1, 3")
    e("v_xor_b32 v7, v7, v5")
    e("v_lshlrev_b32 v7, 4, v7")
    e("v_lshl_add_u32 v7, v6, 7, v7")
    e("s_lshl_b32 s13, s11, 14")
    e(f"v_add_u32 v{vXa}, s13, v7")
    for ks in range(1, 4): e(f"v_xor_b32 v{vXa+ks}, {32*ks}, v{vXa}")
    for ks in range(4): e(f"v_add_u32 v{vXb+ks}, {2*SL}, v{vXa+ks}")
    e("v_bfe_u32 v6, v1, 2, 2")
    e("v_lshl_add_u32 v7, v5, 3, v6")
    e("v_lshlrev_b32 v7, 8, v7")
    e("v_bfe_u32 v19, v1, 4, 1")
    e("v_bfe_u32 v20, v1, 1, 1")
    e("v_lshl_add_u32 v19, v19, 1, v20")
    e("s_lshl_b32 s13, s12, 3")
    e("v_add_u32 v19, s13, v19")
    e("v_lshlrev_b32 v6, 2, v6")
    e("v_xor_b32 v19, v19, v6")
    e("v_lshl_add_u32 v7, v19, 4, v7")
    e("v_and_b32 v20, 1, v1")
    e("v_lshl_add_u32 v7, v20, 3, v7")
    e(f"v_add_u32 v{vWa}, {WB}, v7")
    e(f"v_xor_b32 v{vWa+1}, 64, v{vWa}")
    for b in range(2): e(f"v_add_u32 v{vWb+b}, {2*SL}, v{vWa+b}")
    e("s_lshl_b32 s68, s4, 1"); e("s_add_u32 s68, s68, s11"); e("s_lshl_b32 s68, s68, 5")
    e("s_lshl_b32 s13, s5, 1"); e("s_add_u32 s68, s68, s13"); e("s_add_u32 s68, s68, s12")
    e(f"s_lshl_b32 s68, s68, {2+FS}"); e(f"s_add_u32 s68, s68, {FH_OFF}")
    p2_map(3)
    e("s_lshl_b32 s13, s4, 3"); e("s_lshl_b32 s14, s11, 2"); e("s_add_u32 s13, s13, s14")
    e("s_mul_i32 s13, s13, 112")
    e("s_lshl_b32 s14, s5, 3"); e("s_add_u32 s13, s13, s14")
    e("s_lshl_b32 s14, s12, 2"); e("s_add_u32 s13, s13, s14")
    e("s_lshl_b32 s13, s13, 10")
    e(f"v_lshl_add_u32 v{vH}, v1, 4, s13")
    e("v_and_b32 v28, 31, v1"); e("v_lshl_add_u32 v28, v28, 7, s13"); e(f"v_mul_u32_u24 v29, {112*1024}, v5"); e("v_add_u32 v28, v28, v29")
    for a in range(1, 4): e(f"s_mov_b32 s{64+a}, {a*112*1024}")
    BI = 96
    e("s_waitcnt vmcnt(0)")
    for b in range(2):
        for j in range(8):
            src = 80 + 8*b + j
            e(f"v_lshlrev_b32 v{BI+16*b+2*j}, 16, v{src}")
            e(f"v_and_b32 v{BI+16*b+2*j+1}, 0xffff0000, v{src}")
    def xrd(s, ks, a, reg):
        sl = s % 3
        return f"ds_read_b128 {vr(reg,4)}, v{(vXb if sl == 2 else vXa) + ks} offset:{(sl*SL if sl < 2 else 0)+4096*a}"
    def wrd(s, ks, b, reg):
        sl = s % 3
        return [f"ds_read_b64_tr_b16 {vr(reg+2*u,2)}, v{(vWb if sl == 2 else vWa)+b} offset:{(sl*SL if sl < 2 else 0)+(16*ks+4*u)*256}" for u in range(2)]
    def rdlist(s, ks, fs):
        return wrd(s, ks, 0, fs+16) + [xrd(s, ks, a, fs+4*a) for a in range(4)] + wrd(s, ks, 1, fs+20)
    def mfmas(fs, rl, first=False):
        n = 0
        for b in range(2):
            for a in range(4):
                acc = vr(ACC+64*b+16*a, 16)
                e(f"v_mfma_f32_32x32x16_bf16 {acc}, {vr(fs+16+4*b,4)}, {vr(fs+4*a,4)}, {vr(BI+16*b,16) if first else acc}")
                for r in rl[2*n:2*n+2]: e(r)
                n += 1
    quads = list(range(32, 56, 4)) + list(range(80, 128, 4)) + list(range(56, 80, 4))
    W7 = {(0, ks): quads[ks] for ks in range(4)}
    X7 = {(a, ks): quads[4+4*a+ks] for a in range(4) for ks in range(4)}
    W7.update({(1, ks): quads[20+ks] for ks in range(4)})
    def w7(b): return sum((wrd(7, ks, b, W7[b, ks]) for ks in range(4)), [])
    def x7(a): return [xrd(7, ks, a, X7[a, ks]) for ks in range(4)]
    e("s_barrier")
    stamp(1, 0, P_WS, 24)
    for r in rdlist(0, 0, F[0]): e(r)
    for s in range(7):
        for ks in range(4):
            e("s_waitcnt lgkmcnt(0)")
            if ks < 3: rl = rdlist(s, ks+1, F[(ks+1) & 1])
            else:
                e("s_barrier")
                rl = rdlist(s+1, 0, F[0]) if s < 6 else w7(0) + x7(0) + x7(1)
            if s == 4 and ks == 0: tag_issue(4)
            mfmas(F[ks & 1], rl, s == 0 and ks == 0)
    def epi(j):
        b, a = j >> 2, j & 3
        base = ACC+64*b+16*a
        L = [f"v_mul_f32 v{base+r}, v{base+r}, |v{base+r}|" for r in range(16)]
        L += [f"v_cvt_pk_bf16_f32 v{base+r}, v{base+2*r}, v{base+2*r+1}" for r in range(8)]
        L += [f"v_pk_max_i16 v{base+r}, v{base+r}, 0" for r in range(8)]
        L += [f"buffer_store_dwordx4 {vr(base+4*s_,4)}, v{vH}, {sr(SH,4)}, {'0' if a == 0 else 's%d' % (64+a)} offen offset:{2048*b+1024*s_}{SC1H}" for s_ in range(0 if OPT("nost") else 2)]
        return L
    extra = {0: x7(2) + x7(3), 1: w7(1)}
    waits = {0: 4, 1: 8, 2: 12, 3: 8, 4: 0}
    pend = []
    pos = [0]
    def emit(x): e(x); pos[0] += 1
    for j in range(8):
        b, a = j >> 2, j & 3
        if j in waits: emit(f"s_waitcnt lgkmcnt({waits[j]})")
        acc = vr(ACC+64*b+16*a, 16)
        for ks in range(4):
            emit(f"v_mfma_f32_32x32x16_bf16 {acc}, {vr(W7[b,ks],4)}, {vr(X7[a,ks],4)}, {acc}")
            if ks == 3: pend += [(x, pos[0] + 12) for x in epi(j)]
            for r in extra.get(j, [])[2*ks:2*ks+2]: emit(r)
            n = 0
            while pend and n < 9 and pend[0][1] <= pos[0]:
                emit(pend.pop(0)[0]); n += 1
    stamp(2, 0, P_WS, 24)
    while pend:
        if pend[0][1] > pos[0]:
            d = pend[0][1] - pos[0]; e(f"s_nop {d-1}"); pos[0] += d
        emit(pend.pop(0)[0])
    if XV == 2: e("s_barrier")
    e("s_waitcnt vmcnt(0)" if OPT("nost") else "s_waitcnt vmcnt(16)")
    tag_get(4, 20)
    e("s_waitcnt vmcnt(0)")
    publish(68, 20)
    if OPT("hpf"):
        e(f"buffer_load_dword v100, v28, {sr(SH,4)}, 0 offen sc1")
        e(f"buffer_load_dword v101, v28, {sr(SH,4)}, s66 offen sc1")
    stamp(3, 0, P_WS, 24)
    if XV == 1: e("s_barrier")
    e("s_branch Lp2_aux")

PITCH = 528
CR_SZ = 59*PITCH
R_OFF = 32*PITCH
RG = 40960
UB = CR_SZ
US = 4576
LDS1 = 4*RG

def exp_acc(dst, x, t0, t1):
    e(f"v_mul_f32 v{t0}, s70, v{x}")
    e(f"v_fma_f32 v{t1}, v{x}, s70, -v{t0}")
    e(f"v_exp_f32 v{dst}, v{t0}")
    e(f"v_fmac_f32 v{t1}, {f32(L_LO)}, v{x}")
    e(f"v_mul_f32 v{t1}, {f32(LN2)}, v{t1}")
    e(f"v_fmac_f32 v{dst}, v{dst}, v{t1}")

def cexp(dr, di, zr2, zi2, p, t):
    if p == 1:
        e(f"v_exp_f32 v{t}, v{zr2}")
        e(f"v_fract_f32 v{di}, v{zi2}")
    else:
        e(f"v_mul_f32 v{t}, {f32(p)}, v{zr2}")
        e(f"v_mul_f32 v{di}, {f32(p)}, v{zi2}")
        e(f"v_exp_f32 v{t}, v{t}")
        e(f"v_fract_f32 v{di}, v{di}")
    e(f"v_cos_f32 v{dr}, v{di}")
    e(f"v_sin_f32 v{di}, v{di}")
    e(f"v_mul_f32 v{dr}, v{dr}, v{t}")
    e(f"v_mul_f32 v{di}, v{di}, v{t}")

def p2(r): return f"v[{r}:{r+1}]"
def cmulp(d, x, en, t):
    e(f"v_pk_mul_f32 {p2(t)}, {p2(x+2)}, {p2(en+2)}")
    e(f"v_pk_mul_f32 {p2(t+2)}, {p2(x+2)}, {p2(en)}")
    e(f"v_pk_fma_f32 {p2(d+2)}, {p2(x)}, {p2(en+2)}, {p2(t+2)}")
    e(f"v_pk_fma_f32 {p2(d)}, {p2(x)}, {p2(en)}, {p2(t)} neg_lo:[0,0,1] neg_hi:[0,0,1]")

CS2 = 4224
def conv():
    SU, SWS, SW2 = 48, 52, 56
    UR = 46
    cm("---- conv role: G = 16*s4 + s5 - 14")
    e("s_sub_u32 s5, s5, 14")
    e("s_lshl_b32 s6, s4, 4"); e("s_add_u32 s6, s6, s5")
    e("s_and_b32 s7, s3, 3")
    e("s_lshl_b32 s8, s6, 2"); e("s_add_u32 s8, s8, s7")
    e("s_lshl_b32 s9, s8, 8")
    e("v_lshl_add_u32 v2, v1, 2, s9")
    e("s_lshr_b32 s10, s8, 1"); e("s_lshl_b32 s10, s10, 2")
    e("s_lshl_b32 s11, s6, 3")
    e(f"s_mul_i32 s12, s7, {RG}")
    e("v_lshl_add_u32 v3, v1, 3, s12")
    e(f"s_mov_b32 s70, {f32(L_HI)}")
    e("s_lshl_b32 s64, s5, 17"); e("s_lshl_b32 s65, s3, 14"); e("s_add_u32 s64, s64, s65"); e("s_add_u32 s64, s64, s11")
    e("v_and_b32 v9, 15, v1"); e("v_lshl_add_u32 v9, v9, 10, s64")
    e("s_waitcnt lgkmcnt(0)")
    stamp(0, 0, P_WS)
    e(f"s_load_dword s13, {sr(P_LDT,2)}, s10")
    e(f"s_load_dwordx2 s[14:15], {sr(P_DSK,2)}, s11")
    e(f"global_load_dword v4, v2, {sr(P_LAR,2)}")
    e(f"global_load_dword v5, v2, {sr(P_AIM,2)}")
    e(f"global_load_dword v6, v2, {sr(P_CR,2)}")
    e(f"global_load_dword v7, v2, {sr(P_CI,2)}")
    e(f"global_load_dword v11, v9, {sr(P_U,2)}")
    srd(SWS, P_WS, WS_USED)
    srd(SU, P_U, 2048*1024)
    e("v_subrev_u32 v8, 256, v0")
    e("v_lshl_add_u32 v9, v8, 13, s11")
    e("v_subrev_u32 v10, 0x400, v9")
    e("s_movk_i32 s64, 4096")
    e("v_and_b32 v20, 31, v1"); e("v_lshrrev_b32 v21, 5, v1")
    e(f"v_mul_u32_u24 v22, {PITCH}, v20")
    e("v_lshl_add_u32 v22, v21, 4, v22")
    e("v_add_u32 v22, s12, v22")
    e("v_mov_b32 v23, v20")
    for thr in (11, 12, 15, 19, 23):
        e(f"v_cmp_le_u32 vcc, {thr}, v20")
        e("s_nop 1")
        e("v_subbrev_co_u32 v23, vcc, 0, v23, vcc")
    e(f"v_mul_u32_u24 v23, {PITCH}, v23")
    e("v_lshl_add_u32 v23, v21, 4, v23")
    e(f"s_add_u32 s66, s12, {R_OFF}")
    e("v_add_u32 v23, s66, v23")
    e("s_waitcnt lgkmcnt(0)")
    e("s_bitcmp1_b32 s8, 0")
    e("s_cselect_b32 s65, 0, 16")
    e("s_lshl_b32 s13, s13, s65")
    e("s_and_b32 s13, s13, 0xffff0000")
    e("v_mov_b32 v12, s13")
    exp_acc(13, 12, 14, 15)
    e("v_cvt_pk_bf16_f32 v13, v13, v13")
    e("v_and_b32 v13, 0xffff0000, v13")
    e("s_waitcnt vmcnt(3)")
    stamp(6, 0, P_WS)
    e("v_lshlrev_b32 v16, 16, v4"); e("v_and_b32 v17, 0xffff0000, v4")
    exp_acc(18, 16, 14, 15); exp_acc(19, 17, 24, 25)
    e("v_cvt_pk_bf16_f32 v18, v18, v19")
    e("v_lshlrev_b32 v16, 16, v18"); e("v_and_b32 v17, 0xffff0000, v18")
    e("v_lshlrev_b32 v18, 16, v5"); e("v_and_b32 v19, 0xffff0000, v5")
    for r in range(16, 20): e(f"v_mul_f32 v{r}, v{r}, v13")
    e(f"v_mul_f32 v16, {f32(-LOG2E)}, v16"); e(f"v_mul_f32 v17, {f32(-LOG2E)}, v17")
    e("v_mul_f32 v18, 0.15915494, v18"); e("v_mul_f32 v19, 0.15915494, v19")
    e("s_cmp_lt_u32 s3, 4")
    e("s_cbranch_scc0 Lc_rwave")
    ROLE[0] = 1
    E = 24; X = 28; T = 32; PK = 40
    cexp(E, E+2, 16, 18, 8, T); cexp(E+1, E+3, 17, 19, 8, T+1)
    e(f"v_mov_b32 v{X}, 1.0"); e(f"v_mov_b32 v{X+1}, 1.0"); e(f"v_mov_b32 v{X+2}, 0"); e(f"v_mov_b32 v{X+3}, 0")
    e("s_mov_b32 s66, 0")
    lab("Lc_lgen")
    for k in range(4):
        pk = PK + 2*k
        e(f"v_cvt_pk_bf16_f32 v{pk}, v{X}, v{X+2}")
        e(f"v_cvt_pk_bf16_f32 v{pk+1}, v{X+1}, v{X+3}")
        cmulp(X, X, E, T)
        e(f"ds_write_b64 v3, {vr(pk,2)} offset:{k*PITCH}")
    e(f"v_add_u32 v3, {4*PITCH}, v3")
    e("s_add_u32 s66, s66, 1"); e("s_cmp_lt_u32 s66, 8"); e("s_cbranch_scc1 Lc_lgen")
    e("s_waitcnt vmcnt(0)")
    e("v_and_b32 v4, 1, v1"); e("v_xor_b32 v4, 1, v4"); e(f"v_mul_u32_u24 v4, {CS2}, v4")
    e("v_bfe_u32 v5, v1, 1, 1"); e("v_lshl_add_u32 v4, v5, 3, v4")
    e("v_bfe_u32 v5, v1, 2, 2"); e("v_lshrrev_b32 v6, 4, v1"); e("v_add_u32 v5, v5, v6")
    e("v_lshl_add_u32 v4, v5, 4, v4"); e("s_add_u32 s66, s12, 8"); e("v_add_u32 v4, s66, v4")
    e("v_and_b32 v5, 1, v1"); e(f"v_mul_u32_u24 v5, {US}, v5")
    e("v_bfe_u32 v7, v1, 1, 3"); e("v_lshlrev_b32 v8, 2, v7"); e("v_sub_u32 v8, v8, v6")
    e("v_lshl_add_u32 v5, v8, 4, v5")
    e(f"s_add_u32 s66, s12, {UB+448+48}")
    e("v_add_u32 v5, s66, v5")
    e("v_mul_u32_u24 v8, 272, v6"); e("v_and_b32 v9, 15, v1"); e("v_lshl_add_u32 v8, v9, 4, v8"); e("v_add_u32 v8, s12, v8")
    e("v_lshl_add_u32 v10, v1, 4, s12")
    e("v_bfe_u32 v12, v1, 4, 1"); e(f"v_mul_u32_u24 v12, {CS2}, v12"); e("v_lshl_add_u32 v12, v9, 2, v12"); e("v_add_u32 v12, s12, v12")
    e("v_mov_b32 v13, 0")
    e("v_and_b32 v14, 1, v1"); e("v_cmp_eq_u32 vcc, 0, v14")
    e("s_waitcnt lgkmcnt(0)")
    stamp(7, 0, P_WS)
    e("s_barrier")
    stamp(1, 0, P_WS)
    FR = 64; KA = 192
    def krd(ks):
        e(f"ds_read_b128 {vr(FR+8*ks,4)}, v23 offset:{32*ks}")
        e(f"ds_read_b128 {vr(FR+8*ks+4,4)}, v22 offset:{32*ks}")
    for ks in range(6): krd(ks)
    ACC = 24
    for ks in range(16):
        if ks + 6 < 16: krd(ks+6)
        e(f"s_waitcnt lgkmcnt({2*min(6, 15-ks)})")
        e(f"v_mfma_f32_32x32x16_bf16 {vr(KA,16)}, {vr(FR+8*ks,4)}, {vr(FR+8*ks+4,4)}, {'0' if ks == 0 else vr(KA,16)}")
        for r in range(2): e(f"v_mov_b32 v{ACC+2*ks+r}, 0")
    stamp(5, 0, P_WS)
    e("ds_write_b32 v12, v13")
    e("s_nop 7"); e("s_nop 1")
    D = 64; S = 80; k = KA
    e(f"v_cndmask_b32 v14, v{k+13}, v{k+12}, vcc")
    e(f"v_cndmask_b32 v15, v{k+15}, v{k+14}, vcc")
    pk = [(k,k+1),(k+2,k+3),(k+4,k+4),(k+5,k+6),
          (k+8,k+8),(k+8,k+9),(k+9,k+9),(k+10,k+10),
          (k+12,k+12),(k+12,k+12),(14,k+13),(k+13,k+13),
          (k+14,k+14),(k+14,k+14),(15,k+15),(k+15,k+15)]
    for i, (a, b) in enumerate(pk):
        e(f"v_cvt_pk_bf16_f32 v{D+i}, v{a}, v{b}")
        if i == 7:
            e(f"v_permlane32_swap_b32 v{D}, v{D+2}"); e(f"v_permlane32_swap_b32 v{D+1}, v{D+3}")
            e(f"ds_write_b128 v10, {vr(D+4,4)} offset:{64+1024}")
            e(f"ds_write_b128 v10, {vr(D,4)} offset:64")
        if i == 11: e(f"ds_write_b128 v10, {vr(D+8,4)} offset:{64+2048}")
    e(f"ds_write_b128 v10, {vr(D+12,4)} offset:{64+3072}")
    e(f"v_mov_b32 v{S}, 0")
    for q in range(1, 4): e(f"v_mov_b32_dpp v{S+4*q}, v{D+4*q-1} wave_ror:1 row_mask:0xf bank_mask:0xf")
    for q in range(4):
        for j in range(3): e(f"v_mov_b32 v{S+4*q+1+j}, v{D+4*q+j}")
        e(f"v_mov_b32_dpp v{S+4*q}, v{D+4*q+3} wave_shr:1 row_mask:0xf bank_mask:0xf")
        e(f"ds_write_b128 v10, {vr(S+4*q,4)} offset:{CS2+64+1024*q}")
    FQ = [64, 128]
    e("s_waitcnt lgkmcnt(0)")
    stamp(4, 0, P_WS)
    e("s_barrier")
    stamp(2, 0, P_WS)
    def crl(fs):
        L = []
        for i in range(8):
            L.append(f"ds_read_b128 {vr(fs+32+4*i,4)}, v5 offset:{512*i}")
            L.append(f"ds_read_b64 {vr(fs+4*i,2)}, v4 offset:{512*i}")
            L.append(f"ds_read_b64 {vr(fs+4*i+2,2)}, v4 offset:{512*i+8}")
        return L
    for r in crl(FQ[0]): e(r)
    e("v_add_u32 v4, 64, v4"); e("v_subrev_u32 v5, 64, v5")
    e("s_mov_b32 s66, 0")
    lab("Lc_loop")
    for half in range(2):
        cur, nxt = FQ[half], FQ[1-half]
        e("s_waitcnt lgkmcnt(0)")
        rl = crl(nxt)
        n = 0
        for i in range(8):
            for j in range(8 - i):
                acc = vr(ACC+4*(i+j), 4)
                e(f"v_mfma_f32_16x16x32_bf16 {acc}, {vr(cur+4*i,4)}, {vr(cur+32+4*j,4)}, {acc}")
                if n < 24: e(rl[n])
                if n == 24: e("v_add_u32 v4, 64, v4")
                if n == 25: e("v_subrev_u32 v5, 64, v5")
                if n == 26 and half == 1: e("s_add_u32 s66, s66, 1")
                if n == 27 and half == 1: e("s_cmp_lt_u32 s66, 4")
                n += 1
    e("s_cbranch_scc1 Lc_loop")
    e("s_waitcnt lgkmcnt(0)")
    stamp(3, 0, P_WS)
    for t in range(8):
        if t == 6: e("s_nop 1")
        e(f"ds_write_b128 v8, {vr(ACC+4*t,4)} offset:{1088*t}")
    tag_issue(4)
    e("s_waitcnt lgkmcnt(0)")
    e("s_barrier")
    p2_map(3)
    e("s_waitcnt vmcnt(0)")
    tag_get(4, 20)
    e("s_branch Lp2_aux")
    lab("Lc_rwave")
    ROLE[0] = 2
    E1 = 24; E256 = 28; T = 32; PK = 88
    R = {0: 64, 2: 68, 4: 72, 6: 76, 8: 80}; TMP = 84
    def uload(r):
        e(f"buffer_load_dwordx2 {vr(UR+2+2*r,2)}, v9, {sr(SU,4)}, {'0' if r < 4 else 's64'} offen offset:{1024*(r&3)}")
    e("s_waitcnt vmcnt(1)" if not STAMP else "s_waitcnt vmcnt(2)")
    e("v_add_f32 v13, v13, v13")
    e(f"v_lshlrev_b32 v{R[0]}, 16, v6"); e(f"v_and_b32 v{R[0]+1}, 0xffff0000, v6")
    e(f"v_lshlrev_b32 v{R[0]+2}, 16, v7"); e(f"v_and_b32 v{R[0]+3}, 0xffff0000, v7")
    e("s_mov_b64 exec, 1")
    e(f"buffer_load_dwordx2 {vr(UR,2)}, v10, {sr(SU,4)}, 0 offen")
    e("s_mov_b64 exec, -1")
    uload(0)
    cexp(E1, E1+2, 16, 18, 1, T); cexp(E1+1, E1+3, 17, 19, 1, T+1)
    cexp(E256, E256+2, 16, 18, 256, T); cexp(E256+1, E256+3, 17, 19, 256, T+1)
    for r in range(4): e(f"v_mul_f32 v{R[0]+r}, v{R[0]+r}, v13")
    cnt = [0]
    def putr(x, srow):
        pk = PK + 2*(cnt[0] % 4); cnt[0] += 1
        e(f"v_cvt_pk_bf16_f32 v{pk}, v{x}, -v{x+2}")
        e(f"v_cvt_pk_bf16_f32 v{pk+1}, v{x+1}, -v{x+3}")
        e(f"ds_write_b64 v3, {vr(pk,2)} offset:{R_OFF+srow*PITCH}")
        if cnt[0] in (3, 11, 19, 27): uload(1 + (cnt[0]-3)//8)
    putr(R[0], 0)
    cur = R[0]
    for p in range(1, 9):
        nx = R[p] if p in R else TMP
        cmulp(nx, cur, E1, T)
        if p < 8: putr(nx, p)
        cur = nx
    for xs, sr0 in (([0,2,4,6,8], 8), ([0,4,8], 13), ([0,4,8], 16), ([0,8], 19), ([0,8], 23), ([0,8], 21), ([0,8], 25)):
        for i, x in enumerate(xs):
            cmulp(R[x], R[x], E256, T)
            putr(R[x], sr0 + i)
    e("s_waitcnt lgkmcnt(0)")
    stamp(7, 0, P_WS)
    e("s_barrier")
    for r in range(5, 8): uload(r)
    stamp(1, 0, P_WS)
    e("s_mov_b32 s66, 0x05040100"); e("s_mov_b32 s67, 0x07060302")
    e("v_bfe_u32 v4, v8, 5, 1"); e(f"v_mul_u32_u24 v4, {US}, v4"); e("v_add_u32 v4, s12, v4")
    e("v_and_b32 v5, 31, v8"); e("v_min_u32 v5, 27, v5"); e("v_lshl_add_u32 v4, v5, 4, v4")
    for r in range(4): e(f"v_mov_b32 v{24+r}, 0")
    e(f"v_add_u32 v4, {UB}, v4")
    e(f"ds_write_b128 v4, {vr(24,4)}")
    e("v_lshlrev_b32 v4, 4, v8"); e(f"v_add_u32 v4, {UB+448}, v4"); e(f"v_add_u32 v5, {2*RG}, v4")
    p2_setup(False, VW0, VW1, VT, 6)
    e("s_waitcnt vmcnt(0)")
    stamp(3, 0, P_WS)
    for hh in range(2): e(f"v_mov_b32_dpp v{UR+hh}, v{UR+16+hh} wave_shr:1 row_mask:0xf bank_mask:0xf")
    def row(r, c): return UR + 2 + 2*r + (c >> 1)
    k = 0
    for c in range(4):
        sel = "s67" if c & 1 else "s66"
        for b0 in (1, 0):
            d = 64 + 4*(k % 4); k += 1
            top = 7 if b0 else 6
            for i in range(4):
                e(f"v_perm_b32 v{d+i}, v{row(top-2*i-1,c)}, v{row(top-2*i,c)}, {sel}")
            e(f"ds_write_b128 v{4 + (c >> 1)}, {vr(d,4)} offset:{(c&1)*RG+b0*US}")
    e("s_waitcnt lgkmcnt(0)")
    e("s_barrier")
    stamp(2, 0, P_WS)
    def mid():
        tag_issue(7)
        e("s_waitcnt vmcnt(0)")
        tag_get(7, 20)
    wpre_conv(mid)
    e("s_lshl_b32 s72, s14, 16"); e("s_and_b32 s73, s14, 0xffff0000")
    e("s_lshl_b32 s74, s15, 16"); e("s_and_b32 s75, s15, 0xffff0000")
    UF = 64
    for r in range(8):
        for hh in range(2):
            e(f"v_lshlrev_b32 v{UF+4*r+2*hh}, 16, v{UR+2+2*r+hh}")
            e(f"v_and_b32 v{UF+4*r+2*hh+1}, 0xffff0000, v{UR+2+2*r+hh}")
    e("v_lshrrev_b32 v4, 5, v8"); e("v_mul_u32_u24 v4, 1088, v4")
    e("v_and_b32 v5, 3, v8"); e("v_mul_u32_u24 v5, 272, v5")
    e("v_bfe_u32 v6, v8, 2, 3"); e("v_lshl_add_u32 v4, v6, 5, v4"); e("v_add_u32 v4, v4, v5")
    e(f"v_add_u32 v5, {2*RG}, v4")
    e("v_lshlrev_b32 v6, 4, v8")
    e("s_lshl_b32 s68, s6, 14"); e(f"s_add_u32 s68, s68, {A4_OFF}")
    for i in range(1, 4): e(f"s_add_u32 s{68+i}, s68, {4096*i}")
    e("s_lshl_b32 s64, s7, 9"); e("s_lshl_b32 s65, s6, 2"); e("s_add_u32 s64, s64, s65"); e(f"s_lshl_b32 s64, s64, {FS}"); e(f"s_add_u32 s64, s64, {FC_OFF}")
    e("s_barrier")
    stamp(4, 0, P_WS)
    Y = 96
    for c in range(4):
        for b0 in range(2):
            e(f"ds_read_b128 {vr(Y+8*c+4*b0,4)}, v{4 if c < 2 else 5} offset:{(c&1)*RG+16*b0}")
    for c in range(4):
        e(f"s_waitcnt lgkmcnt({6-2*c})")
        for l in range(8):
            e(f"v_fma_f32 v{UF+4*l+c}, v{UF+4*l+c}, s{72+c}, v{Y+8*c+4*(l&1)+(l>>1)}")
    O = 16
    for l in range(8):
        for hh in range(2): e(f"v_cvt_pk_bf16_f32 v{O+2*l+hh}, v{UF+4*l+2*hh}, v{UF+4*l+2*hh+1}")
    for i in range(4): e(f"buffer_store_dwordx4 {vr(O+4*i,4)}, v6, {sr(SWS,4)}, s{68+i} offen{SC1A}")
    e("s_waitcnt vmcnt(0)")
    publish(64, 4)
    if XV: wdma(18, 5, SB_)
    stamp(5, 0, P_WS)
    e("s_branch Lp2_main")

def idle():
    e("s_cmp_lt_u32 s3, 4")
    e("s_cbranch_scc0 Li_hi")
    p2_map(3)
    e("s_waitcnt lgkmcnt(0)")
    stamp(0, 0, P_WS)
    SU, SWS = 48, 52
    e("v_mov_b32 v4, s3")
    srd(SWS, P_WS, WS_USED)
    srd(SU, P_U, 2048*1024)
    e("s_lshl_b32 s68, s4, 1"); e("s_add_u32 s68, s68, s5"); e("s_sub_u32 s68, s68, 30")
    e("s_lshl_b32 s68, s68, 2"); e("s_add_u32 s68, s68, s3")
    e(f"s_lshl_b32 s64, s68, {2+FS}"); e(f"s_add_u32 s64, s64, {FG_OFF}")
    e("s_lshl_b32 s68, s68, 5")
    tag_get(4, 20)
    lab("Li_gate")
    e("s_lshl_b32 s69, s68, 10"); e("s_add_u32 s71, s69, 4096")
    e("v_lshlrev_b32 v4, 4, v1")
    e(f"global_load_dwordx4 {vr(96,4)}, v4, {sr(P_GW,2)}")
    for r in range(8):
        e(f"buffer_load_dwordx4 {vr(64+4*r,4)}, v4, {sr(SU,4)}, {'s69' if r < 4 else 's71'} offen offset:{1024*(r&3)}")
    e("s_waitcnt vmcnt(8)")
    for i in range(4):
        e(f"v_lshlrev_b32 v{100+2*i}, 16, v{96+i}"); e(f"v_and_b32 v{100+2*i+1}, 0xffff0000, v{96+i}")
    for r in range(8):
        e(f"s_waitcnt vmcnt({7-r})")
        for i in range(4):
            e(f"v_lshlrev_b32 v{110+2*i}, 16, v{64+4*r+i}"); e(f"v_and_b32 v{110+2*i+1}, 0xffff0000, v{64+4*r+i}")
        for i in range(8): e(f"v_mul_f32 v{110+i}, v{110+i}, v{100+i}")
        for i in range(4): e(f"v_cvt_pk_bf16_f32 v{120+i}, v{110+2*i}, v{110+2*i+1}")
        for i in range(4):
            e(f"v_lshlrev_b32 v{110+2*i}, 16, v{120+i}"); e(f"v_and_b32 v{110+2*i+1}, 0xffff0000, v{120+i}")
        for i in range(4): e(f"v_add_f32 v{110+i}, v{110+i}, v{114+i}")
        e("v_add_f32 v110, v110, v112"); e("v_add_f32 v111, v111, v113")
        e(f"v_add_f32 v{24+r}, v110, v111")
    for dpp in ("quad_perm:[1,0,3,2] row_mask:0xf", "quad_perm:[2,3,0,1] row_mask:0xf", "row_half_mirror row_mask:0xf",
                "row_mirror row_mask:0xf", "row_bcast:15 row_mask:0xa", "row_bcast:31 row_mask:0xc"):
        e("s_nop 1")
        for r in range(8): e(f"v_add_f32_dpp v{24+r}, v{24+r}, v{24+r} {dpp} bank_mask:0xf")
    e("s_nop 1")
    for r in range(8): e(f"v_readlane_b32 s{56+r}, v{24+r}, 63")
    e("s_nop 3")
    for r in range(8): e(f"v_writelane_b32 v32, s{56+r}, {r}")
    e("s_nop 1")
    e("v_cvt_pk_bf16_f32 v32, v32, v32"); e("v_and_b32 v32, 0xffff0000, v32")
    e(f"v_mul_f32 v32, {f32(-LOG2E)}, v32")
    e("v_exp_f32 v32, v32"); e("s_nop 0"); e("v_add_f32 v32, 1.0, v32"); e("v_rcp_f32 v32, v32"); e("s_nop 0")
    e("v_cvt_pk_bf16_f32 v32, v32, v32"); e("v_and_b32 v32, 0xffff0000, v32")
    e("v_sub_f32 v33, 1.0, v32")
    e("v_cvt_pk_bf16_f32 v33, v33, v33"); e("v_and_b32 v33, 0xffff0000, v33")
    e("v_lshlrev_b32 v4, 3, v1")
    e("s_lshl_b32 s69, s68, 3"); e(f"s_add_u32 s69, s69, {G_OFF}")
    e("s_mov_b64 exec, 0xff")
    e(f"buffer_store_dwordx2 v[32:33], v4, {sr(SWS,4)}, s69 offen{SC1A}")
    e("s_mov_b64 exec, -1")
    e("s_add_u32 s68, s68, 8"); e("s_and_b32 s69, s68, 31"); e("s_cbranch_scc1 Li_gate")
    tag_issue(4)
    e("s_waitcnt vmcnt(0)")
    tag_get(4, 20)
    publish(64, 4)
    stamp(1, 0, P_WS)
    e("s_branch Lp2_aux")
    lab("Li_hi")
    e("s_waitcnt lgkmcnt(0)")
    p2_setup(False, VW0, VW1, VT, 6)
    if not OPT("nopf"):
        e("s_sub_u32 s68, s2, 240"); e("s_lshl_b32 s68, s68, 2"); e("s_add_u32 s68, s68, s3"); e("s_sub_u32 s68, s68, 4")
        e(f"s_mul_i32 s68, s68, {224*128}")
        e("v_lshlrev_b32 v4, 7, v1")
        for t in range(4):
            e(f"buffer_load_dword v{244+t}, v4, {sr(SW2P,4)}, s68 offen")
            if t < 3: e("s_add_u32 s68, s68, 8192")
    wpre_conv(lambda: e("s_waitcnt vmcnt(0)"))
    if XV: wdma(18, 5, SB_)
    e("s_branch Lp2_main")

def gemm2():
    ROLE[0] = 0
    SWS, SO, SB2 = 48, 52, 56
    def ids(q):
        e("s_lshr_b32 s6, s2, 6"); e("s_lshl_b32 s7, s4, 2"); e("s_add_u32 s6, s6, s7")
        e("s_bfe_u32 s7, s2, 0x30003")
        e(f"s_lshr_b32 s11, s{q}, 1"); e(f"s_and_b32 s12, s{q}, 1")
        e("s_lshl_b32 s13, s6, 1"); e("s_add_u32 s13, s13, s12"); e("s_lshl_b32 s13, s13, 5")
        e("s_lshl_b32 s14, s7, 1"); e("s_add_u32 s14, s14, s11"); e("s_lshl_b32 s14, s14, 5")
        e("v_and_b32 v7, 31, v1"); e("v_lshrrev_b32 v8, 5, v1")
        e("v_add_u32 v7, s13, v7")
        e("s_lshl_b32 s72, s14, 1")
        e("v_lshlrev_b32 v2, 4, v1")
        srd(SWS, P_WS, WS_USED)
    lab("Lp2_aux")
    ids(3)
    srd(SB2, P_B2, 1024)
    EP = 16
    e("v_lshl_add_u32 v11, v8, 3, s72")
    for j in range(4): e(f"buffer_load_dwordx2 {vr(EP+8+2*j,2)}, v11, {sr(SB2,4)}, 0 offen offset:{16*j}")
    e("v_lshlrev_b32 v9, 3, v7")
    e("v_bfe_u32 v10, v7, 1, 2"); e("v_lshl_add_u32 v10, v8, 2, v10"); e("v_lshlrev_b32 v10, 12, v10")
    e("v_lshrrev_b32 v11, 3, v7"); e("v_lshl_add_u32 v10, v11, 4, v10"); e("v_and_b32 v11, 1, v7"); e("v_lshl_add_u32 v10, v11, 3, v10")
    e("s_lshl_b32 s15, s14, 12"); e(f"s_add_u32 s15, s15, {A4_OFF}")
    e("s_add_u32 s68, s15, 32768"); e("s_add_u32 s69, s68, 32768"); e("s_add_u32 s70, s69, 32768")
    e(f"s_mov_b32 s71, {G_OFF}")
    e("s_lshr_b32 s73, s6, 3"); e("s_lshl_b32 s73, s73, 9"); e("s_add_u32 s73, s73, s14"); e(f"s_lshl_b32 s73, s73, {FS}"); e(f"s_add_u32 s73, s73, {FC_OFF}")
    e("v_and_b32 v3, 7, v1"); e(f"v_lshl_add_u32 v3, v3, {2+FS}, s73")
    e("s_lshr_b32 s73, s13, 3"); e(f"s_lshl_b32 s73, s73, {FS}"); e(f"s_add_u32 s73, s73, {FG_OFF}")
    e("v_mov_b32 v4, s73")
    e("v_cmp_gt_u32 vcc, 32, v1")
    e(f"v_add_u32 v12, s{ST_}, v2"); e(f"v_lshl_add_u32 v13, v1, 2, s{ST_}")
    e("v_cndmask_b32 v3, v4, v3, vcc")
    e("s_cmp_lg_u32 s3, 0"); e("s_cbranch_scc1 Lp2_nopoll")
    e("s_lshr_b32 s73, s6, 1"); e(f"s_lshl_b32 s73, s73, {7+FS}"); e(f"s_add_u32 s73, s73, {FH_OFF}")
    e("v_min_u32 v5, 27, v1"); e(f"v_lshl_add_u32 v5, v5, {2+FS}, s73")
    poll(5, 4)
    lab("Lp2_nopoll")
    e("s_barrier")
    stamp(0, 1, P_WS)
    poll(3, 4)
    stamp(1, 1, P_WS)
    for j, so in enumerate(("s15", "s68", "s69", "s70")):
        e(f"buffer_load_dwordx2 {vr(EP+2*j,2)}, v10, {sr(SWS,4)}, {so} offen sc1")
    e(f"buffer_load_dwordx2 {vr(EP+16,2)}, v9, {sr(SWS,4)}, s71 offen sc1")
    AF = 40; BF = 56
    for i in range(8):
        e(f"v_lshlrev_b32 v{BF+2*i}, 16, v{EP+8+i}"); e(f"v_and_b32 v{BF+2*i+1}, 0xffff0000, v{EP+8+i}")
    e("s_waitcnt vmcnt(0)")
    for i in range(8):
        e(f"v_lshlrev_b32 v{AF+2*i}, 16, v{EP+i}"); e(f"v_and_b32 v{AF+2*i+1}, 0xffff0000, v{EP+i}")
    for i in range(16): e(f"v_mul_f32 v{AF+i}, v{AF+i}, v{EP+16}")
    for i in range(16): e(f"v_fmac_f32 v{AF+i}, v{BF+i}, v{EP+17}")
    for r in range(4): e(f"ds_write_b128 v12, {vr(AF+4*r,4)} offset:{1024*r}")
    e(f"ds_write_b32 v13, v{EP+17} offset:4096")
    e("s_waitcnt lgkmcnt(0)")
    stamp(2, 1, P_WS)
    e("s_barrier")
    e("s_endpgm")
    lab("Lp2_main")
    e("s_sub_u32 s10, s3, 4")
    ids(10)
    srd(SO, P_OUT, 2048*1024)
    e(f"s_mul_i32 s8, s10, {28*1024}")
    e(f"s_mul_i32 s9, s6, {2*112*1024}"); e("s_add_u32 s9, s9, s8")
    e(f"s_mul_i32 s13, s12, {112*1024}"); e(f"s_sub_u32 s14, {112*1024}, s13")
    e("s_add_u32 s13, s13, s9"); e("s_add_u32 s14, s14, s9")
    e("v_add_u32 v3, s13, v2"); e("v_add_u32 v4, s14, v2")
    e("v_lshlrev_b32 v12, 10, v7"); e("v_lshl_add_u32 v12, v8, 4, v12"); e("v_add_u32 v12, s72, v12")
    e(f"v_add_u32 v14, s{SA_}, v2")
    for t in range(1, 4):
        e(f"s_xor_b32 s14, s10, {t}"); e("s_mul_i32 s14, s14, 40960"); e("s_add_u32 s14, s14, 8704"); e(f"v_add_u32 v{6+t}, s14, v2")
    e(f"v_add_u32 v10, s{SA_}, v{VT}"); e("v_xor_b32 v11, 64, v10")
    e(f"v_add_u32 v2, s{ST_}, v2"); e(f"v_lshl_add_u32 v13, v1, 2, s{ST_}")
    stamp(0, 1, P_WS)
    e("s_barrier")
    stamp(1, 1, P_WS)
    hist = []
    def loads(s):
        fs = HREG[s % HD]
        for a in range(2):
            e(f"buffer_load_dwordx4 {vr(fs+4*a,4)}, v{3+a}, {sr(SWS,4)}, s{SG + s//4} offen offset:{1024*(s&3)}{HL}")
            hist.append(('h', s))
    def younger(k): return len(hist) - 1 - max(i for i, x in enumerate(hist) if x == k)
    def wrd(s):
        slot = s - 8 if s < 23 else s - 23
        for b in range(2):
            for u in range(2):
                e(f"ds_read_b64_tr_b16 {vr(WD+8*(s&1)+4*b+2*u,2)}, v{10+b} offset:{2048*slot+1024*u}")
    if not XV:
        e("s_cmp_ge_u32 s2, 112"); e("s_cbranch_scc1 Lp2_have")
        wdma(8, 10, SA_)
        lab("Lp2_have")
    for s in range(HD): loads(s)
    for s in range(28):
        n = younger(('h', s))
        if s + 1 >= (23 if XV else 18) and s + 1 < 28: n = min(n, younger(('w', s+1)))
        e(f"s_waitcnt vmcnt({n})")
        if 8 <= s + 1 < 28: wrd(s+1)
        if s >= 8: e(f"s_waitcnt lgkmcnt({4 if s < 27 else 0})")
        fs = HREG[s % HD]; wf = WR + 8*s if s < 8 else WD + 8*(s & 1)
        for b in range(2):
            for a in range(2):
                acc = vr(AC2+32*b+16*a, 16)
                e(f"v_mfma_f32_32x32x16_bf16 {acc}, {vr(wf+4*b,4)}, {vr(fs+4*a,4)}, {'0' if s == 0 else acc}")
        if s + HD < 28: loads(s + HD)
        if 2 <= s < 7 and not XV:
            wdma(s + 16, 1, SA_, slot0=s+8); hist += [('w', s+16)]*2
        if 8 <= s < 13:
            wdma(s + 15, 1, SA_, slot0=s-8); hist += [('w', s+15)]*2
    stamp(2, 1, P_WS, 200)
    e("s_nop 7"); e("s_nop 1")
    for t in range(1, 4):
        for r in range(4):
            e(f"ds_write_b128 v14, {vr(AC2+16*t+4*r,4)} offset:{(t-1)*4096+r*1024}")
    e("s_waitcnt lgkmcnt(0)")
    e("s_barrier")
    stamp(3, 1, P_WS, 200)
    P = 128
    for t in range(3):
        for r in range(4): e(f"ds_read_b128 {vr(P+16*t+4*r,4)}, v{7+t} offset:{t*4096+r*1024}")
    e("s_waitcnt lgkmcnt(8)")
    for r in range(4): e(f"ds_read_b128 {vr(P+48+4*r,4)}, v2 offset:{r*1024}")
    e(f"ds_read_b32 v6, v13 offset:4096")
    for t in range(3):
        if t: e(f"s_waitcnt lgkmcnt({13-4*t})")
        for i in range(8): e(f"v_pk_add_f32 {p2(AC2+2*i)}, {p2(AC2+2*i)}, {p2(P+16*t+2*i)}")
    e("s_waitcnt lgkmcnt(0)")
    for i in range(16): e(f"v_fmac_f32 v{P+48+i}, v{AC2+i}, v6")
    O = 16
    for i in range(8): e(f"v_cvt_pk_bf16_f32 v{O+i}, v{P+48+2*i}, v{P+48+2*i+1}")
    e("s_nop 1")
    for jj in range(2):
        e(f"v_permlane32_swap_b32 v{O+4*jj}, v{O+4*jj+2}")
        e(f"v_permlane32_swap_b32 v{O+4*jj+1}, v{O+4*jj+3}")
    for jj in range(2):
        e(f"buffer_store_dwordx4 {vr(O+4*jj,4)}, v12, {sr(SO,4)}, 0 offen offset:{32*jj}")
    if STAMP:
        e("s_waitcnt vmcnt(0)")
        stamp(4, 1, P_WS, 200)
        for i in range(2):
            e(f"v_mov_b32 v200, s{56+2*i}"); e("v_add_u32 v202, 8, v202")
            e(f"global_store_dwordx2 v202, v[200:201], s[{P_WS}:{P_WS+1}]"); e("s_nop 1")
    e("s_endpgm")

def kd(name, vgpr, accum):
    out.append(f""".amdhsa_kernel {name}
  .amdhsa_next_free_vgpr {vgpr}
  .amdhsa_next_free_sgpr 102
  .amdhsa_accum_offset {accum}
  .amdhsa_group_segment_fixed_size 0
  .amdhsa_kernarg_size 128
  .amdhsa_user_sgpr_count 2
  .amdhsa_user_sgpr_kernarg_segment_ptr 1
  .amdhsa_system_sgpr_workgroup_id_x 1
.end_amdhsa_kernel""")

hdr = open(f"cdna_kernels/{NAME}.s.ref").read().splitlines()
for l in hdr:
    if l.startswith(";") and "@launch" not in l and "Override" not in l and "Harness parses" not in l: out.append(l)
K1 = "gmix_a_kernel" if OPT("ll") or STAMP else NAME + "_kernel"
out.append(f"; @launch {'kernel='+K1+' ' if OPT('ll') or STAMP else ''}grid=(256,1,1) block=(512,1,1) lds={LDS1}")
out.append('.amdgcn_target "amdgcn-amd-amdhsa--gfx950"')
out.append(".text")
out.append(f".globl {K1}")
out.append(".p2align 8"); out.append(f".type {K1},@function"); lab(K1)
EXIT = "La_exit"
prologue(256)
e("s_cmp_ge_u32 s5, 30")
e("s_cbranch_scc1 La_idle")
e("s_cmp_ge_u32 s5, 14")
e("s_cbranch_scc1 La_conv")
gemm1()
lab("La_conv")
conv()
lab("La_idle")
idle()
gemm2()
lab(EXIT); e("s_endpgm")
out.append('.section .rodata,"a"'); out.append(".p2align 6")
kd(K1, 256, 256)
dst = [a for a in sys.argv[1:] if not a.startswith("--")]
open(dst[0] if dst else f"cdna_kernels/{NAME}.s", "w").write("\n".join(out) + "\n")
```

```python
import sys, struct
NAME = "gated_mix__ssm_conv_s4d__dense_activation_squared_relu__prompt"
STAMP = "--stamp" in sys.argv or "--dbg" in sys.argv

OPT = lambda k: ("--"+k) in sys.argv
SC1A = "" if OPT("nosc1") else " sc1"
SC1H = "" if OPT("nosc1") or OPT("hpl") else " sc1"
NTW1 = " nt" if OPT("ntw1") else ""
DEP = int(([a[6:] for a in sys.argv if a.startswith("--dep=")] + ["5"])[0])
HF_OFF = 0
HF_SZ = 64*112*1024
WF_OFF = HF_SZ
WF_SZ = 16*112*1024
A4_OFF = WF_OFF + WF_SZ
A4_SZ = 128*2048*8
G_OFF = A4_OFF + A4_SZ
G_SZ = 2048*8
FH_OFF = G_OFF + G_SZ
FS = int(([a[5:] for a in sys.argv if a.startswith('--fs=')] + ['5'])[0])
FC_OFF = FH_OFF + (2048 << FS)
FG_OFF = FC_OFF + (2048 << FS)
WS_USED = FG_OFF + (256 << FS)
SLP = int(([a[6:] for a in sys.argv if a.startswith("--slp=")] + ["6"])[0])
SPIN = 40000
PFN = int(([a[6:] for a in sys.argv if a.startswith('--pfn=')] + ['0'])[0])
HL = '' if OPT('hplain') else ' nt' if OPT('hnt') else ' sc1'
XV = int(([a[5:] for a in sys.argv if a.startswith('--xv=')] + ['2'])[0])
ST_OFF = 0x1000000

out = []
def e(s): out.append("    " + s)
def lab(s): out.append(s + ":")
def cm(s): out.append("    ; " + s)
def f32(x): return "0x%08x" % struct.unpack("<I", struct.pack("<f", x))[0]
def vr(a, n): return f"v[{a}:{a+n-1}]"
def ar(a, n): return f"a[{a}:{a+n-1}]"
def sr(a, n): return f"s[{a}:{a+n-1}]"
def srd(d, ptr, size, off=None):
    if off is None:
        e(f"s_mov_b32 s{d}, s{ptr}"); e(f"s_mov_b32 s{d+1}, s{ptr+1}")
    else:
        e(f"s_add_u32 s{d}, s{ptr}, {off}"); e(f"s_addc_u32 s{d+1}, s{ptr+1}, 0")
    e(f"s_mov_b32 s{d+2}, {size}"); e(f"s_mov_b32 s{d+3}, 0x20000")

DBG = "--dbg" in sys.argv
ROLE = [0]
def stamp(idx, kern, wsp, tmp=250):
    if DBG:
        slot = {(0,0):[0,1,2,3], (0,1):[0,4,5,6], (0,2):[0,7,8,9,10,11], (1,0):[12,13,14]}[(kern,ROLE[0])][idx]
        e("s_memrealtime s[96:97]")
        e(f"s_sub_u32 s98, s44, {512*kern}"); e("s_subb_u32 s99, s45, 0")
        e("s_waitcnt lgkmcnt(0)")
        if slot == 0 or slot == 12: e("s_not_b32 s96, s96")
        e(f"v_mov_b32 v{tmp}, s96"); e(f"v_mov_b32 v{tmp+2}, {4*slot}")
        e("s_mov_b64 exec, 1")
        e(f"global_atomic_umax v{tmp+2}, v{tmp}, s[98:99]")
        e("s_mov_b64 exec, -1")
        return
    if not STAMP: return
    e("s_memrealtime s[96:97]")
    e("s_memtime s[100:101]")
    e("s_lshl_b32 s98, s2, 3"); e("s_add_u32 s98, s98, s3"); e("s_lshl_b32 s98, s98, 6")
    e(f"s_add_u32 s98, s98, {ST_OFF + kern*0x40000 + idx*8}")
    e("s_waitcnt lgkmcnt(0)")
    e(f"v_mov_b32 v{tmp}, s96"); e(f"v_mov_b32 v{tmp+1}, s100"); e(f"v_mov_b32 v{tmp+2}, s98")
    e(f"global_store_dwordx2 v{tmp+2}, v[{tmp}:{tmp+1}], s[{wsp}:{wsp+1}]")

P_U, P_LAR, P_AIM, P_CR, P_CI, P_LDT, P_DSK = 16, 18, 20, 22, 24, 26, 28
P_W1, P_B1, P_W2, P_B2, P_GW, P_OUT, P_DBG, P_WS = 32, 34, 36, 38, 40, 42, 44, 46
LOG2E = 1.4426950408889634
L_HI = struct.unpack("<f", struct.pack("<f", LOG2E))[0]
L_LO = LOG2E - L_HI
LN2 = 0.6931471805599453

def prologue(nwg):
    e(f"s_cmp_ge_u32 s2, {nwg}")
    e("s_cbranch_scc1 " + EXIT)
    e("s_load_dwordx16 s[16:31], s[0:1], 0")
    e("s_load_dwordx16 s[32:47], s[0:1], 64")
    e("v_lshrrev_b32 v2, 6, v0")
    e("v_and_b32 v1, 63, v0")
    e("v_readfirstlane_b32 s3, v2")
    e("s_and_b32 s4, s2, 7")
    e("s_lshr_b32 s5, s2, 3")


SG = 80
SA_, SB_, SC_, ST_, SSTR, STAG, SW2P = 87, 88, 89, 90, 78, 79, 92
WR = 128; WD = 240; AC2 = 64
HD = int(([a[5:] for a in sys.argv if a.startswith("--hd=")] + ["5"])[0])
HREG = [16, 24, 32, 48, 56]
VW0, VW1, VT = 44, 45, 43
uid = [0]
def p2_setup(gemm_map, vw0, vw1, vt, t0):
    e("s_sub_u32 s77, s3, 4")
    e("s_bfe_u32 s76, s2, 0x30003")
    e(f"s_mul_i32 s91, s77, {448*1024}"); e("s_lshl_b32 s80, s76, 7"); e("s_add_u32 s91, s91, s80")
    e(f"v_lshrrev_b32 v{vw0}, 3, v1"); e(f"v_lshlrev_b32 v{vw0}, 10, v{vw0}")
    e(f"v_bfe_u32 v{vw1}, v1, 4, 1"); e(f"v_lshlrev_b32 v{vw1}, 2, v{vw1}"); e(f"v_and_b32 v{t0}, 7, v1"); e(f"v_xor_b32 v{vw1}, v{vw1}, v{t0}")
    e(f"v_lshl_add_u32 v{vw0}, v{vw1}, 4, v{vw0}"); e(f"v_add_u32 v{vw0}, s91, v{vw0}"); e(f"v_add_u32 v{vw1}, 0x2000, v{vw0}")
    if OPT("lin"):
        e("s_mul_i32 s91, s76, 229376"); e("s_mul_i32 s80, s77, 57344"); e("s_add_u32 s91, s91, s80")
        e(f"v_lshl_add_u32 v{vw0}, v1, 4, s91"); e(f"v_add_u32 v{vw1}, 0x400, v{vw0}")
    e("s_lshr_b32 s80, s2, 6"); e("s_lshl_b32 s80, s80, 1"); e("s_add_u32 s80, s80, s76")
    e("s_cmp_ge_u32 s80, 7"); e("s_cselect_b32 s81, 7, 0"); e("s_sub_u32 s80, s80, s81")
    e("s_lshl_b32 s80, s80, 12")
    for i in range(1, 7):
        e(f"s_add_u32 s{80+i}, s{79+i}, 4096"); e(f"s_cmp_eq_u32 s{80+i}, {7*4096}"); e(f"s_cselect_b32 s{80+i}, 0, s{80+i}")
    e("s_lshr_b32 s76, s77, 1")
    e(f"v_bfe_u32 v{vt}, v1, 2, 2"); e(f"v_lshrrev_b32 v{t0}, 5, v1"); e(f"v_lshl_add_u32 v{vt}, v{t0}, 2, v{vt}"); e(f"v_lshlrev_b32 v{vt}, 7, v{vt}")
    e(f"v_bfe_u32 v{t0}, v1, 3, 1"); e(f"v_xor_b32 v{t0}, s76, v{t0}"); e(f"v_lshl_add_u32 v{vt}, v{t0}, 6, v{vt}")
    e(f"v_bfe_u32 v{t0}, v1, 4, 1"); e(f"v_lshl_add_u32 v{vt}, v{t0}, 5, v{vt}")
    e(f"v_and_b32 v{t0}, 3, v1"); e(f"v_lshl_add_u32 v{vt}, v{t0}, 3, v{vt}")
    p2_map(77)
    e(f"s_add_u32 s{SA_}, s{ST_}, 8704"); e(f"s_add_u32 s{SB_}, s{ST_}, 29184")
    if gemm_map:
        e(f"s_mul_i32 s{SSTR}, s77, 12288"); e(f"s_add_u32 s{SSTR}, s{SSTR}, 98304")
        e(f"s_lshl_b32 s{SC_}, s77, 12"); e(f"s_add_u32 s{SC_}, s{SC_}, 147456")
    srd(SW2P, P_W2, 1792*1024)
def p2_map(q):
    e(f"s_mul_i32 s{ST_}, s{q}, 40960")
def wdma(s0, n, base, vw0=VW0, vw1=VW1, slot0=0):
    for i in range(n):
        s = s0 + i
        e(f"s_add_u32 m0, s{base}, {2048*(i+slot0)}")
        if i == 0 or s & 3 == 0:
            e(f"s_lshl_b32 s91, s{SG + s//4}, {1 if OPT('lin') else 4}")
            if s & 3: e(f"s_add_u32 s91, s91, {(2048 if OPT('lin') else 16384)*(s&3)}")
        else: e(f"s_add_u32 s91, s91, {2048 if OPT('lin') else 16384}")
        e(f"buffer_load_dwordx4 v{vw0}, {sr(SW2P,4)}, s91 offen lds")
        e("s_add_u32 m0, m0, 1024"); e("s_nop 0")
        e(f"buffer_load_dwordx4 v{vw1}, {sr(SW2P,4)}, s91 offen lds")
def wrd_regs(s0, n, base, vt=VT, slot0=0):
    e(f"v_add_u32 v{WD}, s{base}, v{vt}"); e(f"v_xor_b32 v{WD+1}, 64, v{WD}")
    for i in range(n):
        for b in range(2):
            for u in range(2):
                e(f"ds_read_b64_tr_b16 {vr(WR+8*(s0+i)+4*b+2*u,2)}, v{WD+b} offset:{2048*(i+slot0)+1024*u}")
def wpre_conv(mid):
    wdma(0, 10, SA_)
    mid()
    if STAMP: e("s_memrealtime s[56:57]")
    wrd_regs(0, 10, SA_)
    e("s_waitcnt lgkmcnt(0)")
    wdma(10, 4, SA_, slot0=6); wdma(14, 6, SA_)
    if STAMP: e("s_memrealtime s[58:59]")
def wpost_conv():
    wrd_regs(10, 4, SA_, slot0=6)
    wdma(24, 4, SA_, slot0=10)
    e("s_waitcnt lgkmcnt(0)")
    wdma(20, 4, SA_, slot0=6)
def tag_issue(v):
    e(f"v_mov_b32 v{v}, 0")
    e(f"global_load_dword v{v}, v{v}, {sr(P_DBG,2)}")
def tag_get(v, t):
    uid[0] += 1; L = f"Ltag{uid[0]}"
    e(f"v_readfirstlane_b32 s{STAG}, v{v}")
    e(f"s_cmp_lg_u32 s{STAG}, 0"); e(f"s_cbranch_scc1 {L}")
    e("s_memrealtime s[76:77]"); e(f"v_mov_b32 v{t+1}, 0"); e(f"v_mov_b32 v{t+2}, 0")
    e("s_waitcnt lgkmcnt(0)")
    e("s_or_b32 s76, s76, 1"); e(f"v_mov_b32 v{t}, s76")
    e("s_mov_b64 exec, 1")
    e(f"global_atomic_cmpswap v{v}, v{t+2}, {vr(t,2)}, {sr(P_DBG,2)} sc0 sc1")
    e("s_waitcnt vmcnt(0)")
    e(f"v_readfirstlane_b32 s{STAG}, v{v}")
    e("s_mov_b64 exec, -1")
    e(f"s_cmp_eq_u32 s{STAG}, 0"); e(f"s_cselect_b32 s{STAG}, s76, s{STAG}")
    lab(L)
def publish(soff, t):
    e(f"v_mov_b32 v{t}, s{STAG}"); e(f"v_mov_b32 v{t+1}, s{soff}")
    e("s_mov_b64 exec, 1")
    e(f"global_store_dword v{t+1}, v{t}, {sr(P_WS,2)} sc1")
    e("s_mov_b64 exec, -1")
def poll(va, vd, n=None):
    uid[0] += 1; L = f"Lpoll{uid[0]}"
    e(f"s_mov_b32 s76, {n or SPIN}")
    lab(L)
    e(f"global_load_dword v{vd}, v{va}, {sr(P_WS,2)} sc1")
    e("s_sub_u32 s76, s76, 1")
    e("s_waitcnt vmcnt(0)")
    e(f"v_cmp_ne_u32 vcc, s{STAG}, v{vd}")
    e("s_cmp_eq_u32 s76, 0"); e(f"s_cbranch_scc1 {L}x")
    e(f"s_cbranch_vccz {L}x")
    e(f"s_sleep {SLP}")
    e(f"s_branch {L}")
    lab(L + "x")

def gemm1():
    SX, SW, SH, SB = 48, 52, 56, 60
    SL = 49152; WB = 32768
    cm("---- GEMM1: mt = s4, ft = s5; waves 0-3 compute, 4-7 load")
    e("s_lshl_b32 s8, s5, 8")
    e("s_cmp_lt_u32 s3, 4")
    e("s_cbranch_scc1 Lg_comp")
    vX0, vX1, vW = 2, 3, 4
    e("s_sub_u32 s11, s3, 4")
    e("s_lshl_b32 s6, s4, 18")
    e("s_lshl_b32 s7, s11, 16")
    e("v_lshrrev_b32 v5, 3, v1")
    e("v_lshrrev_b32 v6, 4, v1")
    e("v_and_b32 v7, 7, v1")
    e("v_xor_b32 v7, v7, v6")
    e("v_lshlrev_b32 v7, 4, v7")
    e(f"v_lshl_add_u32 v{vX0}, v5, 10, v7")
    e(f"v_add_u32 v{vX0}, s7, v{vX0}")
    e(f"v_xor_b32 v{vX1}, 64, v{vX0}")
    e(f"v_add_u32 v{vX1}, 0x2000, v{vX1}")
    e("s_mul_i32 s7, s11, %d" % (16*3584))
    e("s_add_u32 s7, s7, s8")
    e("v_and_b32 v7, 15, v1")
    e("v_lshlrev_b32 v5, 2, v6")
    e("v_xor_b32 v7, v7, v5")
    e("v_lshlrev_b32 v7, 4, v7")
    e("v_mul_u32_u24 v5, 3584, v6")
    e(f"v_add3_u32 v{vW}, v5, v7, s7")
    e("s_lshl_b32 s9, s11, 13")
    e("s_lshl_b32 s10, s11, 12")
    e(f"s_add_u32 s10, s10, {WB}")
    e("s_add_u32 s12, s4, s5")
    e("s_waitcnt lgkmcnt(0)")
    stamp(0, 0, P_WS)
    srd(SX, P_U, 262144, "s6")
    srd(SW, P_W1, 512*3584)
    def issue(k):
        e("s_and_b32 s12, s12, 7")
        e("s_lshl_b32 s14, s12, 7")
        e(f"s_add_u32 m0, s10, {(k % 3)*SL}")
        e(f"s_mul_i32 s64, s12, {64*3584}")
        for i in range(4):
            e(f"buffer_load_dwordx4 v{vW}, {sr(SW,4)}, s64 offen lds")
            if i < 3:
                e("s_add_u32 m0, m0, 1024"); e(f"s_add_u32 s64, s64, {4*3584}")
        e(f"s_add_u32 m0, s9, {(k % 3)*SL}")
        e("s_add_u32 s12, s12, 1")
        for i in range(8):
            e(f"buffer_load_dwordx4 v{vX1 if i & 1 else vX0}, {sr(SX,4)}, s14 offen lds")
            if i < 7:
                e("s_add_u32 m0, m0, 1024")
                e("s_add_u32 s14, s14, 16384" if i & 1 else "s_nop 0")
    issue(0); issue(1)
    p2_setup(True, VW0, VW1, VT, 5)
    e("s_waitcnt vmcnt(12)")
    e("s_barrier")
    for k in range(2, 8):
        issue(k)
        if k >= 4: e("s_waitcnt vmcnt(26)"); wrd_regs(k-4, 1, SC_, slot0=k & 1); e("s_waitcnt lgkmcnt(0)")
        wdma(k-2, 1, SC_, slot0=k & 1)
        e(f"s_waitcnt vmcnt({14 if k == 2 else 16})")
        e("s_barrier")
    wdma(8, 6, SSTR)
    e("s_waitcnt vmcnt(12)")
    wrd_regs(4, 2, SC_)
    e("s_barrier")
    e("s_waitcnt lgkmcnt(0)")
    wdma(6, 2, SC_)
    tag_issue(2)
    e("s_waitcnt vmcnt(5)")
    if STAMP: e("s_memrealtime s[56:57]")
    wrd_regs(8, 6, SSTR)
    e("s_waitcnt vmcnt(0)")
    wrd_regs(6, 2, SC_)
    tag_get(2, 4)
    e("s_waitcnt lgkmcnt(0)")
    e("s_barrier")
    if STAMP: e("s_memrealtime s[58:59]")
    wdma(14, 14, SA_)
    e("s_branch Lp2_main")
    lab("Lg_comp")
    vXa, vXb, vWa, vH, vWb = 8, 12, 16, 18, 22
    F = [32, 56]
    ACC = 128
    e("s_and_b32 s11, s3, 1")
    e("s_lshr_b32 s12, s3, 1")
    e("s_lshl_b32 s13, s12, 7")
    e("s_add_u32 s13, s13, s8")
    e("v_lshrrev_b32 v5, 5, v1")
    e("v_lshl_add_u32 v7, v5, 3, s13")
    e("s_waitcnt lgkmcnt(0)")
    stamp(0, 0, P_WS, 24)
    srd(SB, P_B1, 3584)
    srd(SH, P_WS, HF_SZ)
    for b in range(2):
        for j in range(4):
            e(f"buffer_load_dwordx2 {vr(80+8*b+2*j,2)}, v7, {sr(SB,4)}, 0 offen offset:{64*b+16*j}")
    e("v_and_b32 v6, 31, v1")
    e("v_bfe_u32 v7, v1, 1, 3")
    e("v_xor_b32 v7, v7, v5")
    e("v_lshlrev_b32 v7, 4, v7")
    e("v_lshl_add_u32 v7, v6, 7, v7")
    e("s_lshl_b32 s13, s11, 14")
    e(f"v_add_u32 v{vXa}, s13, v7")
    for ks in range(1, 4): e(f"v_xor_b32 v{vXa+ks}, {32*ks}, v{vXa}")
    for ks in range(4): e(f"v_add_u32 v{vXb+ks}, {2*SL}, v{vXa+ks}")
    e("v_bfe_u32 v6, v1, 2, 2")
    e("v_lshl_add_u32 v7, v5, 3, v6")
    e("v_lshlrev_b32 v7, 8, v7")
    e("v_bfe_u32 v19, v1, 4, 1")
    e("v_bfe_u32 v20, v1, 1, 1")
    e("v_lshl_add_u32 v19, v19, 1, v20")
    e("s_lshl_b32 s13, s12, 3")
    e("v_add_u32 v19, s13, v19")
    e("v_lshlrev_b32 v6, 2, v6")
    e("v_xor_b32 v19, v19, v6")
    e("v_lshl_add_u32 v7, v19, 4, v7")
    e("v_and_b32 v20, 1, v1")
    e("v_lshl_add_u32 v7, v20, 3, v7")
    e(f"v_add_u32 v{vWa}, {WB}, v7")
    e(f"v_xor_b32 v{vWa+1}, 64, v{vWa}")
    for b in range(2): e(f"v_add_u32 v{vWb+b}, {2*SL}, v{vWa+b}")
    e("s_lshl_b32 s68, s4, 1"); e("s_add_u32 s68, s68, s11"); e("s_lshl_b32 s68, s68, 5")
    e("s_lshl_b32 s13, s5, 1"); e("s_add_u32 s68, s68, s13"); e("s_add_u32 s68, s68, s12")
    e(f"s_lshl_b32 s68, s68, {2+FS}"); e(f"s_add_u32 s68, s68, {FH_OFF}")
    p2_map(3)
    e("s_lshl_b32 s13, s4, 3"); e("s_lshl_b32 s14, s11, 2"); e("s_add_u32 s13, s13, s14")
    e("s_mul_i32 s13, s13, 112")
    e("s_lshl_b32 s14, s5, 3"); e("s_add_u32 s13, s13, s14")
    e("s_lshl_b32 s14, s12, 2"); e("s_add_u32 s13, s13, s14")
    e("s_lshl_b32 s13, s13, 10")
    e(f"v_lshl_add_u32 v{vH}, v1, 4, s13")
    e("v_and_b32 v28, 31, v1"); e("v_lshl_add_u32 v28, v28, 7, s13"); e(f"v_mul_u32_u24 v29, {112*1024}, v5"); e("v_add_u32 v28, v28, v29")
    for a in range(1, 4): e(f"s_mov_b32 s{64+a}, {a*112*1024}")
    BI = 96
    e("s_waitcnt vmcnt(0)")
    for b in range(2):
        for j in range(8):
            src = 80 + 8*b + j
            e(f"v_lshlrev_b32 v{BI+16*b+2*j}, 16, v{src}")
            e(f"v_and_b32 v{BI+16*b+2*j+1}, 0xffff0000, v{src}")
    def xrd(s, ks, a, reg):
        sl = s % 3
        return f"ds_read_b128 {vr(reg,4)}, v{(vXb if sl == 2 else vXa) + ks} offset:{(sl*SL if sl < 2 else 0)+4096*a}"
    def wrd(s, ks, b, reg):
        sl = s % 3
        return [f"ds_read_b64_tr_b16 {vr(reg+2*u,2)}, v{(vWb if sl == 2 else vWa)+b} offset:{(sl*SL if sl < 2 else 0)+(16*ks+4*u)*256}" for u in range(2)]
    def rdlist(s, ks, fs):
        return wrd(s, ks, 0, fs+16) + [xrd(s, ks, a, fs+4*a) for a in range(4)] + wrd(s, ks, 1, fs+20)
    def mfmas(fs, rl, first=False):
        n = 0
        for b in range(2):
            for a in range(4):
                acc = vr(ACC+64*b+16*a, 16)
                e(f"v_mfma_f32_32x32x16_bf16 {acc}, {vr(fs+16+4*b,4)}, {vr(fs+4*a,4)}, {vr(BI+16*b,16) if first else acc}")
                for r in rl[2*n:2*n+2]: e(r)
                n += 1
    quads = list(range(32, 56, 4)) + list(range(80, 128, 4)) + list(range(56, 80, 4))
    W7 = {(0, ks): quads[ks] for ks in range(4)}
    X7 = {(a, ks): quads[4+4*a+ks] for a in range(4) for ks in range(4)}
    W7.update({(1, ks): quads[20+ks] for ks in range(4)})
    def w7(b): return sum((wrd(7, ks, b, W7[b, ks]) for ks in range(4)), [])
    def x7(a): return [xrd(7, ks, a, X7[a, ks]) for ks in range(4)]
    e("s_barrier")
    stamp(1, 0, P_WS, 24)
    for r in rdlist(0, 0, F[0]): e(r)
    for s in range(7):
        for ks in range(4):
            e("s_waitcnt lgkmcnt(0)")
            if ks < 3: rl = rdlist(s, ks+1, F[(ks+1) & 1])
            else:
                e("s_barrier")
                rl = rdlist(s+1, 0, F[0]) if s < 6 else w7(0) + x7(0) + x7(1)
            if s == 4 and ks == 0: tag_issue(4)
            mfmas(F[ks & 1], rl, s == 0 and ks == 0)
    def epi(j):
        b, a = j >> 2, j & 3
        base = ACC+64*b+16*a
        L = [f"v_mul_f32 v{base+r}, v{base+r}, |v{base+r}|" for r in range(16)]
        L += [f"v_cvt_pk_bf16_f32 v{base+r}, v{base+2*r}, v{base+2*r+1}" for r in range(8)]
        L += [f"v_pk_max_i16 v{base+r}, v{base+r}, 0" for r in range(8)]
        L += [f"buffer_store_dwordx4 {vr(base+4*s_,4)}, v{vH}, {sr(SH,4)}, {'0' if a == 0 else 's%d' % (64+a)} offen offset:{2048*b+1024*s_}{SC1H}" for s_ in range(0 if OPT("nost") else 2)]
        return L
    extra = {0: x7(2) + x7(3), 1: w7(1)}
    waits = {0: 4, 1: 8, 2: 12, 3: 8, 4: 0}
    pend = []
    pos = [0]
    def emit(x): e(x); pos[0] += 1
    for j in range(8):
        b, a = j >> 2, j & 3
        if j in waits: emit(f"s_waitcnt lgkmcnt({waits[j]})")
        acc = vr(ACC+64*b+16*a, 16)
        for ks in range(4):
            emit(f"v_mfma_f32_32x32x16_bf16 {acc}, {vr(W7[b,ks],4)}, {vr(X7[a,ks],4)}, {acc}")
            if ks == 3: pend += [(x, pos[0] + 12) for x in epi(j)]
            for r in extra.get(j, [])[2*ks:2*ks+2]: emit(r)
            n = 0
            while pend and n < 9 and pend[0][1] <= pos[0]:
                emit(pend.pop(0)[0]); n += 1
    stamp(2, 0, P_WS, 24)
    while pend:
        if pend[0][1] > pos[0]:
            d = pend[0][1] - pos[0]; e(f"s_nop {d-1}"); pos[0] += d
        emit(pend.pop(0)[0])
    if XV == 2: e("s_barrier")
    e("s_waitcnt vmcnt(0)" if OPT("nost") else "s_waitcnt vmcnt(16)")
    tag_get(4, 20)
    e("s_waitcnt vmcnt(0)")
    publish(68, 20)
    if OPT("hpf"):
        e(f"buffer_load_dword v100, v28, {sr(SH,4)}, 0 offen sc1")
        e(f"buffer_load_dword v101, v28, {sr(SH,4)}, s66 offen sc1")
    stamp(3, 0, P_WS, 24)
    if XV != 2: e("s_barrier")
    e("s_branch Lp2_aux")

PITCH = 528
CR_SZ = 59*PITCH
R_OFF = 32*PITCH
RG = 40960
UB = CR_SZ
US = 4576
LDS1 = 4*RG

def exp_acc(dst, x, t0, t1):
    e(f"v_mul_f32 v{t0}, s70, v{x}")
    e(f"v_fma_f32 v{t1}, v{x}, s70, -v{t0}")
    e(f"v_exp_f32 v{dst}, v{t0}")
    e(f"v_fmac_f32 v{t1}, {f32(L_LO)}, v{x}")
    e(f"v_mul_f32 v{t1}, {f32(LN2)}, v{t1}")
    e(f"v_fmac_f32 v{dst}, v{dst}, v{t1}")

def cexp(dr, di, zr2, zi2, p, t):
    if p == 1:
        e(f"v_exp_f32 v{t}, v{zr2}")
        e(f"v_fract_f32 v{di}, v{zi2}")
    else:
        e(f"v_mul_f32 v{t}, {f32(p)}, v{zr2}")
        e(f"v_mul_f32 v{di}, {f32(p)}, v{zi2}")
        e(f"v_exp_f32 v{t}, v{t}")
        e(f"v_fract_f32 v{di}, v{di}")
    e(f"v_cos_f32 v{dr}, v{di}")
    e(f"v_sin_f32 v{di}, v{di}")
    e(f"v_mul_f32 v{dr}, v{dr}, v{t}")
    e(f"v_mul_f32 v{di}, v{di}, v{t}")

def p2(r): return f"v[{r}:{r+1}]"
def cmulp(d, x, en, t):
    e(f"v_pk_mul_f32 {p2(t)}, {p2(x+2)}, {p2(en+2)}")
    e(f"v_pk_mul_f32 {p2(t+2)}, {p2(x+2)}, {p2(en)}")
    e(f"v_pk_fma_f32 {p2(d+2)}, {p2(x)}, {p2(en+2)}, {p2(t+2)}")
    e(f"v_pk_fma_f32 {p2(d)}, {p2(x)}, {p2(en)}, {p2(t)} neg_lo:[0,0,1] neg_hi:[0,0,1]")

CS2 = 4224
def conv():
    SU, SWS, SW2 = 48, 52, 56
    UR = 46
    cm("---- conv role: G = 16*s4 + s5 - 14")
    e("s_sub_u32 s5, s5, 14")
    e("s_lshl_b32 s6, s4, 4"); e("s_add_u32 s6, s6, s5")
    e("s_and_b32 s7, s3, 3")
    e("s_lshl_b32 s8, s6, 2"); e("s_add_u32 s8, s8, s7")
    e("s_lshl_b32 s9, s8, 8")
    e("v_lshl_add_u32 v2, v1, 2, s9")
    e("s_lshr_b32 s10, s8, 1"); e("s_lshl_b32 s10, s10, 2")
    e("s_lshl_b32 s11, s6, 3")
    e(f"s_mul_i32 s12, s7, {RG}")
    e("v_lshl_add_u32 v3, v1, 3, s12")
    e(f"s_mov_b32 s70, {f32(L_HI)}")
    e("s_lshl_b32 s64, s5, 17"); e("s_lshl_b32 s65, s3, 14"); e("s_add_u32 s64, s64, s65"); e("s_add_u32 s64, s64, s11")
    e("v_and_b32 v9, 15, v1"); e("v_lshl_add_u32 v9, v9, 10, s64")
    e("s_waitcnt lgkmcnt(0)")
    stamp(0, 0, P_WS)
    e(f"s_load_dword s13, {sr(P_LDT,2)}, s10")
    e(f"s_load_dwordx2 s[14:15], {sr(P_DSK,2)}, s11")
    e(f"global_load_dword v4, v2, {sr(P_LAR,2)}")
    e(f"global_load_dword v5, v2, {sr(P_AIM,2)}")
    e(f"global_load_dword v6, v2, {sr(P_CR,2)}")
    e(f"global_load_dword v7, v2, {sr(P_CI,2)}")
    e(f"global_load_dword v11, v9, {sr(P_U,2)}")
    srd(SWS, P_WS, WS_USED)
    srd(SU, P_U, 2048*1024)
    e("v_subrev_u32 v8, 256, v0")
    e("v_lshl_add_u32 v9, v8, 13, s11")
    e("v_subrev_u32 v10, 0x400, v9")
    e("s_movk_i32 s64, 4096")
    e("v_and_b32 v20, 31, v1"); e("v_lshrrev_b32 v21, 5, v1")
    e(f"v_mul_u32_u24 v22, {PITCH}, v20")
    e("v_lshl_add_u32 v22, v21, 4, v22")
    e("v_add_u32 v22, s12, v22")
    e("v_mov_b32 v23, v20")
    for thr in (11, 12, 15, 19, 23):
        e(f"v_cmp_le_u32 vcc, {thr}, v20")
        e("s_nop 1")
        e("v_subbrev_co_u32 v23, vcc, 0, v23, vcc")
    e(f"v_mul_u32_u24 v23, {PITCH}, v23")
    e("v_lshl_add_u32 v23, v21, 4, v23")
    e(f"s_add_u32 s66, s12, {R_OFF}")
    e("v_add_u32 v23, s66, v23")
    e("s_waitcnt lgkmcnt(0)")
    e("s_bitcmp1_b32 s8, 0")
    e("s_cselect_b32 s65, 0, 16")
    e("s_lshl_b32 s13, s13, s65")
    e("s_and_b32 s13, s13, 0xffff0000")
    e("v_mov_b32 v12, s13")
    exp_acc(13, 12, 14, 15)
    e("v_cvt_pk_bf16_f32 v13, v13, v13")
    e("v_and_b32 v13, 0xffff0000, v13")
    e("s_waitcnt vmcnt(3)")
    stamp(6, 0, P_WS)
    e("v_lshlrev_b32 v16, 16, v4"); e("v_and_b32 v17, 0xffff0000, v4")
    exp_acc(18, 16, 14, 15); exp_acc(19, 17, 24, 25)
    e("v_cvt_pk_bf16_f32 v18, v18, v19")
    e("v_lshlrev_b32 v16, 16, v18"); e("v_and_b32 v17, 0xffff0000, v18")
    e("v_lshlrev_b32 v18, 16, v5"); e("v_and_b32 v19, 0xffff0000, v5")
    for r in range(16, 20): e(f"v_mul_f32 v{r}, v{r}, v13")
    e(f"v_mul_f32 v16, {f32(-LOG2E)}, v16"); e(f"v_mul_f32 v17, {f32(-LOG2E)}, v17")
    e("v_mul_f32 v18, 0.15915494, v18"); e("v_mul_f32 v19, 0.15915494, v19")
    e("s_cmp_lt_u32 s3, 4")
    e("s_cbranch_scc0 Lc_rwave")
    ROLE[0] = 1
    E = 24; X = 28; T = 32; PK = 40
    cexp(E, E+2, 16, 18, 8, T); cexp(E+1, E+3, 17, 19, 8, T+1)
    e(f"v_mov_b32 v{X}, 1.0"); e(f"v_mov_b32 v{X+1}, 1.0"); e(f"v_mov_b32 v{X+2}, 0"); e(f"v_mov_b32 v{X+3}, 0")
    e("s_mov_b32 s66, 0")
    lab("Lc_lgen")
    for k in range(4):
        pk = PK + 2*k
        e(f"v_cvt_pk_bf16_f32 v{pk}, v{X}, v{X+2}")
        e(f"v_cvt_pk_bf16_f32 v{pk+1}, v{X+1}, v{X+3}")
        cmulp(X, X, E, T)
        e(f"ds_write_b64 v3, {vr(pk,2)} offset:{k*PITCH}")
    e(f"v_add_u32 v3, {4*PITCH}, v3")
    e("s_add_u32 s66, s66, 1"); e("s_cmp_lt_u32 s66, 8"); e("s_cbranch_scc1 Lc_lgen")
    e("s_waitcnt vmcnt(0)")
    e("v_and_b32 v4, 1, v1"); e("v_xor_b32 v4, 1, v4"); e(f"v_mul_u32_u24 v4, {CS2}, v4")
    e("v_bfe_u32 v5, v1, 1, 1"); e("v_lshl_add_u32 v4, v5, 3, v4")
    e("v_bfe_u32 v5, v1, 2, 2"); e("v_lshrrev_b32 v6, 4, v1"); e("v_add_u32 v5, v5, v6")
    e("v_lshl_add_u32 v4, v5, 4, v4"); e("s_add_u32 s66, s12, 8"); e("v_add_u32 v4, s66, v4")
    e("v_and_b32 v5, 1, v1"); e(f"v_mul_u32_u24 v5, {US}, v5")
    e("v_bfe_u32 v7, v1, 1, 3"); e("v_lshlrev_b32 v8, 2, v7"); e("v_sub_u32 v8, v8, v6")
    e("v_lshl_add_u32 v5, v8, 4, v5")
    e(f"s_add_u32 s66, s12, {UB+448+48}")
    e("v_add_u32 v5, s66, v5")
    e("v_mul_u32_u24 v8, 272, v6"); e("v_and_b32 v9, 15, v1"); e("v_lshl_add_u32 v8, v9, 4, v8"); e("v_add_u32 v8, s12, v8")
    e("v_lshl_add_u32 v10, v1, 4, s12")
    e("v_bfe_u32 v12, v1, 4, 1"); e(f"v_mul_u32_u24 v12, {CS2}, v12"); e("v_lshl_add_u32 v12, v9, 2, v12"); e("v_add_u32 v12, s12, v12")
    e("v_mov_b32 v13, 0")
    e("v_and_b32 v14, 1, v1"); e("v_cmp_eq_u32 vcc, 0, v14")
    e("s_waitcnt lgkmcnt(0)")
    stamp(7, 0, P_WS)
    e("s_barrier")
    stamp(1, 0, P_WS)
    FR = 64; KA = 192
    def krd(ks):
        e(f"ds_read_b128 {vr(FR+8*ks,4)}, v23 offset:{32*ks}")
        e(f"ds_read_b128 {vr(FR+8*ks+4,4)}, v22 offset:{32*ks}")
    for ks in range(6): krd(ks)
    ACC = 24
    for ks in range(16):
        if ks + 6 < 16: krd(ks+6)
        e(f"s_waitcnt lgkmcnt({2*min(6, 15-ks)})")
        e(f"v_mfma_f32_32x32x16_bf16 {vr(KA,16)}, {vr(FR+8*ks,4)}, {vr(FR+8*ks+4,4)}, {'0' if ks == 0 else vr(KA,16)}")
        for r in range(2): e(f"v_mov_b32 v{ACC+2*ks+r}, 0")
    stamp(5, 0, P_WS)
    e("ds_write_b32 v12, v13")
    e("s_nop 7"); e("s_nop 1")
    D = 64; S = 80; k = KA
    e(f"v_cndmask_b32 v14, v{k+13}, v{k+12}, vcc")
    e(f"v_cndmask_b32 v15, v{k+15}, v{k+14}, vcc")
    pk = [(k,k+1),(k+2,k+3),(k+4,k+4),(k+5,k+6),
          (k+8,k+8),(k+8,k+9),(k+9,k+9),(k+10,k+10),
          (k+12,k+12),(k+12,k+12),(14,k+13),(k+13,k+13),
          (k+14,k+14),(k+14,k+14),(15,k+15),(k+15,k+15)]
    for i, (a, b) in enumerate(pk):
        e(f"v_cvt_pk_bf16_f32 v{D+i}, v{a}, v{b}")
        if i == 7:
            e(f"v_permlane32_swap_b32 v{D}, v{D+2}"); e(f"v_permlane32_swap_b32 v{D+1}, v{D+3}")
            e(f"ds_write_b128 v10, {vr(D+4,4)} offset:{64+1024}")
            e(f"ds_write_b128 v10, {vr(D,4)} offset:64")
        if i == 11: e(f"ds_write_b128 v10, {vr(D+8,4)} offset:{64+2048}")
    e(f"ds_write_b128 v10, {vr(D+12,4)} offset:{64+3072}")
    e(f"v_mov_b32 v{S}, 0")
    for q in range(1, 4): e(f"v_mov_b32_dpp v{S+4*q}, v{D+4*q-1} wave_ror:1 row_mask:0xf bank_mask:0xf")
    for q in range(4):
        for j in range(3): e(f"v_mov_b32 v{S+4*q+1+j}, v{D+4*q+j}")
        e(f"v_mov_b32_dpp v{S+4*q}, v{D+4*q+3} wave_shr:1 row_mask:0xf bank_mask:0xf")
        e(f"ds_write_b128 v10, {vr(S+4*q,4)} offset:{CS2+64+1024*q}")
    FQ = [64, 128]
    e("s_waitcnt lgkmcnt(0)")
    stamp(4, 0, P_WS)
    e("s_barrier")
    stamp(2, 0, P_WS)
    def crl(fs):
        L = []
        for i in range(8):
            L.append(f"ds_read_b128 {vr(fs+32+4*i,4)}, v5 offset:{512*i}")
            L.append(f"ds_read_b64 {vr(fs+4*i,2)}, v4 offset:{512*i}")
            L.append(f"ds_read_b64 {vr(fs+4*i+2,2)}, v4 offset:{512*i+8}")
        return L
    for r in crl(FQ[0]): e(r)
    e("v_add_u32 v4, 64, v4"); e("v_subrev_u32 v5, 64, v5")
    e("s_mov_b32 s66, 0")
    lab("Lc_loop")
    for half in range(2):
        cur, nxt = FQ[half], FQ[1-half]
        e("s_waitcnt lgkmcnt(0)")
        rl = crl(nxt)
        n = 0
        for i in range(8):
            for j in range(8 - i):
                acc = vr(ACC+4*(i+j), 4)
                e(f"v_mfma_f32_16x16x32_bf16 {acc}, {vr(cur+4*i,4)}, {vr(cur+32+4*j,4)}, {acc}")
                if n < 24: e(rl[n])
                if n == 24: e("v_add_u32 v4, 64, v4")
                if n == 25: e("v_subrev_u32 v5, 64, v5")
                if n == 26 and half == 1: e("s_add_u32 s66, s66, 1")
                if n == 27 and half == 1: e("s_cmp_lt_u32 s66, 4")
                n += 1
    e("s_cbranch_scc1 Lc_loop")
    e("s_waitcnt lgkmcnt(0)")
    stamp(3, 0, P_WS)
    for t in range(8):
        if t == 6: e("s_nop 1")
        e(f"ds_write_b128 v8, {vr(ACC+4*t,4)} offset:{1088*t}")
    tag_issue(4)
    e("s_waitcnt lgkmcnt(0)")
    e("s_barrier")
    p2_map(3)
    e("s_lshl_b32 s8, s5, 2"); e("s_add_u32 s8, s8, s3")
    e("s_cmp_ge_u32 s8, 28"); e("s_cselect_b32 s9, 1, 0"); e("s_mul_i32 s10, s9, 28"); e("s_sub_u32 s10, s8, s10")
    e("s_lshl_b32 s11, s4, 1"); e("s_add_u32 s9, s9, s11")
    e("s_lshl_b32 s11, s9, 5"); e("s_add_u32 s11, s11, s10"); e(f"s_lshl_b32 s11, s11, {2+FS}"); e(f"s_add_u32 s11, s11, {FH_OFF}")
    e(f"s_mul_i32 s9, s9, {4*112*1024}"); e("s_lshl_b32 s10, s10, 12"); e("s_add_u32 s9, s9, s10"); e(f"s_add_u32 s10, s9, {2*112*1024}")
    e("v_mov_b32 v5, s11")
    e("v_and_b32 v6, 31, v1"); e("v_lshlrev_b32 v6, 7, v6"); e("v_lshrrev_b32 v7, 5, v1"); e(f"v_mul_u32_u24 v7, {112*1024}, v7"); e("v_add_u32 v6, v6, v7")
    e("s_waitcnt vmcnt(0)")
    tag_get(4, 20)
    if PFN:
        e("s_cmp_ge_u32 s8, 56"); e("s_cbranch_scc1 Lc_nopf")
        poll(5, 4, PFN)
        e("s_cbranch_vccnz Lc_nopf")
        e(f"buffer_load_dword v100, v6, {sr(SWS,4)}, s9 offen sc1")
        e(f"buffer_load_dword v101, v6, {sr(SWS,4)}, s10 offen sc1")
        lab("Lc_nopf")
    e("s_barrier")
    e("s_branch Lp2_aux")
    lab("Lc_rwave")
    ROLE[0] = 2
    E1 = 24; E256 = 28; T = 32; PK = 88
    R = {0: 64, 2: 68, 4: 72, 6: 76, 8: 80}; TMP = 84
    def uload(r):
        e(f"buffer_load_dwordx2 {vr(UR+2+2*r,2)}, v9, {sr(SU,4)}, {'0' if r < 4 else 's64'} offen offset:{1024*(r&3)}")
    e("s_waitcnt vmcnt(1)" if not STAMP else "s_waitcnt vmcnt(2)")
    e("v_add_f32 v13, v13, v13")
    e(f"v_lshlrev_b32 v{R[0]}, 16, v6"); e(f"v_and_b32 v{R[0]+1}, 0xffff0000, v6")
    e(f"v_lshlrev_b32 v{R[0]+2}, 16, v7"); e(f"v_and_b32 v{R[0]+3}, 0xffff0000, v7")
    e("s_mov_b64 exec, 1")
    e(f"buffer_load_dwordx2 {vr(UR,2)}, v10, {sr(SU,4)}, 0 offen")
    e("s_mov_b64 exec, -1")
    uload(0)
    cexp(E1, E1+2, 16, 18, 1, T); cexp(E1+1, E1+3, 17, 19, 1, T+1)
    cexp(E256, E256+2, 16, 18, 256, T); cexp(E256+1, E256+3, 17, 19, 256, T+1)
    for r in range(4): e(f"v_mul_f32 v{R[0]+r}, v{R[0]+r}, v13")
    cnt = [0]
    def putr(x, srow):
        pk = PK + 2*(cnt[0] % 4); cnt[0] += 1
        e(f"v_cvt_pk_bf16_f32 v{pk}, v{x}, -v{x+2}")
        e(f"v_cvt_pk_bf16_f32 v{pk+1}, v{x+1}, -v{x+3}")
        e(f"ds_write_b64 v3, {vr(pk,2)} offset:{R_OFF+srow*PITCH}")
        if cnt[0] in (3, 11, 19, 27): uload(1 + (cnt[0]-3)//8)
    putr(R[0], 0)
    cur = R[0]
    for p in range(1, 9):
        nx = R[p] if p in R else TMP
        cmulp(nx, cur, E1, T)
        if p < 8: putr(nx, p)
        cur = nx
    for xs, sr0 in (([0,2,4,6,8], 8), ([0,4,8], 13), ([0,4,8], 16), ([0,8], 19), ([0,8], 23), ([0,8], 21), ([0,8], 25)):
        for i, x in enumerate(xs):
            cmulp(R[x], R[x], E256, T)
            putr(R[x], sr0 + i)
    e("s_waitcnt lgkmcnt(0)")
    stamp(7, 0, P_WS)
    e("s_barrier")
    for r in range(5, 8): uload(r)
    stamp(1, 0, P_WS)
    e("s_mov_b32 s66, 0x05040100"); e("s_mov_b32 s67, 0x07060302")
    e("v_bfe_u32 v4, v8, 5, 1"); e(f"v_mul_u32_u24 v4, {US}, v4"); e("v_add_u32 v4, s12, v4")
    e("v_and_b32 v5, 31, v8"); e("v_min_u32 v5, 27, v5"); e("v_lshl_add_u32 v4, v5, 4, v4")
    for r in range(4): e(f"v_mov_b32 v{24+r}, 0")
    e(f"v_add_u32 v4, {UB}, v4")
    e(f"ds_write_b128 v4, {vr(24,4)}")
    e("v_lshlrev_b32 v4, 4, v8"); e(f"v_add_u32 v4, {UB+448}, v4"); e(f"v_add_u32 v5, {2*RG}, v4")
    p2_setup(False, VW0, VW1, VT, 6)
    e("s_waitcnt vmcnt(0)")
    stamp(3, 0, P_WS)
    for hh in range(2): e(f"v_mov_b32_dpp v{UR+hh}, v{UR+16+hh} wave_shr:1 row_mask:0xf bank_mask:0xf")
    def row(r, c): return UR + 2 + 2*r + (c >> 1)
    k = 0
    for c in range(4):
        sel = "s67" if c & 1 else "s66"
        for b0 in (1, 0):
            d = 64 + 4*(k % 4); k += 1
            top = 7 if b0 else 6
            for i in range(4):
                e(f"v_perm_b32 v{d+i}, v{row(top-2*i-1,c)}, v{row(top-2*i,c)}, {sel}")
            e(f"ds_write_b128 v{4 + (c >> 1)}, {vr(d,4)} offset:{(c&1)*RG+b0*US}")
    e("s_waitcnt lgkmcnt(0)")
    e("s_barrier")
    stamp(2, 0, P_WS)
    def mid():
        tag_issue(7)
        e("s_waitcnt vmcnt(0)")
        tag_get(7, 20)
    wpre_conv(mid)
    e("s_lshl_b32 s72, s14, 16"); e("s_and_b32 s73, s14, 0xffff0000")
    e("s_lshl_b32 s74, s15, 16"); e("s_and_b32 s75, s15, 0xffff0000")
    UF = 64
    for r in range(8):
        for hh in range(2):
            e(f"v_lshlrev_b32 v{UF+4*r+2*hh}, 16, v{UR+2+2*r+hh}")
            e(f"v_and_b32 v{UF+4*r+2*hh+1}, 0xffff0000, v{UR+2+2*r+hh}")
    e("v_lshrrev_b32 v4, 5, v8"); e("v_mul_u32_u24 v4, 1088, v4")
    e("v_and_b32 v5, 3, v8"); e("v_mul_u32_u24 v5, 272, v5")
    e("v_bfe_u32 v6, v8, 2, 3"); e("v_lshl_add_u32 v4, v6, 5, v4"); e("v_add_u32 v4, v4, v5")
    e(f"v_add_u32 v5, {2*RG}, v4")
    e("v_lshlrev_b32 v6, 4, v8")
    e("s_lshl_b32 s68, s6, 14"); e(f"s_add_u32 s68, s68, {A4_OFF}")
    for i in range(1, 4): e(f"s_add_u32 s{68+i}, s68, {4096*i}")
    e("s_lshl_b32 s64, s7, 9"); e("s_lshl_b32 s65, s6, 2"); e("s_add_u32 s64, s64, s65"); e(f"s_lshl_b32 s64, s64, {FS}"); e(f"s_add_u32 s64, s64, {FC_OFF}")
    e("s_barrier")
    stamp(4, 0, P_WS)
    Y = 96
    for c in range(4):
        for b0 in range(2):
            e(f"ds_read_b128 {vr(Y+8*c+4*b0,4)}, v{4 if c < 2 else 5} offset:{(c&1)*RG+16*b0}")
    for c in range(4):
        e(f"s_waitcnt lgkmcnt({6-2*c})")
        for l in range(8):
            e(f"v_fma_f32 v{UF+4*l+c}, v{UF+4*l+c}, s{72+c}, v{Y+8*c+4*(l&1)+(l>>1)}")
    O = 16
    for l in range(8):
        for hh in range(2): e(f"v_cvt_pk_bf16_f32 v{O+2*l+hh}, v{UF+4*l+2*hh}, v{UF+4*l+2*hh+1}")
    for i in range(4): e(f"buffer_store_dwordx4 {vr(O+4*i,4)}, v6, {sr(SWS,4)}, s{68+i} offen{SC1A}")
    e("s_waitcnt vmcnt(0)")
    publish(64, 4)
    wpost_conv()
    stamp(5, 0, P_WS)
    e("s_barrier")
    e("s_branch Lp2_main")

def idle():
    e("s_cmp_lt_u32 s3, 4")
    e("s_cbranch_scc0 Li_hi")
    p2_map(3)
    e("s_waitcnt lgkmcnt(0)")
    stamp(0, 0, P_WS)
    SU, SWS = 48, 52
    e("v_mov_b32 v4, s3")
    srd(SWS, P_WS, WS_USED)
    srd(SU, P_U, 2048*1024)
    e("s_lshl_b32 s68, s4, 1"); e("s_add_u32 s68, s68, s5"); e("s_sub_u32 s68, s68, 30")
    e("s_lshl_b32 s68, s68, 2"); e("s_add_u32 s68, s68, s3")
    e(f"s_lshl_b32 s64, s68, {2+FS}"); e(f"s_add_u32 s64, s64, {FG_OFF}")
    e("s_lshl_b32 s68, s68, 5")
    tag_get(4, 20)
    lab("Li_gate")
    e("s_lshl_b32 s69, s68, 10"); e("s_add_u32 s71, s69, 4096")
    e("v_lshlrev_b32 v4, 4, v1")
    e(f"global_load_dwordx4 {vr(96,4)}, v4, {sr(P_GW,2)}")
    for r in range(8):
        e(f"buffer_load_dwordx4 {vr(64+4*r,4)}, v4, {sr(SU,4)}, {'s69' if r < 4 else 's71'} offen offset:{1024*(r&3)}")
    e("s_waitcnt vmcnt(8)")
    for i in range(4):
        e(f"v_lshlrev_b32 v{100+2*i}, 16, v{96+i}"); e(f"v_and_b32 v{100+2*i+1}, 0xffff0000, v{96+i}")
    for r in range(8):
        e(f"s_waitcnt vmcnt({7-r})")
        for i in range(4):
            e(f"v_lshlrev_b32 v{110+2*i}, 16, v{64+4*r+i}"); e(f"v_and_b32 v{110+2*i+1}, 0xffff0000, v{64+4*r+i}")
        for i in range(8): e(f"v_mul_f32 v{110+i}, v{110+i}, v{100+i}")
        for i in range(4): e(f"v_cvt_pk_bf16_f32 v{120+i}, v{110+2*i}, v{110+2*i+1}")
        for i in range(4):
            e(f"v_lshlrev_b32 v{110+2*i}, 16, v{120+i}"); e(f"v_and_b32 v{110+2*i+1}, 0xffff0000, v{120+i}")
        for i in range(4): e(f"v_add_f32 v{110+i}, v{110+i}, v{114+i}")
        e("v_add_f32 v110, v110, v112"); e("v_add_f32 v111, v111, v113")
        e(f"v_add_f32 v{24+r}, v110, v111")
    for dpp in ("quad_perm:[1,0,3,2] row_mask:0xf", "quad_perm:[2,3,0,1] row_mask:0xf", "row_half_mirror row_mask:0xf",
                "row_mirror row_mask:0xf", "row_bcast:15 row_mask:0xa", "row_bcast:31 row_mask:0xc"):
        e("s_nop 1")
        for r in range(8): e(f"v_add_f32_dpp v{24+r}, v{24+r}, v{24+r} {dpp} bank_mask:0xf")
    e("s_nop 1")
    for r in range(8): e(f"v_readlane_b32 s{56+r}, v{24+r}, 63")
    e("s_nop 3")
    for r in range(8): e(f"v_writelane_b32 v32, s{56+r}, {r}")
    e("s_nop 1")
    e("v_cvt_pk_bf16_f32 v32, v32, v32"); e("v_and_b32 v32, 0xffff0000, v32")
    e(f"v_mul_f32 v32, {f32(-LOG2E)}, v32")
    e("v_exp_f32 v32, v32"); e("s_nop 0"); e("v_add_f32 v32, 1.0, v32"); e("v_rcp_f32 v32, v32"); e("s_nop 0")
    e("v_cvt_pk_bf16_f32 v32, v32, v32"); e("v_and_b32 v32, 0xffff0000, v32")
    e("v_sub_f32 v33, 1.0, v32")
    e("v_cvt_pk_bf16_f32 v33, v33, v33"); e("v_and_b32 v33, 0xffff0000, v33")
    e("v_lshlrev_b32 v4, 3, v1")
    e("s_lshl_b32 s69, s68, 3"); e(f"s_add_u32 s69, s69, {G_OFF}")
    e("s_mov_b64 exec, 0xff")
    e(f"buffer_store_dwordx2 v[32:33], v4, {sr(SWS,4)}, s69 offen{SC1A}")
    e("s_mov_b64 exec, -1")
    e("s_add_u32 s68, s68, 8"); e("s_and_b32 s69, s68, 31"); e("s_cbranch_scc1 Li_gate")
    tag_issue(4)
    e("s_waitcnt vmcnt(0)")
    tag_get(4, 20)
    publish(64, 4)
    stamp(1, 0, P_WS)
    e("s_branch Lp2_aux")
    lab("Li_hi")
    e("s_waitcnt lgkmcnt(0)")
    p2_setup(False, VW0, VW1, VT, 6)
    if not OPT("nopf"):
        e("s_sub_u32 s68, s2, 240"); e("s_lshl_b32 s68, s68, 2"); e("s_add_u32 s68, s68, s3"); e("s_sub_u32 s68, s68, 4")
        e(f"s_mul_i32 s68, s68, {224*128}")
        e("v_lshlrev_b32 v4, 7, v1")
        for t in range(4):
            e(f"buffer_load_dword v{244+t}, v4, {sr(SW2P,4)}, s68 offen")
            if t < 3: e("s_add_u32 s68, s68, 8192")
    wpre_conv(lambda: e("s_waitcnt vmcnt(0)"))
    tag_issue(2)
    e("s_waitcnt vmcnt(0)")
    tag_get(2, 4)
    wpost_conv()
    e("s_branch Lp2_main")

def gemm2():
    ROLE[0] = 0
    SWS, SO, SB2 = 48, 52, 56
    def ids(q):
        e("s_lshr_b32 s6, s2, 6"); e("s_lshl_b32 s7, s4, 2"); e("s_add_u32 s6, s6, s7")
        e("s_bfe_u32 s7, s2, 0x30003")
        e(f"s_lshr_b32 s11, s{q}, 1"); e(f"s_and_b32 s12, s{q}, 1")
        e("s_lshl_b32 s13, s6, 1"); e("s_add_u32 s13, s13, s12"); e("s_lshl_b32 s13, s13, 5")
        e("s_lshl_b32 s14, s7, 1"); e("s_add_u32 s14, s14, s11"); e("s_lshl_b32 s14, s14, 5")
        e("v_and_b32 v7, 31, v1"); e("v_lshrrev_b32 v8, 5, v1")
        e("v_add_u32 v7, s13, v7")
        e("s_lshl_b32 s72, s14, 1")
        e("v_lshlrev_b32 v2, 4, v1")
        srd(SWS, P_WS, WS_USED)
    lab("Lp2_aux")
    ids(3)
    srd(SB2, P_B2, 1024)
    EP = 16
    e("v_lshl_add_u32 v11, v8, 3, s72")
    for j in range(4): e(f"buffer_load_dwordx2 {vr(EP+8+2*j,2)}, v11, {sr(SB2,4)}, 0 offen offset:{16*j}")
    e("v_lshlrev_b32 v9, 3, v7")
    e("v_bfe_u32 v10, v7, 1, 2"); e("v_lshl_add_u32 v10, v8, 2, v10"); e("v_lshlrev_b32 v10, 12, v10")
    e("v_lshrrev_b32 v11, 3, v7"); e("v_lshl_add_u32 v10, v11, 4, v10"); e("v_and_b32 v11, 1, v7"); e("v_lshl_add_u32 v10, v11, 3, v10")
    e("s_lshl_b32 s15, s14, 12"); e(f"s_add_u32 s15, s15, {A4_OFF}")
    e("s_add_u32 s68, s15, 32768"); e("s_add_u32 s69, s68, 32768"); e("s_add_u32 s70, s69, 32768")
    e(f"s_mov_b32 s71, {G_OFF}")
    e("s_lshr_b32 s73, s6, 3"); e("s_lshl_b32 s73, s73, 9"); e("s_add_u32 s73, s73, s14"); e(f"s_lshl_b32 s73, s73, {FS}"); e(f"s_add_u32 s73, s73, {FC_OFF}")
    e("v_and_b32 v3, 7, v1"); e(f"v_lshl_add_u32 v3, v3, {2+FS}, s73")
    e("s_lshr_b32 s73, s13, 3"); e(f"s_lshl_b32 s73, s73, {FS}"); e(f"s_add_u32 s73, s73, {FG_OFF}")
    e("v_mov_b32 v4, s73")
    e("v_cmp_gt_u32 vcc, 32, v1")
    e(f"v_add_u32 v12, s{ST_}, v2"); e(f"v_lshl_add_u32 v13, v1, 2, s{ST_}")
    e("v_cndmask_b32 v3, v4, v3, vcc")
    e("s_lshr_b32 s73, s6, 1"); e("s_lshl_b32 s73, s73, 5"); e("s_mul_i32 s74, s3, 7"); e("s_add_u32 s73, s73, s74")
    e(f"s_lshl_b32 s73, s73, {2+FS}"); e(f"s_add_u32 s73, s73, {FH_OFF}")
    e("v_min_u32 v5, 6, v1"); e(f"v_lshl_add_u32 v5, v5, {2+FS}, s73")
    e(f"v_mov_b32 v6, s{STAG}")
    poll(5, 4)
    e("ds_write_b32 v13, v6 offset:4352")
    if OPT("wb"):
        e("s_cmp_lt_u32 s2, 248"); e("s_cbranch_scc1 Lp2_nowb")
        e("buffer_wbl2 sc1")
        lab("Lp2_nowb")
    stamp(0, 1, P_WS)
    poll(3, 4)
    stamp(1, 1, P_WS)
    for j, so in enumerate(("s15", "s68", "s69", "s70")):
        e(f"buffer_load_dwordx2 {vr(EP+2*j,2)}, v10, {sr(SWS,4)}, {so} offen sc1")
    e(f"buffer_load_dwordx2 {vr(EP+16,2)}, v9, {sr(SWS,4)}, s71 offen sc1")
    AF = 40; BF = 56
    for i in range(8):
        e(f"v_lshlrev_b32 v{BF+2*i}, 16, v{EP+8+i}"); e(f"v_and_b32 v{BF+2*i+1}, 0xffff0000, v{EP+8+i}")
    e("s_waitcnt vmcnt(0)")
    for i in range(8):
        e(f"v_lshlrev_b32 v{AF+2*i}, 16, v{EP+i}"); e(f"v_and_b32 v{AF+2*i+1}, 0xffff0000, v{EP+i}")
    for i in range(16): e(f"v_mul_f32 v{AF+i}, v{AF+i}, v{EP+16}")
    for i in range(16): e(f"v_fmac_f32 v{AF+i}, v{BF+i}, v{EP+17}")
    for r in range(4): e(f"ds_write_b128 v12, {vr(AF+4*r,4)} offset:{1024*r}")
    e(f"ds_write_b32 v13, v{EP+17} offset:4096")
    e("s_waitcnt lgkmcnt(0)")
    stamp(2, 1, P_WS)
    e("s_barrier")
    e("s_endpgm")
    lab("Lp2_main")
    e("s_sub_u32 s10, s3, 4")
    ids(10)
    srd(SO, P_OUT, 2048*1024)
    e(f"s_mul_i32 s8, s10, {28*1024}")
    e(f"s_mul_i32 s9, s6, {2*112*1024}"); e("s_add_u32 s9, s9, s8")
    e(f"s_mul_i32 s13, s12, {112*1024}"); e(f"s_sub_u32 s14, {112*1024}, s13")
    e("s_add_u32 s13, s13, s9"); e("s_add_u32 s14, s14, s9")
    e("v_add_u32 v3, s13, v2"); e("v_add_u32 v4, s14, v2")
    e("v_lshlrev_b32 v12, 10, v7"); e("v_lshl_add_u32 v12, v8, 4, v12"); e("v_add_u32 v12, s72, v12")
    e(f"v_add_u32 v14, s{SA_}, v2")
    for t in range(1, 4):
        e(f"s_xor_b32 s14, s10, {t}"); e("s_mul_i32 s14, s14, 40960"); e("s_add_u32 s14, s14, 8704"); e(f"v_add_u32 v{6+t}, s14, v2")
    e(f"v_add_u32 v10, s{SA_}, v{VT}"); e("v_xor_b32 v11, 64, v10")
    e(f"v_add_u32 v2, s{ST_}, v2"); e(f"v_lshl_add_u32 v13, v1, 2, s{ST_}")
    stamp(0, 1, P_WS)
    e(f"s_mov_b32 s76, {SPIN*16}")
    lab("Lp2_wait")
    e("ds_read_b32 v6, v13 offset:4352")
    e("s_sub_u32 s76, s76, 1")
    e("s_waitcnt lgkmcnt(0)")
    e(f"v_cmp_ne_u32 vcc, s{STAG}, v6")
    e("s_cmp_eq_u32 s76, 0"); e("s_cbranch_scc1 Lp2_go")
    e("s_cbranch_vccz Lp2_go")
    e("s_sleep 1")
    e("s_branch Lp2_wait")
    lab("Lp2_go")
    stamp(1, 1, P_WS)
    hist = []
    def loads(s):
        fs = HREG[s % HD]
        for a in range(2):
            e(f"buffer_load_dwordx4 {vr(fs+4*a,4)}, v{3+a}, {sr(SWS,4)}, s{SG + s//4} offen offset:{1024*(s&3)}{HL}")
            hist.append(('h', s))
    def younger(k): return len(hist) - 1 - max(i for i, x in enumerate(hist) if x == k)
    def wrd(s):
        for b in range(2):
            for u in range(2):
                e(f"ds_read_b64_tr_b16 {vr(WD+8*(s&1)+4*b+2*u,2)}, v{10+b} offset:{2048*(s-14)+1024*u}")
    for s in range(HD): loads(s)
    for s in range(28):
        if 14 <= s + 1 < 28: wrd(s+1)
        e(f"s_waitcnt vmcnt({younger(('h', s))})" + (f" lgkmcnt({4 if s < 27 else 0})" if s >= 14 else ""))
        fs = HREG[s % HD]; wf = WR + 8*s if s < 14 else WD + 8*(s & 1)
        for b in range(2):
            for a in range(2):
                acc = vr(AC2+32*b+16*a, 16)
                e(f"v_mfma_f32_32x32x16_bf16 {acc}, {vr(wf+4*b,4)}, {vr(fs+4*a,4)}, {'0' if s == 0 else acc}")
        if s + HD < 28: loads(s + HD)
    stamp(2, 1, P_WS, 200)
    e("s_nop 7"); e("s_nop 1")
    for t in range(1, 4):
        for r in range(4):
            e(f"ds_write_b128 v14, {vr(AC2+16*t+4*r,4)} offset:{(t-1)*4096+r*1024}")
    e("s_waitcnt lgkmcnt(0)")
    e("s_barrier")
    stamp(3, 1, P_WS, 200)
    P = 128
    for t in range(3):
        for r in range(4): e(f"ds_read_b128 {vr(P+16*t+4*r,4)}, v{7+t} offset:{t*4096+r*1024}")
    e("s_waitcnt lgkmcnt(8)")
    for r in range(4): e(f"ds_read_b128 {vr(P+48+4*r,4)}, v2 offset:{r*1024}")
    e(f"ds_read_b32 v6, v13 offset:4096")
    for t in range(3):
        if t: e(f"s_waitcnt lgkmcnt({13-4*t})")
        for i in range(8): e(f"v_pk_add_f32 {p2(AC2+2*i)}, {p2(AC2+2*i)}, {p2(P+16*t+2*i)}")
    e("s_waitcnt lgkmcnt(0)")
    for i in range(16): e(f"v_fmac_f32 v{P+48+i}, v{AC2+i}, v6")
    O = 16
    for i in range(8): e(f"v_cvt_pk_bf16_f32 v{O+i}, v{P+48+2*i}, v{P+48+2*i+1}")
    e("s_nop 1")
    for jj in range(2):
        e(f"v_permlane32_swap_b32 v{O+4*jj}, v{O+4*jj+2}")
        e(f"v_permlane32_swap_b32 v{O+4*jj+1}, v{O+4*jj+3}")
    for jj in range(2):
        e(f"buffer_store_dwordx4 {vr(O+4*jj,4)}, v12, {sr(SO,4)}, 0 offen offset:{32*jj}")
    if STAMP:
        e("s_waitcnt vmcnt(0)")
        stamp(4, 1, P_WS, 200)
        for i in range(2):
            e(f"v_mov_b32 v200, s{56+2*i}"); e("v_add_u32 v202, 8, v202")
            e(f"global_store_dwordx2 v202, v[200:201], s[{P_WS}:{P_WS+1}]"); e("s_nop 1")
    e("s_endpgm")

def kd(name, vgpr, accum):
    out.append(f""".amdhsa_kernel {name}
  .amdhsa_next_free_vgpr {vgpr}
  .amdhsa_next_free_sgpr 102
  .amdhsa_accum_offset {accum}
  .amdhsa_group_segment_fixed_size 0
  .amdhsa_kernarg_size 128
  .amdhsa_user_sgpr_count 2
  .amdhsa_user_sgpr_kernarg_segment_ptr 1
  .amdhsa_system_sgpr_workgroup_id_x 1
.end_amdhsa_kernel""")

hdr = open(f"cdna_kernels/{NAME}.s.ref").read().splitlines()
for l in hdr:
    if l.startswith(";") and "@launch" not in l and "Override" not in l and "Harness parses" not in l: out.append(l)
K1 = "gmix_a_kernel" if OPT("ll") or STAMP else NAME + "_kernel"
out.append(f"; @launch {'kernel='+K1+' ' if OPT('ll') or STAMP else ''}grid=(256,1,1) block=(512,1,1) lds={LDS1}")
out.append('.amdgcn_target "amdgcn-amd-amdhsa--gfx950"')
out.append(".text")
out.append(f".globl {K1}")
out.append(".p2align 8"); out.append(f".type {K1},@function"); lab(K1)
EXIT = "La_exit"
prologue(256)
e("s_cmp_ge_u32 s5, 30")
e("s_cbranch_scc1 La_idle")
e("s_cmp_ge_u32 s5, 14")
e("s_cbranch_scc1 La_conv")
gemm1()
lab("La_conv")
conv()
lab("La_idle")
idle()
gemm2()
lab(EXIT); e("s_endpgm")
out.append('.section .rodata,"a"'); out.append(".p2align 6")
kd(K1, 256, 256)
dst = [a for a in sys.argv[1:] if not a.startswith("--")]
open(dst[0] if dst else f"cdna_kernels/{NAME}.s", "w").write("\n".join(out) + "\n")
```

```python
import sys, struct
NAME = "gated_mix__ssm_conv_s4d__dense_activation_squared_relu__prompt"
STAMP = "--stamp" in sys.argv or "--dbg" in sys.argv

OPT = lambda k: ("--"+k) in sys.argv
SC1A = "" if OPT("nosc1") else " sc1"
SC1H = "" if OPT("nosc1") or OPT("hpl") else " sc1"
NTW1 = " nt" if OPT("ntw1") else ""
DEP = int(([a[6:] for a in sys.argv if a.startswith("--dep=")] + ["5"])[0])
HF_OFF = 0
HF_SZ = 64*112*1024
WF_OFF = HF_SZ
WF_SZ = 16*112*1024
A4_OFF = WF_OFF + WF_SZ
A4_SZ = 128*2048*8
G_OFF = A4_OFF + A4_SZ
G_SZ = 2048*8
FH_OFF = G_OFF + G_SZ
FS = int(([a[5:] for a in sys.argv if a.startswith('--fs=')] + ['5'])[0])
FC_OFF = FH_OFF + (2048 << FS)
FG_OFF = FC_OFF + (2048 << FS)
WS_USED = FG_OFF + (256 << FS)
SLP = int(([a[6:] for a in sys.argv if a.startswith("--slp=")] + ["1"])[0])
SPIN = 40000
CPF = 240
PFN = int(([a[6:] for a in sys.argv if a.startswith('--pfn=')] + ['0'])[0])
HL = '' if OPT('hplain') else ' nt' if OPT('hnt') else ' sc1'
XV = int(([a[5:] for a in sys.argv if a.startswith('--xv=')] + ['1'])[0])
ST_OFF = 0x1000000

out = []
def e(s): out.append("    " + s)
def lab(s): out.append(s + ":")
def cm(s): out.append("    ; " + s)
def f32(x): return "0x%08x" % struct.unpack("<I", struct.pack("<f", x))[0]
def vr(a, n): return f"v[{a}:{a+n-1}]"
def ar(a, n): return f"a[{a}:{a+n-1}]"
def sr(a, n): return f"s[{a}:{a+n-1}]"
def srd(d, ptr, size, off=None):
    if off is None:
        e(f"s_mov_b32 s{d}, s{ptr}"); e(f"s_mov_b32 s{d+1}, s{ptr+1}")
    else:
        e(f"s_add_u32 s{d}, s{ptr}, {off}"); e(f"s_addc_u32 s{d+1}, s{ptr+1}, 0")
    e(f"s_mov_b32 s{d+2}, {size}"); e(f"s_mov_b32 s{d+3}, 0x20000")

DBG = "--dbg" in sys.argv
ROLE = [0]
def stamp(idx, kern, wsp, tmp=250):
    if DBG:
        slot = {(0,0):[0,1,2,3], (0,1):[0,4,5,6], (0,2):[0,7,8,9,10,11], (1,0):[12,13,14]}[(kern,ROLE[0])][idx]
        e("s_memrealtime s[96:97]")
        e(f"s_sub_u32 s98, s44, {512*kern}"); e("s_subb_u32 s99, s45, 0")
        e("s_waitcnt lgkmcnt(0)")
        if slot == 0 or slot == 12: e("s_not_b32 s96, s96")
        e(f"v_mov_b32 v{tmp}, s96"); e(f"v_mov_b32 v{tmp+2}, {4*slot}")
        e("s_mov_b64 exec, 1")
        e(f"global_atomic_umax v{tmp+2}, v{tmp}, s[98:99]")
        e("s_mov_b64 exec, -1")
        return
    if not STAMP: return
    e("s_memrealtime s[96:97]")
    e("s_memtime s[100:101]")
    e("s_lshl_b32 s98, s2, 3"); e("s_add_u32 s98, s98, s3"); e("s_lshl_b32 s98, s98, 6")
    e(f"s_add_u32 s98, s98, {ST_OFF + kern*0x40000 + idx*8}")
    e("s_waitcnt lgkmcnt(0)")
    e(f"v_mov_b32 v{tmp}, s96"); e(f"v_mov_b32 v{tmp+1}, s100"); e(f"v_mov_b32 v{tmp+2}, s98")
    e(f"global_store_dwordx2 v{tmp+2}, v[{tmp}:{tmp+1}], s[{wsp}:{wsp+1}]")

P_U, P_LAR, P_AIM, P_CR, P_CI, P_LDT, P_DSK = 16, 18, 20, 22, 24, 26, 28
P_W1, P_B1, P_W2, P_B2, P_GW, P_OUT, P_DBG, P_WS = 32, 34, 36, 38, 40, 42, 44, 46
LOG2E = 1.4426950408889634
L_HI = struct.unpack("<f", struct.pack("<f", LOG2E))[0]
L_LO = LOG2E - L_HI
LN2 = 0.6931471805599453

def prologue(nwg):
    e(f"s_cmp_ge_u32 s2, {nwg}")
    e("s_cbranch_scc1 " + EXIT)
    e("s_load_dwordx16 s[16:31], s[0:1], 0")
    e("s_load_dwordx16 s[32:47], s[0:1], 64")
    if OPT("cpf"):
        e(f"s_cmp_lt_u32 s2, {CPF}")
        e("s_cbranch_scc1 La_nocpf")
        e("s_getpc_b64 s[6:7]")
        lab("La_pc")
        e("v_lshlrev_b32 v2, 6, v0")
        e("v_min_u32 v2, La_exit-La_pc, v2")
        e("global_load_dword v255, v2, s[6:7]")
        lab("La_nocpf")
    e("v_lshrrev_b32 v2, 6, v0")
    e("v_and_b32 v1, 63, v0")
    e("v_readfirstlane_b32 s3, v2")
    e("s_and_b32 s4, s2, 7")
    e("s_lshr_b32 s5, s2, 3")


SG = 80
SA_, SB_, SC_, ST_, SSTR, STAG, SW2P = 87, 88, 89, 90, 78, 79, 92
WR = 128; WD = 240; AC2 = 64
HD = int(([a[5:] for a in sys.argv if a.startswith("--hd=")] + ["5"])[0])
HREG = [16, 24, 32, 48, 56]
VW0, VW1, VT = 44, 45, 43
uid = [0]
def p2_setup(gemm_map, vw0, vw1, vt, t0):
    e("s_sub_u32 s77, s3, 4")
    e("s_bfe_u32 s76, s2, 0x30003")
    e(f"s_mul_i32 s91, s77, {448*1024}"); e("s_lshl_b32 s80, s76, 7"); e("s_add_u32 s91, s91, s80")
    e(f"v_lshrrev_b32 v{vw0}, 3, v1"); e(f"v_lshlrev_b32 v{vw0}, 10, v{vw0}")
    e(f"v_bfe_u32 v{vw1}, v1, 4, 1"); e(f"v_lshlrev_b32 v{vw1}, 2, v{vw1}"); e(f"v_and_b32 v{t0}, 7, v1"); e(f"v_xor_b32 v{vw1}, v{vw1}, v{t0}")
    e(f"v_lshl_add_u32 v{vw0}, v{vw1}, 4, v{vw0}"); e(f"v_add_u32 v{vw0}, s91, v{vw0}"); e(f"v_add_u32 v{vw1}, 0x2000, v{vw0}")
    if OPT("lin"):
        e("s_mul_i32 s91, s76, 229376"); e("s_mul_i32 s80, s77, 57344"); e("s_add_u32 s91, s91, s80")
        e(f"v_lshl_add_u32 v{vw0}, v1, 4, s91"); e(f"v_add_u32 v{vw1}, 0x400, v{vw0}")
    e("s_lshr_b32 s80, s2, 6"); e("s_lshl_b32 s80, s80, 1"); e("s_add_u32 s80, s80, s76")
    e("s_cmp_ge_u32 s80, 7"); e("s_cselect_b32 s81, 7, 0"); e("s_sub_u32 s80, s80, s81")
    e("s_lshl_b32 s80, s80, 12")
    for i in range(1, 7):
        e(f"s_add_u32 s{80+i}, s{79+i}, 4096"); e(f"s_cmp_eq_u32 s{80+i}, {7*4096}"); e(f"s_cselect_b32 s{80+i}, 0, s{80+i}")
    e("s_lshr_b32 s76, s77, 1")
    e(f"v_bfe_u32 v{vt}, v1, 2, 2"); e(f"v_lshrrev_b32 v{t0}, 5, v1"); e(f"v_lshl_add_u32 v{vt}, v{t0}, 2, v{vt}"); e(f"v_lshlrev_b32 v{vt}, 7, v{vt}")
    e(f"v_bfe_u32 v{t0}, v1, 3, 1"); e(f"v_xor_b32 v{t0}, s76, v{t0}"); e(f"v_lshl_add_u32 v{vt}, v{t0}, 6, v{vt}")
    e(f"v_bfe_u32 v{t0}, v1, 4, 1"); e(f"v_lshl_add_u32 v{vt}, v{t0}, 5, v{vt}")
    e(f"v_and_b32 v{t0}, 3, v1"); e(f"v_lshl_add_u32 v{vt}, v{t0}, 3, v{vt}")
    p2_map(77)
    e(f"s_add_u32 s{SA_}, s{ST_}, 8704"); e(f"s_add_u32 s{SB_}, s{ST_}, 29184")
    if gemm_map:
        e(f"s_mul_i32 s{SSTR}, s77, 12288"); e(f"s_add_u32 s{SSTR}, s{SSTR}, 98304")
        e(f"s_lshl_b32 s{SC_}, s77, 12"); e(f"s_add_u32 s{SC_}, s{SC_}, 147456")
    srd(SW2P, P_W2, 1792*1024)
def p2_map(q):
    e(f"s_mul_i32 s{ST_}, s{q}, 40960")
def wdma(s0, n, base, vw0=VW0, vw1=VW1, slot0=0):
    for i in range(n):
        s = s0 + i
        e(f"s_add_u32 m0, s{base}, {2048*(i+slot0)}")
        if i == 0 or s & 3 == 0:
            e(f"s_lshl_b32 s91, s{SG + s//4}, {1 if OPT('lin') else 4}")
            if s & 3: e(f"s_add_u32 s91, s91, {(2048 if OPT('lin') else 16384)*(s&3)}")
        else: e(f"s_add_u32 s91, s91, {2048 if OPT('lin') else 16384}")
        e(f"buffer_load_dwordx4 v{vw0}, {sr(SW2P,4)}, s91 offen lds")
        e("s_add_u32 m0, m0, 1024"); e("s_nop 0")
        e(f"buffer_load_dwordx4 v{vw1}, {sr(SW2P,4)}, s91 offen lds")
def wrd_regs(s0, n, base, vt=VT, slot0=0):
    e(f"v_add_u32 v{WD}, s{base}, v{vt}"); e(f"v_xor_b32 v{WD+1}, 64, v{WD}")
    for i in range(n):
        for b in range(2):
            for u in range(2):
                e(f"ds_read_b64_tr_b16 {vr(WR+8*(s0+i)+4*b+2*u,2)}, v{WD+b} offset:{2048*(i+slot0)+1024*u}")
def wpre_conv(mid):
    wdma(0, 10, SA_)
    mid()
    if STAMP: e("s_memrealtime s[56:57]")
    wrd_regs(0, 10, SA_)
    e("s_waitcnt lgkmcnt(0)")
    wdma(10, 4, SA_, slot0=6); wdma(14, 6, SA_)
    if STAMP: e("s_memrealtime s[58:59]")
def wpost_conv():
    wrd_regs(10, 4, SA_, slot0=6)
    wdma(24, 4, SA_, slot0=10)
    e("s_waitcnt lgkmcnt(0)")
    wdma(20, 4, SA_, slot0=6)
def tag_issue(v):
    e(f"v_mov_b32 v{v}, 0")
    e(f"global_load_dword v{v}, v{v}, {sr(P_DBG,2)}")
def tag_get(v, t):
    uid[0] += 1; L = f"Ltag{uid[0]}"
    e(f"v_readfirstlane_b32 s{STAG}, v{v}")
    e(f"s_cmp_lg_u32 s{STAG}, 0"); e(f"s_cbranch_scc1 {L}")
    e("s_memrealtime s[76:77]"); e(f"v_mov_b32 v{t+1}, 0"); e(f"v_mov_b32 v{t+2}, 0")
    e("s_waitcnt lgkmcnt(0)")
    e("s_or_b32 s76, s76, 1"); e(f"v_mov_b32 v{t}, s76")
    e("s_mov_b64 exec, 1")
    e(f"global_atomic_cmpswap v{v}, v{t+2}, {vr(t,2)}, {sr(P_DBG,2)} sc0 sc1")
    e("s_waitcnt vmcnt(0)")
    e(f"v_readfirstlane_b32 s{STAG}, v{v}")
    e("s_mov_b64 exec, -1")
    e(f"s_cmp_eq_u32 s{STAG}, 0"); e(f"s_cselect_b32 s{STAG}, s76, s{STAG}")
    lab(L)
def publish(soff, t):
    e(f"v_mov_b32 v{t}, s{STAG}"); e(f"v_mov_b32 v{t+1}, s{soff}")
    e("s_mov_b64 exec, 1")
    e(f"global_store_dword v{t+1}, v{t}, {sr(P_WS,2)} sc1")
    e("s_mov_b64 exec, -1")
def poll(va, vd, n=None):
    uid[0] += 1; L = f"Lpoll{uid[0]}"
    e(f"s_mov_b32 s76, {n or SPIN}")
    lab(L)
    e(f"global_load_dword v{vd}, v{va}, {sr(P_WS,2)} sc1")
    e("s_sub_u32 s76, s76, 1")
    e("s_waitcnt vmcnt(0)")
    e(f"v_cmp_ne_u32 vcc, s{STAG}, v{vd}")
    e("s_cmp_eq_u32 s76, 0"); e(f"s_cbranch_scc1 {L}x")
    e(f"s_cbranch_vccz {L}x")
    e(f"s_sleep {SLP}")
    e(f"s_branch {L}")
    lab(L + "x")

def gemm1():
    SX, SW, SH, SB = 48, 52, 56, 60
    SL = 49152; WB = 32768
    cm("---- GEMM1: mt = s4, ft = s5; waves 0-3 compute, 4-7 load")
    e("s_lshl_b32 s8, s5, 8")
    e("s_cmp_lt_u32 s3, 4")
    e("s_cbranch_scc1 Lg_comp")
    vX0, vX1, vW = 2, 3, 4
    e("s_sub_u32 s11, s3, 4")
    e("s_lshl_b32 s6, s4, 18")
    e("s_lshl_b32 s7, s11, 16")
    e("v_lshrrev_b32 v5, 3, v1")
    e("v_lshrrev_b32 v6, 4, v1")
    e("v_and_b32 v7, 7, v1")
    e("v_xor_b32 v7, v7, v6")
    e("v_lshlrev_b32 v7, 4, v7")
    e(f"v_lshl_add_u32 v{vX0}, v5, 10, v7")
    e(f"v_add_u32 v{vX0}, s7, v{vX0}")
    e(f"v_xor_b32 v{vX1}, 64, v{vX0}")
    e(f"v_add_u32 v{vX1}, 0x2000, v{vX1}")
    e("s_mul_i32 s7, s11, %d" % (16*3584))
    e("s_add_u32 s7, s7, s8")
    e("v_and_b32 v7, 15, v1")
    e("v_lshlrev_b32 v5, 2, v6")
    e("v_xor_b32 v7, v7, v5")
    e("v_lshlrev_b32 v7, 4, v7")
    e("v_mul_u32_u24 v5, 3584, v6")
    e(f"v_add3_u32 v{vW}, v5, v7, s7")
    e("s_lshl_b32 s9, s11, 13")
    e("s_lshl_b32 s10, s11, 12")
    e(f"s_add_u32 s10, s10, {WB}")
    ROT = int(([a[6:] for a in sys.argv if a.startswith("--rot=")] + ["0"])[0])
    if ROT == 0: e("s_add_u32 s12, s4, s5")
    if ROT == 1: e("s_mov_b32 s12, s4")
    if ROT == 2: e("s_lshl_b32 s12, s5, 2"); e("s_add_u32 s12, s12, s4")
    if ROT == 3: e("s_lshl_b32 s12, s5, 1"); e("s_add_u32 s12, s12, s4")
    e("s_waitcnt lgkmcnt(0)")
    stamp(0, 0, P_WS)
    srd(SX, P_U, 262144, "s6")
    srd(SW, P_W1, 512*3584)
    def issue(k):
        e("s_and_b32 s12, s12, 7")
        e("s_lshl_b32 s14, s12, 7")
        e(f"s_add_u32 m0, s10, {(k % 3)*SL}")
        e(f"s_mul_i32 s64, s12, {64*3584}")
        for i in range(4):
            e(f"buffer_load_dwordx4 v{vW}, {sr(SW,4)}, s64 offen lds")
            if i < 3:
                e("s_add_u32 m0, m0, 1024"); e(f"s_add_u32 s64, s64, {4*3584}")
        e(f"s_add_u32 m0, s9, {(k % 3)*SL}")
        e("s_add_u32 s12, s12, 1")
        for i in range(8):
            e(f"buffer_load_dwordx4 v{vX1 if i & 1 else vX0}, {sr(SX,4)}, s14 offen lds")
            if i < 7:
                e("s_add_u32 m0, m0, 1024")
                e("s_add_u32 s14, s14, 16384" if i & 1 else "s_nop 0")
    issue(0); issue(1)
    p2_setup(True, VW0, VW1, VT, 5)
    e("s_waitcnt vmcnt(12)")
    e("s_barrier")
    for k in range(2, 8):
        issue(k)
        if k >= 4: e("s_waitcnt vmcnt(26)"); wrd_regs(k-4, 1, SC_, slot0=k & 1); e("s_waitcnt lgkmcnt(0)")
        wdma(k-2, 1, SC_, slot0=k & 1)
        e(f"s_waitcnt vmcnt({14 if k == 2 else 16})")
        e("s_barrier")
    wdma(8, 6, SSTR)
    e("s_waitcnt vmcnt(12)")
    wrd_regs(4, 2, SC_)
    e("s_barrier")
    e("s_waitcnt lgkmcnt(0)")
    wdma(6, 2, SC_)
    tag_issue(2)
    e("s_waitcnt vmcnt(5)")
    if STAMP: e("s_memrealtime s[56:57]")
    wrd_regs(8, 6, SSTR)
    e("s_waitcnt vmcnt(0)")
    wrd_regs(6, 2, SC_)
    tag_get(2, 4)
    e("s_waitcnt lgkmcnt(0)")
    e("s_barrier")
    if STAMP: e("s_memrealtime s[58:59]")
    wdma(14, 14, SA_)
    e("s_branch Lp2_main")
    lab("Lg_comp")
    vXa, vXb, vWa, vH, vWb = 8, 12, 16, 18, 22
    F = [32, 56]
    ACC = 128
    e("s_and_b32 s11, s3, 1")
    e("s_lshr_b32 s12, s3, 1")
    e("s_lshl_b32 s13, s12, 7")
    e("s_add_u32 s13, s13, s8")
    e("v_lshrrev_b32 v5, 5, v1")
    e("v_lshl_add_u32 v7, v5, 3, s13")
    e("s_waitcnt lgkmcnt(0)")
    stamp(0, 0, P_WS, 24)
    srd(SB, P_B1, 3584)
    srd(SH, P_WS, HF_SZ)
    for b in range(2):
        for j in range(4):
            e(f"buffer_load_dwordx2 {vr(80+8*b+2*j,2)}, v7, {sr(SB,4)}, 0 offen offset:{64*b+16*j}")
    e("v_and_b32 v6, 31, v1")
    e("v_bfe_u32 v7, v1, 1, 3")
    e("v_xor_b32 v7, v7, v5")
    e("v_lshlrev_b32 v7, 4, v7")
    e("v_lshl_add_u32 v7, v6, 7, v7")
    e("s_lshl_b32 s13, s11, 14")
    e(f"v_add_u32 v{vXa}, s13, v7")
    for ks in range(1, 4): e(f"v_xor_b32 v{vXa+ks}, {32*ks}, v{vXa}")
    for ks in range(4): e(f"v_add_u32 v{vXb+ks}, {2*SL}, v{vXa+ks}")
    e("v_bfe_u32 v6, v1, 2, 2")
    e("v_lshl_add_u32 v7, v5, 3, v6")
    e("v_lshlrev_b32 v7, 8, v7")
    e("v_bfe_u32 v19, v1, 4, 1")
    e("v_bfe_u32 v20, v1, 1, 1")
    e("v_lshl_add_u32 v19, v19, 1, v20")
    e("s_lshl_b32 s13, s12, 3")
    e("v_add_u32 v19, s13, v19")
    e("v_lshlrev_b32 v6, 2, v6")
    e("v_xor_b32 v19, v19, v6")
    e("v_lshl_add_u32 v7, v19, 4, v7")
    e("v_and_b32 v20, 1, v1")
    e("v_lshl_add_u32 v7, v20, 3, v7")
    e(f"v_add_u32 v{vWa}, {WB}, v7")
    e(f"v_xor_b32 v{vWa+1}, 64, v{vWa}")
    for b in range(2): e(f"v_add_u32 v{vWb+b}, {2*SL}, v{vWa+b}")
    e("s_lshl_b32 s68, s4, 1"); e("s_add_u32 s68, s68, s11"); e("s_lshl_b32 s68, s68, 5")
    e("s_lshl_b32 s13, s5, 1"); e("s_add_u32 s68, s68, s13"); e("s_add_u32 s68, s68, s12")
    e(f"s_lshl_b32 s68, s68, {2+FS}"); e(f"s_add_u32 s68, s68, {FH_OFF}")
    p2_map(3)
    e("s_lshl_b32 s13, s4, 3"); e("s_lshl_b32 s14, s11, 2"); e("s_add_u32 s13, s13, s14")
    e("s_mul_i32 s13, s13, 112")
    e("s_lshl_b32 s14, s5, 3"); e("s_add_u32 s13, s13, s14")
    e("s_lshl_b32 s14, s12, 2"); e("s_add_u32 s13, s13, s14")
    e("s_lshl_b32 s13, s13, 10")
    e(f"v_lshl_add_u32 v{vH}, v1, 4, s13")
    e("v_and_b32 v28, 31, v1"); e("v_lshl_add_u32 v28, v28, 7, s13"); e(f"v_mul_u32_u24 v29, {112*1024}, v5"); e("v_add_u32 v28, v28, v29")
    for a in range(1, 4): e(f"s_mov_b32 s{64+a}, {a*112*1024}")
    BI = 96
    e("s_waitcnt vmcnt(0)")
    for b in range(2):
        for j in range(8):
            src = 80 + 8*b + j
            e(f"v_lshlrev_b32 v{BI+16*b+2*j}, 16, v{src}")
            e(f"v_and_b32 v{BI+16*b+2*j+1}, 0xffff0000, v{src}")
    def xrd(s, ks, a, reg):
        sl = s % 3
        return f"ds_read_b128 {vr(reg,4)}, v{(vXb if sl == 2 else vXa) + ks} offset:{(sl*SL if sl < 2 else 0)+4096*a}"
    def wrd(s, ks, b, reg):
        sl = s % 3
        return [f"ds_read_b64_tr_b16 {vr(reg+2*u,2)}, v{(vWb if sl == 2 else vWa)+b} offset:{(sl*SL if sl < 2 else 0)+(16*ks+4*u)*256}" for u in range(2)]
    def rdlist(s, ks, fs):
        return wrd(s, ks, 0, fs+16) + [xrd(s, ks, a, fs+4*a) for a in range(4)] + wrd(s, ks, 1, fs+20)
    def mfmas(fs, rl, first=False):
        n = 0
        for b in range(2):
            for a in range(4):
                acc = vr(ACC+64*b+16*a, 16)
                e(f"v_mfma_f32_32x32x16_bf16 {acc}, {vr(fs+16+4*b,4)}, {vr(fs+4*a,4)}, {vr(BI+16*b,16) if first else acc}")
                for r in rl[2*n:2*n+2]: e(r)
                n += 1
    quads = list(range(32, 56, 4)) + list(range(80, 128, 4)) + list(range(56, 80, 4))
    W7 = {(0, ks): quads[ks] for ks in range(4)}
    X7 = {(a, ks): quads[4+4*a+ks] for a in range(4) for ks in range(4)}
    W7.update({(1, ks): quads[20+ks] for ks in range(4)})
    def w7(b): return sum((wrd(7, ks, b, W7[b, ks]) for ks in range(4)), [])
    def x7(a): return [xrd(7, ks, a, X7[a, ks]) for ks in range(4)]
    e("s_barrier")
    stamp(1, 0, P_WS, 24)
    for r in rdlist(0, 0, F[0]): e(r)
    for s in range(7):
        for ks in range(4):
            e("s_waitcnt lgkmcnt(0)")
            if ks < 3: rl = rdlist(s, ks+1, F[(ks+1) & 1])
            else:
                e("s_barrier")
                rl = rdlist(s+1, 0, F[0]) if s < 6 else w7(0) + x7(0) + x7(1)
            if s == 4 and ks == 0: tag_issue(4)
            mfmas(F[ks & 1], rl, s == 0 and ks == 0)
    def epi(j):
        b, a = j >> 2, j & 3
        base = ACC+64*b+16*a
        L = [f"v_max_f32 v{base+r}, 0, v{base+r}" for r in range(16)]
        L += [f"v_pk_mul_f32 {vr(base+2*r,2)}, {vr(base+2*r,2)}, {vr(base+2*r,2)}" for r in range(8)]
        L += [f"v_cvt_pk_bf16_f32 v{base+r}, v{base+2*r}, v{base+2*r+1}" for r in range(8)]
        L += [f"buffer_store_dwordx4 {vr(base+4*s_,4)}, v{vH}, {sr(SH,4)}, {'0' if a == 0 else 's%d' % (64+a)} offen offset:{2048*b+1024*s_}{SC1H}" for s_ in range(0 if OPT("nost") else 2)]
        return L
    extra = {0: x7(2) + x7(3), 1: w7(1)}
    waits = {0: 4, 1: 8, 2: 12, 3: 8, 4: 0}
    pend = []
    pos = [0]
    def emit(x): e(x); pos[0] += 1
    for j in range(8):
        b, a = j >> 2, j & 3
        if j in waits: emit(f"s_waitcnt lgkmcnt({waits[j]})")
        acc = vr(ACC+64*b+16*a, 16)
        for ks in range(4):
            emit(f"v_mfma_f32_32x32x16_bf16 {acc}, {vr(W7[b,ks],4)}, {vr(X7[a,ks],4)}, {acc}")
            if ks == 3: pend += [(x, pos[0] + 12) for x in epi(j)]
            for r in extra.get(j, [])[2*ks:2*ks+2]: emit(r)
            n = 0
            while pend and n < 9 and pend[0][1] <= pos[0]:
                emit(pend.pop(0)[0]); n += 1
    stamp(2, 0, P_WS, 24)
    while pend:
        if pend[0][1] > pos[0]:
            d = pend[0][1] - pos[0]; e(f"s_nop {d-1}"); pos[0] += d
        emit(pend.pop(0)[0])
    if XV == 2: e("s_barrier")
    e("s_waitcnt vmcnt(0)" if OPT("nost") else "s_waitcnt vmcnt(16)")
    tag_get(4, 20)
    e("s_waitcnt vmcnt(0)")
    publish(68, 20)
    if OPT("hpf"):
        e(f"buffer_load_dword v100, v28, {sr(SH,4)}, 0 offen sc1")
        e(f"buffer_load_dword v101, v28, {sr(SH,4)}, s66 offen sc1")
    stamp(3, 0, P_WS, 24)
    if XV != 2: e("s_barrier")
    e("s_branch Lp2_aux")

PITCH = 528
CR_SZ = 59*PITCH
R_OFF = 32*PITCH
RG = 40960
UB = CR_SZ
US = 4576
LDS1 = 4*RG

def exp_acc(dst, x, t0, t1):
    e(f"v_mul_f32 v{t0}, s70, v{x}")
    e(f"v_fma_f32 v{t1}, v{x}, s70, -v{t0}")
    e(f"v_exp_f32 v{dst}, v{t0}")
    e(f"v_fmac_f32 v{t1}, {f32(L_LO)}, v{x}")
    e(f"v_mul_f32 v{t1}, {f32(LN2)}, v{t1}")
    e(f"v_fmac_f32 v{dst}, v{dst}, v{t1}")

def cexp(dr, di, zr2, zi2, p, t):
    if p == 1:
        e(f"v_exp_f32 v{t}, v{zr2}")
        e(f"v_fract_f32 v{di}, v{zi2}")
    else:
        e(f"v_mul_f32 v{t}, {f32(p)}, v{zr2}")
        e(f"v_mul_f32 v{di}, {f32(p)}, v{zi2}")
        e(f"v_exp_f32 v{t}, v{t}")
        e(f"v_fract_f32 v{di}, v{di}")
    e(f"v_cos_f32 v{dr}, v{di}")
    e(f"v_sin_f32 v{di}, v{di}")
    e(f"v_mul_f32 v{dr}, v{dr}, v{t}")
    e(f"v_mul_f32 v{di}, v{di}, v{t}")

def p2(r): return f"v[{r}:{r+1}]"
def cmulp(d, x, en, t):
    e(f"v_pk_mul_f32 {p2(t)}, {p2(x+2)}, {p2(en+2)}")
    e(f"v_pk_mul_f32 {p2(t+2)}, {p2(x+2)}, {p2(en)}")
    e(f"v_pk_fma_f32 {p2(d+2)}, {p2(x)}, {p2(en+2)}, {p2(t+2)}")
    e(f"v_pk_fma_f32 {p2(d)}, {p2(x)}, {p2(en)}, {p2(t)} neg_lo:[0,0,1] neg_hi:[0,0,1]")

CS2 = 4224
def conv():
    SU, SWS, SW2 = 48, 52, 56
    UR = 46
    cm("---- conv role: G = 16*s4 + s5 - 14")
    e("s_sub_u32 s5, s5, 14")
    e("s_lshl_b32 s6, s4, 4"); e("s_add_u32 s6, s6, s5")
    e("s_and_b32 s7, s3, 3")
    e("s_lshl_b32 s8, s6, 2"); e("s_add_u32 s8, s8, s7")
    e("s_lshl_b32 s9, s8, 8")
    e("v_lshl_add_u32 v2, v1, 2, s9")
    e("s_lshr_b32 s10, s8, 1"); e("s_lshl_b32 s10, s10, 2")
    e("s_lshl_b32 s11, s6, 3")
    e(f"s_mul_i32 s12, s7, {RG}")
    e("v_lshl_add_u32 v3, v1, 3, s12")
    e(f"s_mov_b32 s70, {f32(L_HI)}")
    e("s_lshl_b32 s64, s5, 17"); e("s_lshl_b32 s65, s3, 14"); e("s_add_u32 s64, s64, s65"); e("s_add_u32 s64, s64, s11")
    e("v_and_b32 v9, 15, v1"); e("v_lshl_add_u32 v9, v9, 10, s64")
    e("s_waitcnt lgkmcnt(0)")
    stamp(0, 0, P_WS)
    e(f"s_load_dword s13, {sr(P_LDT,2)}, s10")
    e(f"s_load_dwordx2 s[14:15], {sr(P_DSK,2)}, s11")
    e(f"global_load_dword v4, v2, {sr(P_LAR,2)}")
    e(f"global_load_dword v5, v2, {sr(P_AIM,2)}")
    e(f"global_load_dword v6, v2, {sr(P_CR,2)}")
    e(f"global_load_dword v7, v2, {sr(P_CI,2)}")
    e(f"global_load_dword v11, v9, {sr(P_U,2)}")
    srd(SWS, P_WS, WS_USED)
    srd(SU, P_U, 2048*1024)
    e("v_subrev_u32 v8, 256, v0")
    e("v_lshl_add_u32 v9, v8, 13, s11")
    e("v_subrev_u32 v10, 0x400, v9")
    e("s_movk_i32 s64, 4096")
    e("v_and_b32 v20, 31, v1"); e("v_lshrrev_b32 v21, 5, v1")
    e(f"v_mul_u32_u24 v22, {PITCH}, v20")
    e("v_lshl_add_u32 v22, v21, 4, v22")
    e("v_add_u32 v22, s12, v22")
    e("v_mov_b32 v23, v20")
    for thr in (11, 12, 15, 19, 23):
        e(f"v_cmp_le_u32 vcc, {thr}, v20")
        e("s_nop 1")
        e("v_subbrev_co_u32 v23, vcc, 0, v23, vcc")
    e(f"v_mul_u32_u24 v23, {PITCH}, v23")
    e("v_lshl_add_u32 v23, v21, 4, v23")
    e(f"s_add_u32 s66, s12, {R_OFF}")
    e("v_add_u32 v23, s66, v23")
    e("s_waitcnt lgkmcnt(0)")
    e("s_bitcmp1_b32 s8, 0")
    e("s_cselect_b32 s65, 0, 16")
    e("s_lshl_b32 s13, s13, s65")
    e("s_and_b32 s13, s13, 0xffff0000")
    e("v_mov_b32 v12, s13")
    exp_acc(13, 12, 14, 15)
    e("v_cvt_pk_bf16_f32 v13, v13, v13")
    e("v_and_b32 v13, 0xffff0000, v13")
    e("s_waitcnt vmcnt(3)")
    stamp(6, 0, P_WS)
    e("v_lshlrev_b32 v16, 16, v4"); e("v_and_b32 v17, 0xffff0000, v4")
    exp_acc(18, 16, 14, 15); exp_acc(19, 17, 24, 25)
    e("v_cvt_pk_bf16_f32 v18, v18, v19")
    e("v_lshlrev_b32 v16, 16, v18"); e("v_and_b32 v17, 0xffff0000, v18")
    e("v_lshlrev_b32 v18, 16, v5"); e("v_and_b32 v19, 0xffff0000, v5")
    for r in range(16, 20): e(f"v_mul_f32 v{r}, v{r}, v13")
    e(f"v_mul_f32 v16, {f32(-LOG2E)}, v16"); e(f"v_mul_f32 v17, {f32(-LOG2E)}, v17")
    e("v_mul_f32 v18, 0.15915494, v18"); e("v_mul_f32 v19, 0.15915494, v19")
    e("s_cmp_lt_u32 s3, 4")
    e("s_cbranch_scc0 Lc_rwave")
    ROLE[0] = 1
    E = 24; X = 28; T = 32; PK = 40
    cexp(E, E+2, 16, 18, 8, T); cexp(E+1, E+3, 17, 19, 8, T+1)
    e(f"v_mov_b32 v{X}, 1.0"); e(f"v_mov_b32 v{X+1}, 1.0"); e(f"v_mov_b32 v{X+2}, 0"); e(f"v_mov_b32 v{X+3}, 0")
    e("s_mov_b32 s66, 0")
    lab("Lc_lgen")
    for k in range(4):
        pk = PK + 2*k
        e(f"v_cvt_pk_bf16_f32 v{pk}, v{X}, v{X+2}")
        e(f"v_cvt_pk_bf16_f32 v{pk+1}, v{X+1}, v{X+3}")
        cmulp(X, X, E, T)
        e(f"ds_write_b64 v3, {vr(pk,2)} offset:{k*PITCH}")
    e(f"v_add_u32 v3, {4*PITCH}, v3")
    e("s_add_u32 s66, s66, 1"); e("s_cmp_lt_u32 s66, 8"); e("s_cbranch_scc1 Lc_lgen")
    e("s_waitcnt vmcnt(0)")
    e("v_and_b32 v4, 1, v1"); e("v_xor_b32 v4, 1, v4"); e(f"v_mul_u32_u24 v4, {CS2}, v4")
    e("v_bfe_u32 v5, v1, 1, 1"); e("v_lshl_add_u32 v4, v5, 3, v4")
    e("v_bfe_u32 v5, v1, 2, 2"); e("v_lshrrev_b32 v6, 4, v1"); e("v_add_u32 v5, v5, v6")
    e("v_lshl_add_u32 v4, v5, 4, v4"); e("s_add_u32 s66, s12, 8"); e("v_add_u32 v4, s66, v4")
    e("v_and_b32 v5, 1, v1"); e(f"v_mul_u32_u24 v5, {US}, v5")
    e("v_bfe_u32 v7, v1, 1, 3"); e("v_lshlrev_b32 v8, 2, v7"); e("v_sub_u32 v8, v8, v6")
    e("v_lshl_add_u32 v5, v8, 4, v5")
    e(f"s_add_u32 s66, s12, {UB+448+48}")
    e("v_add_u32 v5, s66, v5")
    e("v_mul_u32_u24 v8, 272, v6"); e("v_and_b32 v9, 15, v1"); e("v_lshl_add_u32 v8, v9, 4, v8"); e("v_add_u32 v8, s12, v8")
    e("v_lshl_add_u32 v10, v1, 4, s12")
    e("v_bfe_u32 v12, v1, 4, 1"); e(f"v_mul_u32_u24 v12, {CS2}, v12"); e("v_lshl_add_u32 v12, v9, 2, v12"); e("v_add_u32 v12, s12, v12")
    e("v_mov_b32 v13, 0")
    e("v_and_b32 v14, 1, v1"); e("v_cmp_eq_u32 vcc, 0, v14")
    e("s_waitcnt lgkmcnt(0)")
    stamp(7, 0, P_WS)
    e("s_barrier")
    stamp(1, 0, P_WS)
    FR = 64; KA = 192
    def krd(ks):
        e(f"ds_read_b128 {vr(FR+8*ks,4)}, v23 offset:{32*ks}")
        e(f"ds_read_b128 {vr(FR+8*ks+4,4)}, v22 offset:{32*ks}")
    for ks in range(6): krd(ks)
    ACC = 24
    for ks in range(16):
        if ks + 6 < 16: krd(ks+6)
        e(f"s_waitcnt lgkmcnt({2*min(6, 15-ks)})")
        e(f"v_mfma_f32_32x32x16_bf16 {vr(KA,16)}, {vr(FR+8*ks,4)}, {vr(FR+8*ks+4,4)}, {'0' if ks == 0 else vr(KA,16)}")
        for r in range(2): e(f"v_mov_b32 v{ACC+2*ks+r}, 0")
    stamp(5, 0, P_WS)
    e("ds_write_b32 v12, v13")
    e("s_nop 7"); e("s_nop 1")
    D = 64; S = 80; k = KA
    e(f"v_cndmask_b32 v14, v{k+13}, v{k+12}, vcc")
    e(f"v_cndmask_b32 v15, v{k+15}, v{k+14}, vcc")
    pk = [(k,k+1),(k+2,k+3),(k+4,k+4),(k+5,k+6),
          (k+8,k+8),(k+8,k+9),(k+9,k+9),(k+10,k+10),
          (k+12,k+12),(k+12,k+12),(14,k+13),(k+13,k+13),
          (k+14,k+14),(k+14,k+14),(15,k+15),(k+15,k+15)]
    for i, (a, b) in enumerate(pk):
        e(f"v_cvt_pk_bf16_f32 v{D+i}, v{a}, v{b}")
        if i == 7:
            e(f"v_permlane32_swap_b32 v{D}, v{D+2}"); e(f"v_permlane32_swap_b32 v{D+1}, v{D+3}")
            e(f"ds_write_b128 v10, {vr(D+4,4)} offset:{64+1024}")
            e(f"ds_write_b128 v10, {vr(D,4)} offset:64")
        if i == 11: e(f"ds_write_b128 v10, {vr(D+8,4)} offset:{64+2048}")
    e(f"ds_write_b128 v10, {vr(D+12,4)} offset:{64+3072}")
    e(f"v_mov_b32 v{S}, 0")
    for q in range(1, 4): e(f"v_mov_b32_dpp v{S+4*q}, v{D+4*q-1} wave_ror:1 row_mask:0xf bank_mask:0xf")
    for q in range(4):
        for j in range(3): e(f"v_mov_b32 v{S+4*q+1+j}, v{D+4*q+j}")
        e(f"v_mov_b32_dpp v{S+4*q}, v{D+4*q+3} wave_shr:1 row_mask:0xf bank_mask:0xf")
        e(f"ds_write_b128 v10, {vr(S+4*q,4)} offset:{CS2+64+1024*q}")
    FQ = [64, 128]
    e("s_waitcnt lgkmcnt(0)")
    stamp(4, 0, P_WS)
    e("s_barrier")
    stamp(2, 0, P_WS)
    def crl(fs):
        L = []
        for i in range(8):
            L.append(f"ds_read_b128 {vr(fs+32+4*i,4)}, v5 offset:{512*i}")
            L.append(f"ds_read_b64 {vr(fs+4*i,2)}, v4 offset:{512*i}")
            L.append(f"ds_read_b64 {vr(fs+4*i+2,2)}, v4 offset:{512*i+8}")
        return L
    for r in crl(FQ[0]): e(r)
    e("v_add_u32 v4, 64, v4"); e("v_subrev_u32 v5, 64, v5")
    e("s_mov_b32 s66, 0")
    lab("Lc_loop")
    for half in range(2):
        cur, nxt = FQ[half], FQ[1-half]
        e("s_waitcnt lgkmcnt(0)")
        rl = crl(nxt)
        n = 0
        for i in range(8):
            for j in range(8 - i):
                acc = vr(ACC+4*(i+j), 4)
                e(f"v_mfma_f32_16x16x32_bf16 {acc}, {vr(cur+4*i,4)}, {vr(cur+32+4*j,4)}, {acc}")
                if n < 24: e(rl[n])
                if n == 24: e("v_add_u32 v4, 64, v4")
                if n == 25: e("v_subrev_u32 v5, 64, v5")
                if n == 26 and half == 1: e("s_add_u32 s66, s66, 1")
                if n == 27 and half == 1: e("s_cmp_lt_u32 s66, 4")
                n += 1
    e("s_cbranch_scc1 Lc_loop")
    e("s_waitcnt lgkmcnt(0)")
    stamp(3, 0, P_WS)
    for t in range(8):
        if t == 6: e("s_nop 1")
        e(f"ds_write_b128 v8, {vr(ACC+4*t,4)} offset:{1088*t}")
    tag_issue(4)
    e("s_waitcnt lgkmcnt(0)")
    e("s_barrier")
    p2_map(3)
    e("s_lshl_b32 s8, s5, 2"); e("s_add_u32 s8, s8, s3")
    e("s_cmp_ge_u32 s8, 28"); e("s_cselect_b32 s9, 1, 0"); e("s_mul_i32 s10, s9, 28"); e("s_sub_u32 s10, s8, s10")
    e("s_lshl_b32 s11, s4, 1"); e("s_add_u32 s9, s9, s11")
    e("s_lshl_b32 s11, s9, 5"); e("s_add_u32 s11, s11, s10"); e(f"s_lshl_b32 s11, s11, {2+FS}"); e(f"s_add_u32 s11, s11, {FH_OFF}")
    e(f"s_mul_i32 s9, s9, {4*112*1024}"); e("s_lshl_b32 s10, s10, 12"); e("s_add_u32 s9, s9, s10"); e(f"s_add_u32 s10, s9, {2*112*1024}")
    e("v_mov_b32 v5, s11")
    e("v_and_b32 v6, 31, v1"); e("v_lshlrev_b32 v6, 7, v6"); e("v_lshrrev_b32 v7, 5, v1"); e(f"v_mul_u32_u24 v7, {112*1024}, v7"); e("v_add_u32 v6, v6, v7")
    e("s_waitcnt vmcnt(0)")
    tag_get(4, 20)
    if PFN:
        e("s_cmp_ge_u32 s8, 56"); e("s_cbranch_scc1 Lc_nopf")
        poll(5, 4, PFN)
        e("s_cbranch_vccnz Lc_nopf")
        e(f"buffer_load_dword v100, v6, {sr(SWS,4)}, s9 offen sc1")
        e(f"buffer_load_dword v101, v6, {sr(SWS,4)}, s10 offen sc1")
        lab("Lc_nopf")
    e("s_branch Lp2_aux")
    lab("Lc_rwave")
    ROLE[0] = 2
    E1 = 24; E256 = 28; T = 32; PK = 88
    R = {0: 64, 2: 68, 4: 72, 6: 76, 8: 80}; TMP = 84
    def uload(r):
        e(f"buffer_load_dwordx2 {vr(UR+2+2*r,2)}, v9, {sr(SU,4)}, {'0' if r < 4 else 's64'} offen offset:{1024*(r&3)}")
    e("s_waitcnt vmcnt(1)" if not STAMP else "s_waitcnt vmcnt(2)")
    e("v_add_f32 v13, v13, v13")
    e(f"v_lshlrev_b32 v{R[0]}, 16, v6"); e(f"v_and_b32 v{R[0]+1}, 0xffff0000, v6")
    e(f"v_lshlrev_b32 v{R[0]+2}, 16, v7"); e(f"v_and_b32 v{R[0]+3}, 0xffff0000, v7")
    e("s_mov_b64 exec, 1")
    e(f"buffer_load_dwordx2 {vr(UR,2)}, v10, {sr(SU,4)}, 0 offen")
    e("s_mov_b64 exec, -1")
    uload(0)
    cexp(E1, E1+2, 16, 18, 1, T); cexp(E1+1, E1+3, 17, 19, 1, T+1)
    cexp(E256, E256+2, 16, 18, 256, T); cexp(E256+1, E256+3, 17, 19, 256, T+1)
    for r in range(4): e(f"v_mul_f32 v{R[0]+r}, v{R[0]+r}, v13")
    cnt = [0]
    def putr(x, srow):
        pk = PK + 2*(cnt[0] % 4); cnt[0] += 1
        e(f"v_cvt_pk_bf16_f32 v{pk}, v{x}, -v{x+2}")
        e(f"v_cvt_pk_bf16_f32 v{pk+1}, v{x+1}, -v{x+3}")
        e(f"ds_write_b64 v3, {vr(pk,2)} offset:{R_OFF+srow*PITCH}")
        if cnt[0] in (3, 11, 19, 27): uload(1 + (cnt[0]-3)//8)
    putr(R[0], 0)
    cur = R[0]
    for p in range(1, 9):
        nx = R[p] if p in R else TMP
        cmulp(nx, cur, E1, T)
        if p < 8: putr(nx, p)
        cur = nx
    for xs, sr0 in (([0,2,4,6,8], 8), ([0,4,8], 13), ([0,4,8], 16), ([0,8], 19), ([0,8], 23), ([0,8], 21), ([0,8], 25)):
        for i, x in enumerate(xs):
            cmulp(R[x], R[x], E256, T)
            putr(R[x], sr0 + i)
    e("s_waitcnt lgkmcnt(0)")
    stamp(7, 0, P_WS)
    e("s_barrier")
    for r in range(5, 8): uload(r)
    stamp(1, 0, P_WS)
    e("s_mov_b32 s66, 0x05040100"); e("s_mov_b32 s67, 0x07060302")
    e("v_bfe_u32 v4, v8, 5, 1"); e(f"v_mul_u32_u24 v4, {US}, v4"); e("v_add_u32 v4, s12, v4")
    e("v_and_b32 v5, 31, v8"); e("v_min_u32 v5, 27, v5"); e("v_lshl_add_u32 v4, v5, 4, v4")
    for r in range(4): e(f"v_mov_b32 v{24+r}, 0")
    e(f"v_add_u32 v4, {UB}, v4")
    e(f"ds_write_b128 v4, {vr(24,4)}")
    e("v_lshlrev_b32 v4, 4, v8"); e(f"v_add_u32 v4, {UB+448}, v4"); e(f"v_add_u32 v5, {2*RG}, v4")
    p2_setup(False, VW0, VW1, VT, 6)
    e("s_waitcnt vmcnt(0)")
    stamp(3, 0, P_WS)
    for hh in range(2): e(f"v_mov_b32_dpp v{UR+hh}, v{UR+16+hh} wave_shr:1 row_mask:0xf bank_mask:0xf")
    def row(r, c): return UR + 2 + 2*r + (c >> 1)
    k = 0
    for c in range(4):
        sel = "s67" if c & 1 else "s66"
        for b0 in (1, 0):
            d = 64 + 4*(k % 4); k += 1
            top = 7 if b0 else 6
            for i in range(4):
                e(f"v_perm_b32 v{d+i}, v{row(top-2*i-1,c)}, v{row(top-2*i,c)}, {sel}")
            e(f"ds_write_b128 v{4 + (c >> 1)}, {vr(d,4)} offset:{(c&1)*RG+b0*US}")
    e("s_waitcnt lgkmcnt(0)")
    e("s_barrier")
    stamp(2, 0, P_WS)
    UF = 64
    def mid():
        tag_issue(7)
        e("s_lshl_b32 s72, s14, 16"); e("s_and_b32 s73, s14, 0xffff0000")
        e("s_lshl_b32 s74, s15, 16"); e("s_and_b32 s75, s15, 0xffff0000")
        for r in range(8):
            for hh in range(2):
                e(f"v_lshlrev_b32 v{UF+4*r+2*hh}, 16, v{UR+2+2*r+hh}")
                e(f"v_and_b32 v{UF+4*r+2*hh+1}, 0xffff0000, v{UR+2+2*r+hh}")
        e("v_lshrrev_b32 v4, 5, v8"); e("v_mul_u32_u24 v4, 1088, v4")
        e("v_and_b32 v5, 3, v8"); e("v_mul_u32_u24 v5, 272, v5")
        e("v_bfe_u32 v6, v8, 2, 3"); e("v_lshl_add_u32 v4, v6, 5, v4"); e("v_add_u32 v4, v4, v5")
        e(f"v_add_u32 v5, {2*RG}, v4")
        e("v_lshlrev_b32 v6, 4, v8")
        e("s_lshl_b32 s68, s6, 14"); e(f"s_add_u32 s68, s68, {A4_OFF}")
        for i in range(1, 4): e(f"s_add_u32 s{68+i}, s68, {4096*i}")
        e("s_lshl_b32 s64, s7, 9"); e("s_lshl_b32 s65, s6, 2"); e("s_add_u32 s64, s64, s65"); e(f"s_lshl_b32 s64, s64, {FS}"); e(f"s_add_u32 s64, s64, {FC_OFF}")
        e("s_waitcnt vmcnt(0)")
        tag_get(7, 20)
    wpre_conv(mid)
    e("s_barrier")
    stamp(4, 0, P_WS)
    Y = 96
    for c in range(4):
        for b0 in range(2):
            e(f"ds_read_b128 {vr(Y+8*c+4*b0,4)}, v{4 if c < 2 else 5} offset:{(c&1)*RG+16*b0}")
    for c in range(4):
        e(f"s_waitcnt lgkmcnt({6-2*c})")
        for l in range(8):
            e(f"v_fma_f32 v{UF+4*l+c}, v{UF+4*l+c}, s{72+c}, v{Y+8*c+4*(l&1)+(l>>1)}")
    O = 16
    for l in range(8):
        for hh in range(2): e(f"v_cvt_pk_bf16_f32 v{O+2*l+hh}, v{UF+4*l+2*hh}, v{UF+4*l+2*hh+1}")
    for i in range(4): e(f"buffer_store_dwordx4 {vr(O+4*i,4)}, v6, {sr(SWS,4)}, s{68+i} offen{SC1A}")
    e("s_waitcnt vmcnt(0)")
    publish(64, 4)
    wpost_conv()
    stamp(5, 0, P_WS)
    e("s_branch Lp2_main")

def idle():
    e("s_cmp_lt_u32 s3, 4")
    e("s_cbranch_scc0 Li_hi")
    p2_map(3)
    e("s_waitcnt lgkmcnt(0)")
    stamp(0, 0, P_WS)
    SU, SWS = 48, 52
    e("v_mov_b32 v4, s3")
    srd(SWS, P_WS, WS_USED)
    srd(SU, P_U, 2048*1024)
    e("s_lshl_b32 s68, s4, 1"); e("s_add_u32 s68, s68, s5"); e("s_sub_u32 s68, s68, 30")
    e("s_lshl_b32 s68, s68, 2"); e("s_add_u32 s68, s68, s3")
    e(f"s_lshl_b32 s64, s68, {2+FS}"); e(f"s_add_u32 s64, s64, {FG_OFF}")
    e("s_lshl_b32 s68, s68, 5")
    tag_get(4, 20)
    lab("Li_gate")
    e("s_lshl_b32 s69, s68, 10"); e("s_add_u32 s71, s69, 4096")
    e("v_lshlrev_b32 v4, 4, v1")
    e(f"global_load_dwordx4 {vr(96,4)}, v4, {sr(P_GW,2)}")
    for r in range(8):
        e(f"buffer_load_dwordx4 {vr(64+4*r,4)}, v4, {sr(SU,4)}, {'s69' if r < 4 else 's71'} offen offset:{1024*(r&3)}")
    e("s_waitcnt vmcnt(8)")
    for i in range(4):
        e(f"v_lshlrev_b32 v{100+2*i}, 16, v{96+i}"); e(f"v_and_b32 v{100+2*i+1}, 0xffff0000, v{96+i}")
    for r in range(8):
        e(f"s_waitcnt vmcnt({7-r})")
        for i in range(4):
            e(f"v_lshlrev_b32 v{110+2*i}, 16, v{64+4*r+i}"); e(f"v_and_b32 v{110+2*i+1}, 0xffff0000, v{64+4*r+i}")
        for i in range(8): e(f"v_mul_f32 v{110+i}, v{110+i}, v{100+i}")
        for i in range(4): e(f"v_cvt_pk_bf16_f32 v{120+i}, v{110+2*i}, v{110+2*i+1}")
        for i in range(4):
            e(f"v_lshlrev_b32 v{110+2*i}, 16, v{120+i}"); e(f"v_and_b32 v{110+2*i+1}, 0xffff0000, v{120+i}")
        for i in range(4): e(f"v_add_f32 v{110+i}, v{110+i}, v{114+i}")
        e("v_add_f32 v110, v110, v112"); e("v_add_f32 v111, v111, v113")
        e(f"v_add_f32 v{24+r}, v110, v111")
    for dpp in ("quad_perm:[1,0,3,2] row_mask:0xf", "quad_perm:[2,3,0,1] row_mask:0xf", "row_half_mirror row_mask:0xf",
                "row_mirror row_mask:0xf", "row_bcast:15 row_mask:0xa", "row_bcast:31 row_mask:0xc"):
        e("s_nop 1")
        for r in range(8): e(f"v_add_f32_dpp v{24+r}, v{24+r}, v{24+r} {dpp} bank_mask:0xf")
    e("s_nop 1")
    for r in range(8): e(f"v_readlane_b32 s{56+r}, v{24+r}, 63")
    e("s_nop 3")
    for r in range(8): e(f"v_writelane_b32 v32, s{56+r}, {r}")
    e("s_nop 1")
    e("v_cvt_pk_bf16_f32 v32, v32, v32"); e("v_and_b32 v32, 0xffff0000, v32")
    e(f"v_mul_f32 v32, {f32(-LOG2E)}, v32")
    e("v_exp_f32 v32, v32"); e("s_nop 0"); e("v_add_f32 v32, 1.0, v32"); e("v_rcp_f32 v32, v32"); e("s_nop 0")
    e("v_cvt_pk_bf16_f32 v32, v32, v32"); e("v_and_b32 v32, 0xffff0000, v32")
    e("v_sub_f32 v33, 1.0, v32")
    e("v_cvt_pk_bf16_f32 v33, v33, v33"); e("v_and_b32 v33, 0xffff0000, v33")
    e("v_lshlrev_b32 v4, 3, v1")
    e("s_lshl_b32 s69, s68, 3"); e(f"s_add_u32 s69, s69, {G_OFF}")
    e("s_mov_b64 exec, 0xff")
    e(f"buffer_store_dwordx2 v[32:33], v4, {sr(SWS,4)}, s69 offen{SC1A}")
    e("s_mov_b64 exec, -1")
    e("s_add_u32 s68, s68, 8"); e("s_and_b32 s69, s68, 31"); e("s_cbranch_scc1 Li_gate")
    tag_issue(4)
    e("s_waitcnt vmcnt(0)")
    tag_get(4, 20)
    publish(64, 4)
    stamp(1, 0, P_WS)
    e("s_branch Lp2_aux")
    lab("Li_hi")
    e("s_waitcnt lgkmcnt(0)")
    p2_setup(False, VW0, VW1, VT, 6)
    if not OPT("nopf"):
        e("s_sub_u32 s68, s2, 240"); e("s_lshl_b32 s68, s68, 2"); e("s_add_u32 s68, s68, s3"); e("s_sub_u32 s68, s68, 4")
        e(f"s_mul_i32 s68, s68, {224*128}")
        e("v_lshlrev_b32 v4, 7, v1")
        for t in range(4):
            e(f"buffer_load_dword v{244+t}, v4, {sr(SW2P,4)}, s68 offen")
            if t < 3: e("s_add_u32 s68, s68, 8192")
    wpre_conv(lambda: e("s_waitcnt vmcnt(0)"))
    tag_issue(2)
    e("s_waitcnt vmcnt(0)")
    tag_get(2, 4)
    wpost_conv()
    e("s_branch Lp2_main")

def gemm2():
    ROLE[0] = 0
    SWS, SO, SB2 = 48, 52, 56
    def ids(q):
        e("s_lshr_b32 s6, s2, 6"); e("s_lshl_b32 s7, s4, 2"); e("s_add_u32 s6, s6, s7")
        e("s_bfe_u32 s7, s2, 0x30003")
        e(f"s_lshr_b32 s11, s{q}, 1"); e(f"s_and_b32 s12, s{q}, 1")
        e("s_lshl_b32 s13, s6, 1"); e("s_add_u32 s13, s13, s12"); e("s_lshl_b32 s13, s13, 5")
        e("s_lshl_b32 s14, s7, 1"); e("s_add_u32 s14, s14, s11"); e("s_lshl_b32 s14, s14, 5")
        e("v_and_b32 v7, 31, v1"); e("v_lshrrev_b32 v8, 5, v1")
        e("v_add_u32 v7, s13, v7")
        e("s_lshl_b32 s72, s14, 1")
        e("v_lshlrev_b32 v2, 4, v1")
        srd(SWS, P_WS, WS_USED)
    lab("Lp2_aux")
    ids(3)
    EP = 16
    e(f"s_load_dwordx16 s[52:67], {sr(P_B2,2)}, s72")
    e("v_lshlrev_b32 v9, 3, v7")
    e("v_bfe_u32 v10, v7, 1, 2"); e("v_lshl_add_u32 v10, v8, 2, v10"); e("v_lshlrev_b32 v10, 12, v10")
    e("v_lshrrev_b32 v11, 3, v7"); e("v_lshl_add_u32 v10, v11, 4, v10"); e("v_and_b32 v11, 1, v7"); e("v_lshl_add_u32 v10, v11, 3, v10")
    e("s_lshl_b32 s15, s14, 12"); e(f"s_add_u32 s15, s15, {A4_OFF}")
    e("s_add_u32 s68, s15, 32768"); e("s_add_u32 s69, s68, 32768"); e("s_add_u32 s70, s69, 32768")
    e(f"s_mov_b32 s71, {G_OFF}")
    e("s_lshr_b32 s73, s6, 3"); e("s_lshl_b32 s73, s73, 9"); e("s_add_u32 s73, s73, s14"); e(f"s_lshl_b32 s73, s73, {FS}"); e(f"s_add_u32 s73, s73, {FC_OFF}")
    e("v_and_b32 v3, 7, v1"); e(f"v_lshl_add_u32 v3, v3, {2+FS}, s73")
    e("s_lshr_b32 s73, s13, 3"); e(f"s_lshl_b32 s73, s73, {FS}"); e(f"s_add_u32 s73, s73, {FG_OFF}")
    e("v_mov_b32 v4, s73")
    e("v_cmp_gt_u32 vcc, 48, v1")
    e(f"v_add_u32 v12, s{ST_}, v2"); e(f"v_lshl_add_u32 v13, v1, 2, s{ST_}")
    e("v_cndmask_b32 v3, v4, v3, vcc")
    e("s_lshr_b32 s73, s6, 1"); e("s_lshl_b32 s73, s73, 5"); e("s_mul_i32 s74, s3, 7"); e("s_add_u32 s73, s73, s74")
    e(f"s_lshl_b32 s73, s73, {2+FS}"); e(f"s_add_u32 s73, s73, {FH_OFF}")
    e("v_cmp_gt_u32 vcc, 32, v1")
    e("v_min_u32 v5, 6, v1"); e(f"v_lshl_add_u32 v5, v5, {2+FS}, s73")
    e(f"v_mov_b32 v6, s{STAG}")
    e("v_cndmask_b32 v3, v3, v5, vcc")
    e("s_waitcnt lgkmcnt(0)")
    for i in range(8): e(f"v_mov_b32 v{EP+8+i}, s{52+4*(i>>1)+(i&1)}")
    e("s_mov_b32 exec_lo, 0")
    for i in range(8): e(f"v_mov_b32 v{EP+8+i}, s{52+4*(i>>1)+2+(i&1)}")
    e("s_mov_b32 exec_lo, -1")
    e("s_barrier")
    e(f"s_mov_b32 s76, {SPIN}")
    PD = int(([a[5:] for a in sys.argv if a.startswith("--pd=")] + ["1"])[0])
    for i in range(PD - 1):
        e(f"global_load_dword v{80+i}, v3, {sr(P_WS,2)} sc1")
        e(f"s_sleep {SLP}")
    lab("Lp2_poll")
    for i in range(PD):
        e(f"global_load_dword v{80+(i+PD-1)%PD}, v3, {sr(P_WS,2)} sc1")
        e("s_sub_u32 s76, s76, 1")
        e(f"s_waitcnt vmcnt({PD-1})")
        e(f"v_cmp_ne_u32 vcc, s{STAG}, v{80+i}")
        e("s_cmp_eq_u32 s76, 0"); e("s_cbranch_scc1 Lp2_pollx")
        e("s_cmp_eq_u32 vcc_lo, 0"); e("s_cbranch_scc1 Lp2_pollx")
        e(f"s_sleep {SLP}")
    e("s_branch Lp2_poll")
    lab("Lp2_pollx")
    e("ds_write_b32 v13, v6 offset:4352")
    e("s_cbranch_vccz Lp2_ready")
    poll(3, 4)
    lab("Lp2_ready")
    stamp(1, 1, P_WS)
    for j, so in enumerate(("s15", "s68", "s69", "s70")):
        e(f"buffer_load_dwordx2 {vr(EP+2*j,2)}, v10, {sr(SWS,4)}, {so} offen sc1")
    e(f"buffer_load_dwordx2 {vr(EP+16,2)}, v9, {sr(SWS,4)}, s71 offen sc1")
    AF = 40; BF = 56
    for i in range(8):
        e(f"v_lshlrev_b32 v{BF+2*i}, 16, v{EP+8+i}"); e(f"v_and_b32 v{BF+2*i+1}, 0xffff0000, v{EP+8+i}")
    e("s_waitcnt vmcnt(0)")
    for i in range(8):
        e(f"v_lshlrev_b32 v{AF+2*i}, 16, v{EP+i}"); e(f"v_and_b32 v{AF+2*i+1}, 0xffff0000, v{EP+i}")
    for i in range(16): e(f"v_mul_f32 v{AF+i}, v{AF+i}, v{EP+16}")
    for i in range(16): e(f"v_fmac_f32 v{AF+i}, v{BF+i}, v{EP+17}")
    for r in range(4): e(f"ds_write_b128 v12, {vr(AF+4*r,4)} offset:{1024*r}")
    e(f"ds_write_b32 v13, v{EP+17} offset:4096")
    e("s_waitcnt lgkmcnt(0)")
    stamp(2, 1, P_WS)
    e("s_barrier")
    e("s_endpgm")
    lab("Lp2_main")
    e("s_barrier")
    e("s_sub_u32 s10, s3, 4")
    ids(10)
    srd(SO, P_OUT, 2048*1024)
    e(f"s_mul_i32 s8, s10, {28*1024}")
    e(f"s_mul_i32 s9, s6, {2*112*1024}"); e("s_add_u32 s9, s9, s8")
    e(f"s_mul_i32 s13, s12, {112*1024}"); e(f"s_sub_u32 s14, {112*1024}, s13")
    e("s_add_u32 s13, s13, s9"); e("s_add_u32 s14, s14, s9")
    e("v_add_u32 v3, s13, v2"); e("v_add_u32 v4, s14, v2")
    e("v_lshlrev_b32 v12, 10, v7"); e("v_lshl_add_u32 v12, v8, 4, v12"); e("v_add_u32 v12, s72, v12")
    e(f"v_add_u32 v14, s{SA_}, v2")
    for t in range(1, 4):
        e(f"s_xor_b32 s14, s10, {t}"); e("s_mul_i32 s14, s14, 40960"); e("s_add_u32 s14, s14, 8704"); e(f"v_add_u32 v{6+t}, s14, v2")
    e(f"v_add_u32 v10, s{SA_}, v{VT}"); e("v_xor_b32 v11, 64, v10")
    e(f"v_add_u32 v2, s{ST_}, v2"); e(f"v_lshl_add_u32 v13, v1, 2, s{ST_}")
    stamp(0, 1, P_WS)
    e(f"s_mov_b32 s76, {SPIN*16}")
    lab("Lp2_wait")
    e("ds_read_b32 v6, v13 offset:4352")
    e("s_sub_u32 s76, s76, 1")
    e("s_waitcnt lgkmcnt(0)")
    e(f"v_cmp_ne_u32 vcc, s{STAG}, v6")
    e("s_cmp_eq_u32 s76, 0"); e("s_cbranch_scc1 Lp2_go")
    e("s_cbranch_vccz Lp2_go")
    e("s_sleep 1")
    e("s_branch Lp2_wait")
    lab("Lp2_go")
    stamp(1, 1, P_WS)
    hist = []
    def loads(s):
        fs = HREG[s % HD]
        for a in range(2):
            e(f"buffer_load_dwordx4 {vr(fs+4*a,4)}, v{3+a}, {sr(SWS,4)}, s{SG + s//4} offen offset:{1024*(s&3)}{HL}")
            hist.append(('h', s))
    def younger(k): return len(hist) - 1 - max(i for i, x in enumerate(hist) if x == k)
    def wrd(s):
        for b in range(2):
            for u in range(2):
                e(f"ds_read_b64_tr_b16 {vr(WD+8*(s&1)+4*b+2*u,2)}, v{10+b} offset:{2048*(s-14)+1024*u}")
    for s in range(HD): loads(s)
    for s in range(28):
        if 14 <= s + 1 < 28: wrd(s+1)
        e(f"s_waitcnt vmcnt({younger(('h', s))})" + (f" lgkmcnt({4 if s < 27 else 0})" if s >= 14 else ""))
        fs = HREG[s % HD]; wf = WR + 8*s if s < 14 else WD + 8*(s & 1)
        for b in range(2):
            for a in range(2):
                acc = vr(AC2+32*b+16*a, 16)
                e(f"v_mfma_f32_32x32x16_bf16 {acc}, {vr(wf+4*b,4)}, {vr(fs+4*a,4)}, {'0' if s == 0 else acc}")
        if s + HD < 28: loads(s + HD)
    stamp(2, 1, P_WS, 200)
    e("s_nop 7"); e("s_nop 1")
    for t in range(1, 4):
        for r in range(4):
            e(f"ds_write_b128 v14, {vr(AC2+16*t+4*r,4)} offset:{(t-1)*4096+r*1024}")
    e("s_waitcnt lgkmcnt(0)")
    e("s_barrier")
    stamp(3, 1, P_WS, 200)
    P = 128
    for t in range(3):
        for r in range(4): e(f"ds_read_b128 {vr(P+16*t+4*r,4)}, v{7+t} offset:{t*4096+r*1024}")
    e("s_waitcnt lgkmcnt(8)")
    for r in range(4): e(f"ds_read_b128 {vr(P+48+4*r,4)}, v2 offset:{r*1024}")
    e(f"ds_read_b32 v6, v13 offset:4096")
    for t in range(3):
        if t: e(f"s_waitcnt lgkmcnt({13-4*t})")
        for i in range(8): e(f"v_pk_add_f32 {p2(AC2+2*i)}, {p2(AC2+2*i)}, {p2(P+16*t+2*i)}")
    e("s_waitcnt lgkmcnt(0)")
    for i in range(16): e(f"v_fmac_f32 v{P+48+i}, v{AC2+i}, v6")
    O = 16
    for i in range(8): e(f"v_cvt_pk_bf16_f32 v{O+i}, v{P+48+2*i}, v{P+48+2*i+1}")
    e("s_nop 1")
    for jj in range(2):
        e(f"v_permlane32_swap_b32 v{O+4*jj}, v{O+4*jj+2}")
        e(f"v_permlane32_swap_b32 v{O+4*jj+1}, v{O+4*jj+3}")
    for jj in range(2):
        e(f"buffer_store_dwordx4 {vr(O+4*jj,4)}, v12, {sr(SO,4)}, 0 offen offset:{32*jj}")
    if STAMP:
        e("s_waitcnt vmcnt(0)")
        stamp(4, 1, P_WS, 200)
        for i in range(2):
            e(f"v_mov_b32 v200, s{56+2*i}"); e("v_add_u32 v202, 8, v202")
            e(f"global_store_dwordx2 v202, v[200:201], s[{P_WS}:{P_WS+1}]"); e("s_nop 1")
    e("s_endpgm")

def kd(name, vgpr, accum):
    out.append(f""".amdhsa_kernel {name}
  .amdhsa_next_free_vgpr {vgpr}
  .amdhsa_next_free_sgpr 102
  .amdhsa_accum_offset {accum}
  .amdhsa_group_segment_fixed_size 0
  .amdhsa_kernarg_size 128
  .amdhsa_user_sgpr_count 2
  .amdhsa_user_sgpr_kernarg_segment_ptr 1
  .amdhsa_system_sgpr_workgroup_id_x 1
.end_amdhsa_kernel""")

hdr = open(f"cdna_kernels/{NAME}.s.ref").read().splitlines()
for l in hdr:
    if l.startswith(";") and "@launch" not in l and "Override" not in l and "Harness parses" not in l: out.append(l)
K1 = "gmix_a_kernel" if OPT("ll") or STAMP else NAME + "_kernel"
out.append(f"; @launch {'kernel='+K1+' ' if OPT('ll') or STAMP else ''}grid=(256,1,1) block=(512,1,1) lds={LDS1}")
out.append('.amdgcn_target "amdgcn-amd-amdhsa--gfx950"')
out.append(".text")
out.append(f".globl {K1}")
out.append(".p2align 8"); out.append(f".type {K1},@function"); lab(K1)
EXIT = "La_exit"
prologue(256)
e("s_cmp_ge_u32 s5, 30")
e("s_cbranch_scc1 La_idle")
e("s_cmp_ge_u32 s5, 14")
e("s_cbranch_scc1 La_conv")
gemm1()
lab("La_conv")
conv()
lab("La_idle")
idle()
gemm2()
lab(EXIT); e("s_endpgm")
out.append('.section .rodata,"a"'); out.append(".p2align 6")
kd(K1, 256, 256)
dst = [a for a in sys.argv[1:] if not a.startswith("--")]
open(dst[0] if dst else f"cdna_kernels/{NAME}.s", "w").write("\n".join(out) + "\n")
```

```python
import sys, struct
NAME = "gated_mix__ssm_conv_s4d__dense_activation_squared_relu__prompt"
STAMP = "--stamp" in sys.argv or "--dbg" in sys.argv

OPT = lambda k: ("--"+k) in sys.argv
SC1A = "" if OPT("nosc1") else " sc1"
SC1H = "" if OPT("nosc1") or OPT("hpl") else " sc1"
NTW1 = " nt" if OPT("ntw1") else ""
DEP = int(([a[6:] for a in sys.argv if a.startswith("--dep=")] + ["5"])[0])
HF_OFF = 0
HF_SZ = 64*112*1024
WF_OFF = HF_SZ
WF_SZ = 16*112*1024
A4_OFF = WF_OFF + WF_SZ
A4_SZ = 128*2048*8
G_OFF = A4_OFF + A4_SZ
G_SZ = 2048*8
FH_OFF = G_OFF + G_SZ
FS = int(([a[5:] for a in sys.argv if a.startswith('--fs=')] + ['5'])[0])
FC_OFF = FH_OFF + (2048 << FS)
FG_OFF = FC_OFF + (2048 << FS)
WS_USED = FG_OFF + (256 << FS)
SLP = int(([a[6:] for a in sys.argv if a.startswith("--slp=")] + ["12"])[0])
SPIN = 40000
CPF = 240
PFN = int(([a[6:] for a in sys.argv if a.startswith('--pfn=')] + ['0'])[0])
HL = '' if OPT('hplain') else ' nt' if OPT('hnt') else ' sc1'
XV = int(([a[5:] for a in sys.argv if a.startswith('--xv=')] + ['1'])[0])
ST_OFF = 0x1000000

out = []
def e(s): out.append("    " + s)
def lab(s): out.append(s + ":")
def cm(s): out.append("    ; " + s)
def f32(x): return "0x%08x" % struct.unpack("<I", struct.pack("<f", x))[0]
def vr(a, n): return f"v[{a}:{a+n-1}]"
def ar(a, n): return f"a[{a}:{a+n-1}]"
def sr(a, n): return f"s[{a}:{a+n-1}]"
def srd(d, ptr, size, off=None):
    if off is None:
        e(f"s_mov_b32 s{d}, s{ptr}"); e(f"s_mov_b32 s{d+1}, s{ptr+1}")
    else:
        e(f"s_add_u32 s{d}, s{ptr}, {off}"); e(f"s_addc_u32 s{d+1}, s{ptr+1}, 0")
    e(f"s_mov_b32 s{d+2}, {size}"); e(f"s_mov_b32 s{d+3}, 0x20000")

DBG = "--dbg" in sys.argv
ROLE = [0]
def stamp(idx, kern, wsp, tmp=250):
    if DBG:
        slot = {(0,0):[0,1,2,3], (0,1):[0,4,5,6], (0,2):[0,7,8,9,10,11], (1,0):[12,13,14]}[(kern,ROLE[0])][idx]
        e("s_memrealtime s[96:97]")
        e(f"s_sub_u32 s98, s44, {512*kern}"); e("s_subb_u32 s99, s45, 0")
        e("s_waitcnt lgkmcnt(0)")
        if slot == 0 or slot == 12: e("s_not_b32 s96, s96")
        e(f"v_mov_b32 v{tmp}, s96"); e(f"v_mov_b32 v{tmp+2}, {4*slot}")
        e("s_mov_b64 exec, 1")
        e(f"global_atomic_umax v{tmp+2}, v{tmp}, s[98:99]")
        e("s_mov_b64 exec, -1")
        return
    if not STAMP: return
    e("s_memrealtime s[96:97]")
    e("s_memtime s[100:101]")
    e("s_lshl_b32 s98, s2, 3"); e("s_add_u32 s98, s98, s3"); e("s_lshl_b32 s98, s98, 6")
    e(f"s_add_u32 s98, s98, {ST_OFF + kern*0x40000 + idx*8}")
    e("s_waitcnt lgkmcnt(0)")
    e(f"v_mov_b32 v{tmp}, s96"); e(f"v_mov_b32 v{tmp+1}, s100"); e(f"v_mov_b32 v{tmp+2}, s98")
    e(f"global_store_dwordx2 v{tmp+2}, v[{tmp}:{tmp+1}], s[{wsp}:{wsp+1}]")

P_U, P_LAR, P_AIM, P_CR, P_CI, P_LDT, P_DSK = 16, 18, 20, 22, 24, 26, 28
P_W1, P_B1, P_W2, P_B2, P_GW, P_OUT, P_DBG, P_WS = 32, 34, 36, 38, 40, 42, 44, 46
LOG2E = 1.4426950408889634
L_HI = struct.unpack("<f", struct.pack("<f", LOG2E))[0]
L_LO = LOG2E - L_HI
LN2 = 0.6931471805599453

def prologue(nwg):
    e(f"s_cmp_ge_u32 s2, {nwg}")
    e("s_cbranch_scc1 " + EXIT)
    e("s_load_dwordx16 s[16:31], s[0:1], 0")
    e("s_load_dwordx16 s[32:47], s[0:1], 64")
    if OPT("cpf"):
        e(f"s_cmp_lt_u32 s2, {CPF}")
        e("s_cbranch_scc1 La_nocpf")
        e("s_getpc_b64 s[6:7]")
        lab("La_pc")
        e("v_lshlrev_b32 v2, 6, v0")
        e("v_min_u32 v2, La_exit-La_pc, v2")
        e("global_load_dword v255, v2, s[6:7]")
        lab("La_nocpf")
    e("v_lshrrev_b32 v2, 6, v0")
    e("v_and_b32 v1, 63, v0")
    e("v_readfirstlane_b32 s3, v2")
    e("s_and_b32 s4, s2, 7")
    e("s_lshr_b32 s5, s2, 3")


SG = 80
SA_, SB_, SC_, ST_, SSTR, STAG, SW2P = 87, 88, 89, 90, 78, 79, 92
WR = 128; WD = 240; AC2 = 64
HD = int(([a[5:] for a in sys.argv if a.startswith("--hd=")] + ["5"])[0])
HREG = [16, 24, 32, 48, 56]
VW0, VW1, VT = 44, 45, 43
uid = [0]
def p2_setup(gemm_map, vw0, vw1, vt, t0):
    e("s_sub_u32 s77, s3, 4")
    e("s_bfe_u32 s76, s2, 0x30003")
    e(f"s_mul_i32 s91, s77, {448*1024}"); e("s_lshl_b32 s80, s76, 7"); e("s_add_u32 s91, s91, s80")
    e(f"v_lshrrev_b32 v{vw0}, 3, v1"); e(f"v_lshlrev_b32 v{vw0}, 10, v{vw0}")
    e(f"v_bfe_u32 v{vw1}, v1, 4, 1"); e(f"v_lshlrev_b32 v{vw1}, 2, v{vw1}"); e(f"v_and_b32 v{t0}, 7, v1"); e(f"v_xor_b32 v{vw1}, v{vw1}, v{t0}")
    e(f"v_lshl_add_u32 v{vw0}, v{vw1}, 4, v{vw0}"); e(f"v_add_u32 v{vw0}, s91, v{vw0}"); e(f"v_add_u32 v{vw1}, 0x2000, v{vw0}")
    if OPT("lin"):
        e("s_mul_i32 s91, s76, 229376"); e("s_mul_i32 s80, s77, 57344"); e("s_add_u32 s91, s91, s80")
        e(f"v_lshl_add_u32 v{vw0}, v1, 4, s91"); e(f"v_add_u32 v{vw1}, 0x400, v{vw0}")
    e("s_lshr_b32 s80, s2, 6"); e("s_lshl_b32 s80, s80, 1"); e("s_add_u32 s80, s80, s76")
    e("s_cmp_ge_u32 s80, 7"); e("s_cselect_b32 s81, 7, 0"); e("s_sub_u32 s80, s80, s81")
    e("s_lshl_b32 s80, s80, 12")
    for i in range(1, 7):
        e(f"s_add_u32 s{80+i}, s{79+i}, 4096"); e(f"s_cmp_eq_u32 s{80+i}, {7*4096}"); e(f"s_cselect_b32 s{80+i}, 0, s{80+i}")
    e("s_lshr_b32 s76, s77, 1")
    e(f"v_bfe_u32 v{vt}, v1, 2, 2"); e(f"v_lshrrev_b32 v{t0}, 5, v1"); e(f"v_lshl_add_u32 v{vt}, v{t0}, 2, v{vt}"); e(f"v_lshlrev_b32 v{vt}, 7, v{vt}")
    e(f"v_bfe_u32 v{t0}, v1, 3, 1"); e(f"v_xor_b32 v{t0}, s76, v{t0}"); e(f"v_lshl_add_u32 v{vt}, v{t0}, 6, v{vt}")
    e(f"v_bfe_u32 v{t0}, v1, 4, 1"); e(f"v_lshl_add_u32 v{vt}, v{t0}, 5, v{vt}")
    e(f"v_and_b32 v{t0}, 3, v1"); e(f"v_lshl_add_u32 v{vt}, v{t0}, 3, v{vt}")
    p2_map(77)
    e(f"s_add_u32 s{SA_}, s{ST_}, 8704"); e(f"s_add_u32 s{SB_}, s{ST_}, 29184")
    if gemm_map:
        e(f"s_mul_i32 s{SSTR}, s77, 12288"); e(f"s_add_u32 s{SSTR}, s{SSTR}, 98304")
        e(f"s_lshl_b32 s{SC_}, s77, 12"); e(f"s_add_u32 s{SC_}, s{SC_}, 147456")
    srd(SW2P, P_W2, 1792*1024)
def p2_map(q):
    e(f"s_mul_i32 s{ST_}, s{q}, 40960")
def wdma(s0, n, base, vw0=VW0, vw1=VW1, slot0=0):
    for i in range(n):
        s = s0 + i
        e(f"s_add_u32 m0, s{base}, {2048*(i+slot0)}")
        if i == 0 or s & 3 == 0:
            e(f"s_lshl_b32 s91, s{SG + s//4}, {1 if OPT('lin') else 4}")
            if s & 3: e(f"s_add_u32 s91, s91, {(2048 if OPT('lin') else 16384)*(s&3)}")
        else: e(f"s_add_u32 s91, s91, {2048 if OPT('lin') else 16384}")
        e(f"buffer_load_dwordx4 v{vw0}, {sr(SW2P,4)}, s91 offen lds")
        e("s_add_u32 m0, m0, 1024"); e("s_nop 0")
        e(f"buffer_load_dwordx4 v{vw1}, {sr(SW2P,4)}, s91 offen lds")
def wrd_regs(s0, n, base, vt=VT, slot0=0):
    e(f"v_add_u32 v{WD}, s{base}, v{vt}"); e(f"v_xor_b32 v{WD+1}, 64, v{WD}")
    for i in range(n):
        for b in range(2):
            for u in range(2):
                e(f"ds_read_b64_tr_b16 {vr(WR+8*(s0+i)+4*b+2*u,2)}, v{WD+b} offset:{2048*(i+slot0)+1024*u}")
def wpre_conv(mid):
    wdma(0, 10, SA_)
    mid()
    if STAMP: e("s_memrealtime s[56:57]")
    wrd_regs(0, 10, SA_)
    e("s_waitcnt lgkmcnt(0)")
    wdma(10, 4, SA_, slot0=6); wdma(14, 6, SA_)
    if STAMP: e("s_memrealtime s[58:59]")
def wpost_conv():
    wrd_regs(10, 4, SA_, slot0=6)
    wdma(24, 4, SA_, slot0=10)
    e("s_waitcnt lgkmcnt(0)")
    wdma(20, 4, SA_, slot0=6)
def tag_issue(v):
    e(f"v_mov_b32 v{v}, 0")
    e(f"global_load_dword v{v}, v{v}, {sr(P_DBG,2)}")
NCLR = 16
LSIG = 40704
def tag_get(v, t):
    uid[0] += 1; L = f"Ltag{uid[0]}"
    e(f"v_readfirstlane_b32 s{STAG}, v{v}")
    e(f"s_ff1_i32_b32 s{STAG}, s{STAG}"); e(f"s_cmp_ge_i32 s{STAG}, 4"); e(f"s_cbranch_scc1 {L}")
    e(f"s_mov_b32 s76, {SPIN}"); e(f"v_mov_b32 v{t}, 0")
    lab(L + "p")
    e(f"global_load_dword v{v}, v{t}, {sr(P_DBG,2)} sc1")
    e("s_sub_u32 s76, s76, 1")
    e("s_waitcnt vmcnt(0)")
    e(f"v_readfirstlane_b32 s{STAG}, v{v}")
    e(f"s_ff1_i32_b32 s{STAG}, s{STAG}"); e(f"s_cmp_ge_i32 s{STAG}, 4"); e(f"s_cbranch_scc1 {L}")
    e(f"s_sleep {SLP}")
    e("s_cmp_lg_u32 s76, 0"); e(f"s_cbranch_scc1 {L}p")
    lab(L)
    e(f"s_mov_b32 s{STAG}, {NCLR}")
def publish(soff, t):
    e(f"v_mov_b32 v{t}, s{STAG}"); e(f"v_mov_b32 v{t+1}, s{soff}")
    e("s_mov_b64 exec, 1")
    e(f"global_store_dword v{t+1}, v{t}, {sr(P_WS,2)} sc1")
    e("s_mov_b64 exec, -1")
def poll(va, vd, n=None):
    uid[0] += 1; L = f"Lpoll{uid[0]}"
    e(f"s_mov_b32 s76, {n or SPIN}")
    lab(L)
    e(f"global_load_dword v{vd}, v{va}, {sr(P_WS,2)} sc1")
    e("s_sub_u32 s76, s76, 1")
    e("s_waitcnt vmcnt(0)")
    e(f"v_cmp_ne_u32 vcc, s{STAG}, v{vd}")
    e("s_cmp_eq_u32 s76, 0"); e(f"s_cbranch_scc1 {L}x")
    e(f"s_cbranch_vccz {L}x")
    e(f"s_sleep {SLP}")
    e(f"s_branch {L}")
    lab(L + "x")

def gemm1():
    SX, SW, SH, SB = 48, 52, 56, 60
    SL = 49152; WB = 32768
    cm("---- GEMM1: mt = s4, ft = s5; waves 0-3 compute, 4-7 load")
    e("s_lshl_b32 s8, s5, 8")
    e("s_cmp_lt_u32 s3, 4")
    e("s_cbranch_scc1 Lg_comp")
    vX0, vX1, vW = 2, 3, 4
    e("s_sub_u32 s11, s3, 4")
    e("s_lshl_b32 s6, s4, 18")
    e("s_lshl_b32 s7, s11, 16")
    e("v_lshrrev_b32 v5, 3, v1")
    e("v_lshrrev_b32 v6, 4, v1")
    e("v_and_b32 v7, 7, v1")
    e("v_xor_b32 v7, v7, v6")
    e("v_lshlrev_b32 v7, 4, v7")
    e(f"v_lshl_add_u32 v{vX0}, v5, 10, v7")
    e(f"v_add_u32 v{vX0}, s7, v{vX0}")
    e(f"v_xor_b32 v{vX1}, 64, v{vX0}")
    e(f"v_add_u32 v{vX1}, 0x2000, v{vX1}")
    e("s_mul_i32 s7, s11, %d" % (16*3584))
    e("s_add_u32 s7, s7, s8")
    e("v_and_b32 v7, 15, v1")
    e("v_lshlrev_b32 v5, 2, v6")
    e("v_xor_b32 v7, v7, v5")
    e("v_lshlrev_b32 v7, 4, v7")
    e("v_mul_u32_u24 v5, 3584, v6")
    e(f"v_add3_u32 v{vW}, v5, v7, s7")
    e("s_lshl_b32 s9, s11, 13")
    e("s_lshl_b32 s10, s11, 12")
    e(f"s_add_u32 s10, s10, {WB}")
    ROT = int(([a[6:] for a in sys.argv if a.startswith("--rot=")] + ["0"])[0])
    if ROT == 0: e("s_add_u32 s12, s4, s5")
    if ROT == 1: e("s_mov_b32 s12, s4")
    if ROT == 2: e("s_lshl_b32 s12, s5, 2"); e("s_add_u32 s12, s12, s4")
    if ROT == 3: e("s_lshl_b32 s12, s5, 1"); e("s_add_u32 s12, s12, s4")
    e("s_waitcnt lgkmcnt(0)")
    stamp(0, 0, P_WS)
    srd(SX, P_U, 262144, "s6")
    srd(SW, P_W1, 512*3584)
    def issue(k):
        e("s_and_b32 s12, s12, 7")
        e("s_lshl_b32 s14, s12, 7")
        e(f"s_add_u32 m0, s10, {(k % 3)*SL}")
        e(f"s_mul_i32 s64, s12, {64*3584}")
        for i in range(4):
            e(f"buffer_load_dwordx4 v{vW}, {sr(SW,4)}, s64 offen lds")
            if i < 3:
                e("s_add_u32 m0, m0, 1024"); e(f"s_add_u32 s64, s64, {4*3584}")
        e(f"s_add_u32 m0, s9, {(k % 3)*SL}")
        e("s_add_u32 s12, s12, 1")
        for i in range(8):
            e(f"buffer_load_dwordx4 v{vX1 if i & 1 else vX0}, {sr(SX,4)}, s14 offen lds")
            if i < 7:
                e("s_add_u32 m0, m0, 1024")
                e("s_add_u32 s14, s14, 16384" if i & 1 else "s_nop 0")
    issue(0); issue(1)
    p2_setup(True, VW0, VW1, VT, 5)
    e("s_waitcnt vmcnt(12)")
    e("s_barrier")
    for k in range(2, 8):
        issue(k)
        if k >= 4: e("s_waitcnt vmcnt(26)"); wrd_regs(k-4, 1, SC_, slot0=k & 1); e("s_waitcnt lgkmcnt(0)")
        wdma(k-2, 1, SC_, slot0=k & 1)
        e(f"s_waitcnt vmcnt({14 if k == 2 else 16})")
        e("s_barrier")
    wdma(8, 6, SSTR)
    e("s_waitcnt vmcnt(12)")
    wrd_regs(4, 2, SC_)
    e("s_barrier")
    e("s_waitcnt lgkmcnt(0)")
    wdma(6, 2, SC_)
    e("s_waitcnt vmcnt(4)")
    if STAMP: e("s_memrealtime s[56:57]")
    wrd_regs(8, 6, SSTR)
    e("s_waitcnt vmcnt(0)")
    wrd_regs(6, 2, SC_)
    e("s_waitcnt lgkmcnt(0)")
    e("s_barrier")
    if STAMP: e("s_memrealtime s[58:59]")
    wdma(14, 14, SA_)
    e("s_branch Lp2_main")
    lab("Lg_comp")
    vXa, vXb, vWa, vH, vWb = 8, 12, 16, 18, 22
    F = [32, 56]
    ACC = 128
    e("s_and_b32 s11, s3, 1")
    e("s_lshr_b32 s12, s3, 1")
    e("s_lshl_b32 s13, s12, 7")
    e("s_add_u32 s13, s13, s8")
    e("v_lshrrev_b32 v5, 5, v1")
    e("v_lshl_add_u32 v7, v5, 3, s13")
    e("s_waitcnt lgkmcnt(0)")
    stamp(0, 0, P_WS, 24)
    srd(SB, P_B1, 3584)
    srd(SH, P_WS, HF_SZ)
    for b in range(2):
        for j in range(4):
            e(f"buffer_load_dwordx2 {vr(80+8*b+2*j,2)}, v7, {sr(SB,4)}, 0 offen offset:{64*b+16*j}")
    e("v_and_b32 v6, 31, v1")
    e("v_bfe_u32 v7, v1, 1, 3")
    e("v_xor_b32 v7, v7, v5")
    e("v_lshlrev_b32 v7, 4, v7")
    e("v_lshl_add_u32 v7, v6, 7, v7")
    e("s_lshl_b32 s13, s11, 14")
    e(f"v_add_u32 v{vXa}, s13, v7")
    for ks in range(1, 4): e(f"v_xor_b32 v{vXa+ks}, {32*ks}, v{vXa}")
    for ks in range(4): e(f"v_add_u32 v{vXb+ks}, {2*SL}, v{vXa+ks}")
    e("v_bfe_u32 v6, v1, 2, 2")
    e("v_lshl_add_u32 v7, v5, 3, v6")
    e("v_lshlrev_b32 v7, 8, v7")
    e("v_bfe_u32 v19, v1, 4, 1")
    e("v_bfe_u32 v20, v1, 1, 1")
    e("v_lshl_add_u32 v19, v19, 1, v20")
    e("s_lshl_b32 s13, s12, 3")
    e("v_add_u32 v19, s13, v19")
    e("v_lshlrev_b32 v6, 2, v6")
    e("v_xor_b32 v19, v19, v6")
    e("v_lshl_add_u32 v7, v19, 4, v7")
    e("v_and_b32 v20, 1, v1")
    e("v_lshl_add_u32 v7, v20, 3, v7")
    e(f"v_add_u32 v{vWa}, {WB}, v7")
    e(f"v_xor_b32 v{vWa+1}, 64, v{vWa}")
    for b in range(2): e(f"v_add_u32 v{vWb+b}, {2*SL}, v{vWa+b}")
    e("s_lshl_b32 s68, s4, 1"); e("s_add_u32 s68, s68, s11"); e("s_lshl_b32 s68, s68, 5")
    e("s_lshl_b32 s13, s5, 1"); e("s_add_u32 s68, s68, s13"); e("s_add_u32 s68, s68, s12")
    e(f"s_lshl_b32 s68, s68, {2+FS}"); e(f"s_add_u32 s68, s68, {FH_OFF}")
    p2_map(3)
    e("s_lshl_b32 s13, s4, 3"); e("s_lshl_b32 s14, s11, 2"); e("s_add_u32 s13, s13, s14")
    e("s_mul_i32 s13, s13, 112")
    e("s_lshl_b32 s14, s5, 3"); e("s_add_u32 s13, s13, s14")
    e("s_lshl_b32 s14, s12, 2"); e("s_add_u32 s13, s13, s14")
    e("s_lshl_b32 s13, s13, 10")
    e(f"v_lshl_add_u32 v{vH}, v1, 4, s13")
    e("v_and_b32 v28, 31, v1"); e("v_lshl_add_u32 v28, v28, 7, s13"); e(f"v_mul_u32_u24 v29, {112*1024}, v5"); e("v_add_u32 v28, v28, v29")
    for a in range(1, 4): e(f"s_mov_b32 s{64+a}, {a*112*1024}")
    BI = 96
    e("s_waitcnt vmcnt(0)")
    for b in range(2):
        for j in range(8):
            src = 80 + 8*b + j
            e(f"v_lshlrev_b32 v{BI+16*b+2*j}, 16, v{src}")
            e(f"v_and_b32 v{BI+16*b+2*j+1}, 0xffff0000, v{src}")
    def xrd(s, ks, a, reg):
        sl = s % 3
        return f"ds_read_b128 {vr(reg,4)}, v{(vXb if sl == 2 else vXa) + ks} offset:{(sl*SL if sl < 2 else 0)+4096*a}"
    def wrd(s, ks, b, reg):
        sl = s % 3
        return [f"ds_read_b64_tr_b16 {vr(reg+2*u,2)}, v{(vWb if sl == 2 else vWa)+b} offset:{(sl*SL if sl < 2 else 0)+(16*ks+4*u)*256}" for u in range(2)]
    def rdlist(s, ks, fs):
        return wrd(s, ks, 0, fs+16) + [xrd(s, ks, a, fs+4*a) for a in range(4)] + wrd(s, ks, 1, fs+20)
    def mfmas(fs, rl, first=False):
        n = 0
        for b in range(2):
            for a in range(4):
                acc = vr(ACC+64*b+16*a, 16)
                e(f"v_mfma_f32_32x32x16_bf16 {acc}, {vr(fs+16+4*b,4)}, {vr(fs+4*a,4)}, {vr(BI+16*b,16) if first else acc}")
                for r in rl[2*n:2*n+2]: e(r)
                n += 1
    quads = list(range(32, 56, 4)) + list(range(80, 128, 4)) + list(range(56, 80, 4))
    W7 = {(0, ks): quads[ks] for ks in range(4)}
    X7 = {(a, ks): quads[4+4*a+ks] for a in range(4) for ks in range(4)}
    W7.update({(1, ks): quads[20+ks] for ks in range(4)})
    def w7(b): return sum((wrd(7, ks, b, W7[b, ks]) for ks in range(4)), [])
    def x7(a): return [xrd(7, ks, a, X7[a, ks]) for ks in range(4)]
    e("s_barrier")
    stamp(1, 0, P_WS, 24)
    for r in rdlist(0, 0, F[0]): e(r)
    for s in range(7):
        for ks in range(4):
            e("s_waitcnt lgkmcnt(0)")
            if ks < 3: rl = rdlist(s, ks+1, F[(ks+1) & 1])
            else:
                e("s_barrier")
                rl = rdlist(s+1, 0, F[0]) if s < 6 else w7(0) + x7(0) + x7(1)
            if s == 4 and ks == 0: tag_issue(4)
            mfmas(F[ks & 1], rl, s == 0 and ks == 0)
    def epi(j):
        b, a = j >> 2, j & 3
        base = ACC+64*b+16*a
        L = [f"v_max_f32 v{base+r}, 0, v{base+r}" for r in range(16)]
        L += [f"v_pk_mul_f32 {vr(base+2*r,2)}, {vr(base+2*r,2)}, {vr(base+2*r,2)}" for r in range(8)]
        L += [f"v_cvt_pk_bf16_f32 v{base+r}, v{base+2*r}, v{base+2*r+1}" for r in range(8)]
        L += [f"buffer_store_dwordx4 {vr(base+4*s_,4)}, v{vH}, {sr(SH,4)}, {'0' if a == 0 else 's%d' % (64+a)} offen offset:{2048*b+1024*s_}{SC1H}" for s_ in range(0 if OPT("nost") else 2)]
        return L
    extra = {0: x7(2) + x7(3), 1: w7(1)}
    waits = {0: 4, 1: 8, 2: 12, 3: 8, 4: 0}
    pend = []
    pos = [0]
    def emit(x): e(x); pos[0] += 1
    for j in range(8):
        b, a = j >> 2, j & 3
        if j in waits: emit(f"s_waitcnt lgkmcnt({waits[j]})")
        acc = vr(ACC+64*b+16*a, 16)
        for ks in range(4):
            emit(f"v_mfma_f32_32x32x16_bf16 {acc}, {vr(W7[b,ks],4)}, {vr(X7[a,ks],4)}, {acc}")
            if ks == 3: pend += [(x, pos[0] + 12) for x in epi(j)]
            for r in extra.get(j, [])[2*ks:2*ks+2]: emit(r)
            n = 0
            while pend and n < 9 and pend[0][1] <= pos[0]:
                emit(pend.pop(0)[0]); n += 1
    stamp(2, 0, P_WS, 24)
    while pend:
        if pend[0][1] > pos[0]:
            d = pend[0][1] - pos[0]; e(f"s_nop {d-1}"); pos[0] += d
        emit(pend.pop(0)[0])
    if XV == 2: e("s_barrier")
    e("s_waitcnt vmcnt(0)" if OPT("nost") else "s_waitcnt vmcnt(16)")
    tag_get(4, 20)
    e("s_waitcnt vmcnt(0)")
    publish(68, 20)
    if OPT("hpf"):
        e(f"buffer_load_dword v100, v28, {sr(SH,4)}, 0 offen sc1")
        e(f"buffer_load_dword v101, v28, {sr(SH,4)}, s66 offen sc1")
    stamp(3, 0, P_WS, 24)
    if XV != 2: e("s_barrier")
    e("s_branch Lp2_aux")

PITCH = 528
CR_SZ = 59*PITCH
R_OFF = 32*PITCH
RG = 40960
UB = CR_SZ
US = 4576
LDS1 = 4*RG

def exp_acc(dst, x, t0, t1):
    e(f"v_mul_f32 v{t0}, s70, v{x}")
    e(f"v_fma_f32 v{t1}, v{x}, s70, -v{t0}")
    e(f"v_exp_f32 v{dst}, v{t0}")
    e(f"v_fmac_f32 v{t1}, {f32(L_LO)}, v{x}")
    e(f"v_mul_f32 v{t1}, {f32(LN2)}, v{t1}")
    e(f"v_fmac_f32 v{dst}, v{dst}, v{t1}")

def cexp(dr, di, zr2, zi2, p, t):
    if p == 1:
        e(f"v_exp_f32 v{t}, v{zr2}")
        e(f"v_fract_f32 v{di}, v{zi2}")
    else:
        e(f"v_mul_f32 v{t}, {f32(p)}, v{zr2}")
        e(f"v_mul_f32 v{di}, {f32(p)}, v{zi2}")
        e(f"v_exp_f32 v{t}, v{t}")
        e(f"v_fract_f32 v{di}, v{di}")
    e(f"v_cos_f32 v{dr}, v{di}")
    e(f"v_sin_f32 v{di}, v{di}")
    e(f"v_mul_f32 v{dr}, v{dr}, v{t}")
    e(f"v_mul_f32 v{di}, v{di}, v{t}")

def p2(r): return f"v[{r}:{r+1}]"
def cmulp(d, x, en, t):
    e(f"v_pk_mul_f32 {p2(t)}, {p2(x+2)}, {p2(en+2)}")
    e(f"v_pk_mul_f32 {p2(t+2)}, {p2(x+2)}, {p2(en)}")
    e(f"v_pk_fma_f32 {p2(d+2)}, {p2(x)}, {p2(en+2)}, {p2(t+2)}")
    e(f"v_pk_fma_f32 {p2(d)}, {p2(x)}, {p2(en)}, {p2(t)} neg_lo:[0,0,1] neg_hi:[0,0,1]")

CS2 = 4224
def conv():
    SU, SWS, SW2 = 48, 52, 56
    UR = 46
    cm("---- conv role: G = 16*s4 + s5 - 14")
    e("s_sub_u32 s5, s5, 14")
    e("s_lshl_b32 s6, s4, 4"); e("s_add_u32 s6, s6, s5")
    e("s_and_b32 s7, s3, 3")
    e("s_lshl_b32 s8, s6, 2"); e("s_add_u32 s8, s8, s7")
    e("s_lshl_b32 s9, s8, 8")
    e("v_lshl_add_u32 v2, v1, 2, s9")
    e("s_lshr_b32 s10, s8, 1"); e("s_lshl_b32 s10, s10, 2")
    e("s_lshl_b32 s11, s6, 3")
    e(f"s_mul_i32 s12, s7, {RG}")
    e("v_lshl_add_u32 v3, v1, 3, s12")
    e(f"s_mov_b32 s70, {f32(L_HI)}")
    e("s_lshl_b32 s64, s5, 17"); e("s_lshl_b32 s65, s3, 14"); e("s_add_u32 s64, s64, s65"); e("s_add_u32 s64, s64, s11")
    e("v_and_b32 v9, 15, v1"); e("v_lshl_add_u32 v9, v9, 10, s64")
    e("s_waitcnt lgkmcnt(0)")
    stamp(0, 0, P_WS)
    e(f"s_load_dword s13, {sr(P_LDT,2)}, s10")
    e(f"s_load_dwordx2 s[14:15], {sr(P_DSK,2)}, s11")
    e(f"global_load_dword v4, v2, {sr(P_LAR,2)}")
    e(f"global_load_dword v5, v2, {sr(P_AIM,2)}")
    e(f"global_load_dword v6, v2, {sr(P_CR,2)}")
    e(f"global_load_dword v7, v2, {sr(P_CI,2)}")
    e(f"global_load_dword v11, v9, {sr(P_U,2)}")
    srd(SWS, P_WS, WS_USED)
    srd(SU, P_U, 2048*1024)
    e("v_subrev_u32 v8, 256, v0")
    e("v_lshl_add_u32 v9, v8, 13, s11")
    e("v_subrev_u32 v10, 0x400, v9")
    e("s_movk_i32 s64, 4096")
    e("v_and_b32 v20, 31, v1"); e("v_lshrrev_b32 v21, 5, v1")
    e(f"v_mul_u32_u24 v22, {PITCH}, v20")
    e("v_lshl_add_u32 v22, v21, 4, v22")
    e("v_add_u32 v22, s12, v22")
    e("v_mov_b32 v23, v20")
    for thr in (11, 12, 15, 19, 23):
        e(f"v_cmp_le_u32 vcc, {thr}, v20")
        e("s_nop 1")
        e("v_subbrev_co_u32 v23, vcc, 0, v23, vcc")
    e(f"v_mul_u32_u24 v23, {PITCH}, v23")
    e("v_lshl_add_u32 v23, v21, 4, v23")
    e(f"s_add_u32 s66, s12, {R_OFF}")
    e("v_add_u32 v23, s66, v23")
    e("s_waitcnt lgkmcnt(0)")
    e("s_bitcmp1_b32 s8, 0")
    e("s_cselect_b32 s65, 0, 16")
    e("s_lshl_b32 s13, s13, s65")
    e("s_and_b32 s13, s13, 0xffff0000")
    e("v_mov_b32 v12, s13")
    exp_acc(13, 12, 14, 15)
    e("v_cvt_pk_bf16_f32 v13, v13, v13")
    e("v_and_b32 v13, 0xffff0000, v13")
    e("s_waitcnt vmcnt(3)")
    stamp(6, 0, P_WS)
    e("v_lshlrev_b32 v16, 16, v4"); e("v_and_b32 v17, 0xffff0000, v4")
    exp_acc(18, 16, 14, 15); exp_acc(19, 17, 24, 25)
    e("v_cvt_pk_bf16_f32 v18, v18, v19")
    e("v_lshlrev_b32 v16, 16, v18"); e("v_and_b32 v17, 0xffff0000, v18")
    e("v_lshlrev_b32 v18, 16, v5"); e("v_and_b32 v19, 0xffff0000, v5")
    for r in range(16, 20): e(f"v_mul_f32 v{r}, v{r}, v13")
    e(f"v_mul_f32 v16, {f32(-LOG2E)}, v16"); e(f"v_mul_f32 v17, {f32(-LOG2E)}, v17")
    e("v_mul_f32 v18, 0.15915494, v18"); e("v_mul_f32 v19, 0.15915494, v19")
    e("s_cmp_lt_u32 s3, 4")
    e("s_cbranch_scc0 Lc_rwave")
    ROLE[0] = 1
    E = 24; X = 28; T = 32; PK = 40
    cexp(E, E+2, 16, 18, 8, T); cexp(E+1, E+3, 17, 19, 8, T+1)
    e(f"v_mov_b32 v{X}, 1.0"); e(f"v_mov_b32 v{X+1}, 1.0"); e(f"v_mov_b32 v{X+2}, 0"); e(f"v_mov_b32 v{X+3}, 0")
    e("s_mov_b32 s66, 0")
    lab("Lc_lgen")
    for k in range(4):
        pk = PK + 2*k
        e(f"v_cvt_pk_bf16_f32 v{pk}, v{X}, v{X+2}")
        e(f"v_cvt_pk_bf16_f32 v{pk+1}, v{X+1}, v{X+3}")
        cmulp(X, X, E, T)
        e(f"ds_write_b64 v3, {vr(pk,2)} offset:{k*PITCH}")
    e(f"v_add_u32 v3, {4*PITCH}, v3")
    e("s_add_u32 s66, s66, 1"); e("s_cmp_lt_u32 s66, 8"); e("s_cbranch_scc1 Lc_lgen")
    e("s_waitcnt vmcnt(0)")
    e("v_and_b32 v4, 1, v1"); e("v_xor_b32 v4, 1, v4"); e(f"v_mul_u32_u24 v4, {CS2}, v4")
    e("v_bfe_u32 v5, v1, 1, 1"); e("v_lshl_add_u32 v4, v5, 3, v4")
    e("v_bfe_u32 v5, v1, 2, 2"); e("v_lshrrev_b32 v6, 4, v1"); e("v_add_u32 v5, v5, v6")
    e("v_lshl_add_u32 v4, v5, 4, v4"); e("s_add_u32 s66, s12, 8"); e("v_add_u32 v4, s66, v4")
    e("v_and_b32 v5, 1, v1"); e(f"v_mul_u32_u24 v5, {US}, v5")
    e("v_bfe_u32 v7, v1, 1, 3"); e("v_lshlrev_b32 v8, 2, v7"); e("v_sub_u32 v8, v8, v6")
    e("v_lshl_add_u32 v5, v8, 4, v5")
    e(f"s_add_u32 s66, s12, {UB+448+48}")
    e("v_add_u32 v5, s66, v5")
    e("v_mul_u32_u24 v8, 272, v6"); e("v_and_b32 v9, 15, v1"); e("v_lshl_add_u32 v8, v9, 4, v8"); e("v_add_u32 v8, s12, v8")
    e("v_lshl_add_u32 v10, v1, 4, s12")
    e("v_bfe_u32 v12, v1, 4, 1"); e(f"v_mul_u32_u24 v12, {CS2}, v12"); e("v_lshl_add_u32 v12, v9, 2, v12"); e("v_add_u32 v12, s12, v12")
    e("v_mov_b32 v13, 0")
    e("v_and_b32 v14, 1, v1"); e("v_cmp_eq_u32 vcc, 0, v14")
    e("s_waitcnt lgkmcnt(0)")
    stamp(7, 0, P_WS)
    e("s_barrier")
    stamp(1, 0, P_WS)
    FR = 64; KA = 192
    def krd(ks):
        e(f"ds_read_b128 {vr(FR+8*ks,4)}, v23 offset:{32*ks}")
        e(f"ds_read_b128 {vr(FR+8*ks+4,4)}, v22 offset:{32*ks}")
    for ks in range(6): krd(ks)
    ACC = 24
    for ks in range(16):
        if ks + 6 < 16: krd(ks+6)
        e(f"s_waitcnt lgkmcnt({2*min(6, 15-ks)})")
        e(f"v_mfma_f32_32x32x16_bf16 {vr(KA,16)}, {vr(FR+8*ks,4)}, {vr(FR+8*ks+4,4)}, {'0' if ks == 0 else vr(KA,16)}")
        for r in range(2): e(f"v_mov_b32 v{ACC+2*ks+r}, 0")
    stamp(5, 0, P_WS)
    e("ds_write_b32 v12, v13")
    e("s_nop 7"); e("s_nop 1")
    D = 64; S = 80; k = KA
    e(f"v_cndmask_b32 v14, v{k+13}, v{k+12}, vcc")
    e(f"v_cndmask_b32 v15, v{k+15}, v{k+14}, vcc")
    pk = [(k,k+1),(k+2,k+3),(k+4,k+4),(k+5,k+6),
          (k+8,k+8),(k+8,k+9),(k+9,k+9),(k+10,k+10),
          (k+12,k+12),(k+12,k+12),(14,k+13),(k+13,k+13),
          (k+14,k+14),(k+14,k+14),(15,k+15),(k+15,k+15)]
    for i, (a, b) in enumerate(pk):
        e(f"v_cvt_pk_bf16_f32 v{D+i}, v{a}, v{b}")
        if i == 7:
            e(f"v_permlane32_swap_b32 v{D}, v{D+2}"); e(f"v_permlane32_swap_b32 v{D+1}, v{D+3}")
            e(f"ds_write_b128 v10, {vr(D+4,4)} offset:{64+1024}")
            e(f"ds_write_b128 v10, {vr(D,4)} offset:64")
        if i == 11: e(f"ds_write_b128 v10, {vr(D+8,4)} offset:{64+2048}")
    e(f"ds_write_b128 v10, {vr(D+12,4)} offset:{64+3072}")
    e(f"v_mov_b32 v{S}, 0")
    for q in range(1, 4): e(f"v_mov_b32_dpp v{S+4*q}, v{D+4*q-1} wave_ror:1 row_mask:0xf bank_mask:0xf")
    for q in range(4):
        for j in range(3): e(f"v_mov_b32 v{S+4*q+1+j}, v{D+4*q+j}")
        e(f"v_mov_b32_dpp v{S+4*q}, v{D+4*q+3} wave_shr:1 row_mask:0xf bank_mask:0xf")
        e(f"ds_write_b128 v10, {vr(S+4*q,4)} offset:{CS2+64+1024*q}")
    FQ = [64, 128]
    e("s_waitcnt lgkmcnt(0)")
    stamp(4, 0, P_WS)
    e("s_barrier")
    stamp(2, 0, P_WS)
    def crl(fs):
        L = []
        for i in range(8):
            L.append(f"ds_read_b128 {vr(fs+32+4*i,4)}, v5 offset:{512*i}")
            L.append(f"ds_read_b64 {vr(fs+4*i,2)}, v4 offset:{512*i}")
            L.append(f"ds_read_b64 {vr(fs+4*i+2,2)}, v4 offset:{512*i+8}")
        return L
    for r in crl(FQ[0]): e(r)
    e("v_add_u32 v4, 64, v4"); e("v_subrev_u32 v5, 64, v5")
    e("s_mov_b32 s66, 0")
    lab("Lc_loop")
    for half in range(2):
        cur, nxt = FQ[half], FQ[1-half]
        e("s_waitcnt lgkmcnt(0)")
        rl = crl(nxt)
        n = 0
        for i in range(8):
            for j in range(8 - i):
                acc = vr(ACC+4*(i+j), 4)
                e(f"v_mfma_f32_16x16x32_bf16 {acc}, {vr(cur+4*i,4)}, {vr(cur+32+4*j,4)}, {acc}")
                if n < 24: e(rl[n])
                if n == 24: e("v_add_u32 v4, 64, v4")
                if n == 25: e("v_subrev_u32 v5, 64, v5")
                if n == 26 and half == 1: e("s_add_u32 s66, s66, 1")
                if n == 27 and half == 1: e("s_cmp_lt_u32 s66, 4")
                n += 1
    e("s_cbranch_scc1 Lc_loop")
    e("s_waitcnt lgkmcnt(0)")
    stamp(3, 0, P_WS)
    for t in range(8):
        if t == 6: e("s_nop 1")
        e(f"ds_write_b128 v8, {vr(ACC+4*t,4)} offset:{1088*t}")
    tag_issue(4)
    e("s_waitcnt lgkmcnt(0)")
    e("s_barrier")
    p2_map(3)
    e("s_lshl_b32 s8, s5, 2"); e("s_add_u32 s8, s8, s3")
    e("s_cmp_ge_u32 s8, 28"); e("s_cselect_b32 s9, 1, 0"); e("s_mul_i32 s10, s9, 28"); e("s_sub_u32 s10, s8, s10")
    e("s_lshl_b32 s11, s4, 1"); e("s_add_u32 s9, s9, s11")
    e("s_lshl_b32 s11, s9, 5"); e("s_add_u32 s11, s11, s10"); e(f"s_lshl_b32 s11, s11, {2+FS}"); e(f"s_add_u32 s11, s11, {FH_OFF}")
    e(f"s_mul_i32 s9, s9, {4*112*1024}"); e("s_lshl_b32 s10, s10, 12"); e("s_add_u32 s9, s9, s10"); e(f"s_add_u32 s10, s9, {2*112*1024}")
    e("v_mov_b32 v5, s11")
    e("v_and_b32 v6, 31, v1"); e("v_lshlrev_b32 v6, 7, v6"); e("v_lshrrev_b32 v7, 5, v1"); e(f"v_mul_u32_u24 v7, {112*1024}, v7"); e("v_add_u32 v6, v6, v7")
    e("s_waitcnt vmcnt(0)")
    tag_get(4, 20)
    if PFN:
        e("s_cmp_ge_u32 s8, 56"); e("s_cbranch_scc1 Lc_nopf")
        poll(5, 4, PFN)
        e("s_cbranch_vccnz Lc_nopf")
        e(f"buffer_load_dword v100, v6, {sr(SWS,4)}, s9 offen sc1")
        e(f"buffer_load_dword v101, v6, {sr(SWS,4)}, s10 offen sc1")
        lab("Lc_nopf")
    e("s_branch Lp2_aux")
    lab("Lc_rwave")
    ROLE[0] = 2
    E1 = 24; E256 = 28; T = 32; PK = 88
    R = {0: 64, 2: 68, 4: 72, 6: 76, 8: 80}; TMP = 84
    def uload(r):
        e(f"buffer_load_dwordx2 {vr(UR+2+2*r,2)}, v9, {sr(SU,4)}, {'0' if r < 4 else 's64'} offen offset:{1024*(r&3)}")
    e("s_waitcnt vmcnt(1)" if not STAMP else "s_waitcnt vmcnt(2)")
    e("v_add_f32 v13, v13, v13")
    e(f"v_lshlrev_b32 v{R[0]}, 16, v6"); e(f"v_and_b32 v{R[0]+1}, 0xffff0000, v6")
    e(f"v_lshlrev_b32 v{R[0]+2}, 16, v7"); e(f"v_and_b32 v{R[0]+3}, 0xffff0000, v7")
    e("s_mov_b64 exec, 1")
    e(f"buffer_load_dwordx2 {vr(UR,2)}, v10, {sr(SU,4)}, 0 offen")
    e("s_mov_b64 exec, -1")
    uload(0)
    cexp(E1, E1+2, 16, 18, 1, T); cexp(E1+1, E1+3, 17, 19, 1, T+1)
    cexp(E256, E256+2, 16, 18, 256, T); cexp(E256+1, E256+3, 17, 19, 256, T+1)
    for r in range(4): e(f"v_mul_f32 v{R[0]+r}, v{R[0]+r}, v13")
    cnt = [0]
    def putr(x, srow):
        pk = PK + 2*(cnt[0] % 4); cnt[0] += 1
        e(f"v_cvt_pk_bf16_f32 v{pk}, v{x}, -v{x+2}")
        e(f"v_cvt_pk_bf16_f32 v{pk+1}, v{x+1}, -v{x+3}")
        e(f"ds_write_b64 v3, {vr(pk,2)} offset:{R_OFF+srow*PITCH}")
        if cnt[0] in (3, 11, 19, 27): uload(1 + (cnt[0]-3)//8)
    putr(R[0], 0)
    cur = R[0]
    for p in range(1, 9):
        nx = R[p] if p in R else TMP
        cmulp(nx, cur, E1, T)
        if p < 8: putr(nx, p)
        cur = nx
    for xs, sr0 in (([0,2,4,6,8], 8), ([0,4,8], 13), ([0,4,8], 16), ([0,8], 19), ([0,8], 23), ([0,8], 21), ([0,8], 25)):
        for i, x in enumerate(xs):
            cmulp(R[x], R[x], E256, T)
            putr(R[x], sr0 + i)
    e("s_waitcnt lgkmcnt(0)")
    stamp(7, 0, P_WS)
    e("s_barrier")
    for r in range(5, 8): uload(r)
    stamp(1, 0, P_WS)
    e("s_mov_b32 s66, 0x05040100"); e("s_mov_b32 s67, 0x07060302")
    e("v_bfe_u32 v4, v8, 5, 1"); e(f"v_mul_u32_u24 v4, {US}, v4"); e("v_add_u32 v4, s12, v4")
    e("v_and_b32 v5, 31, v8"); e("v_min_u32 v5, 27, v5"); e("v_lshl_add_u32 v4, v5, 4, v4")
    for r in range(4): e(f"v_mov_b32 v{24+r}, 0")
    e(f"v_add_u32 v4, {UB}, v4")
    e(f"ds_write_b128 v4, {vr(24,4)}")
    e("v_lshlrev_b32 v4, 4, v8"); e(f"v_add_u32 v4, {UB+448}, v4"); e(f"v_add_u32 v5, {2*RG}, v4")
    p2_setup(False, VW0, VW1, VT, 6)
    e("s_waitcnt vmcnt(0)")
    stamp(3, 0, P_WS)
    for hh in range(2): e(f"v_mov_b32_dpp v{UR+hh}, v{UR+16+hh} wave_shr:1 row_mask:0xf bank_mask:0xf")
    def row(r, c): return UR + 2 + 2*r + (c >> 1)
    k = 0
    for c in range(4):
        sel = "s67" if c & 1 else "s66"
        for b0 in (1, 0):
            d = 64 + 4*(k % 4); k += 1
            top = 7 if b0 else 6
            for i in range(4):
                e(f"v_perm_b32 v{d+i}, v{row(top-2*i-1,c)}, v{row(top-2*i,c)}, {sel}")
            e(f"ds_write_b128 v{4 + (c >> 1)}, {vr(d,4)} offset:{(c&1)*RG+b0*US}")
    e("s_waitcnt lgkmcnt(0)")
    e("s_barrier")
    stamp(2, 0, P_WS)
    UF = 64
    def mid():
        e("s_lshl_b32 s72, s14, 16"); e("s_and_b32 s73, s14, 0xffff0000")
        e("s_lshl_b32 s74, s15, 16"); e("s_and_b32 s75, s15, 0xffff0000")
        for r in range(8):
            for hh in range(2):
                e(f"v_lshlrev_b32 v{UF+4*r+2*hh}, 16, v{UR+2+2*r+hh}")
                e(f"v_and_b32 v{UF+4*r+2*hh+1}, 0xffff0000, v{UR+2+2*r+hh}")
        e("v_lshrrev_b32 v4, 5, v8"); e("v_mul_u32_u24 v4, 1088, v4")
        e("v_and_b32 v5, 3, v8"); e("v_mul_u32_u24 v5, 272, v5")
        e("v_bfe_u32 v6, v8, 2, 3"); e("v_lshl_add_u32 v4, v6, 5, v4"); e("v_add_u32 v4, v4, v5")
        e(f"v_add_u32 v5, {2*RG}, v4")
        e("v_lshlrev_b32 v6, 4, v8")
        e("s_lshl_b32 s68, s6, 14"); e(f"s_add_u32 s68, s68, {A4_OFF}")
        for i in range(1, 4): e(f"s_add_u32 s{68+i}, s68, {4096*i}")
        e("s_lshl_b32 s64, s7, 9"); e("s_lshl_b32 s65, s6, 2"); e("s_add_u32 s64, s64, s65"); e(f"s_lshl_b32 s64, s64, {FS}"); e(f"s_add_u32 s64, s64, {FC_OFF}")
        e("s_waitcnt vmcnt(0)")
    wpre_conv(mid)
    e("s_barrier")
    stamp(4, 0, P_WS)
    tag_issue(7)
    Y = 96
    for c in range(4):
        for b0 in range(2):
            e(f"ds_read_b128 {vr(Y+8*c+4*b0,4)}, v{4 if c < 2 else 5} offset:{(c&1)*RG+16*b0}")
    for c in range(4):
        e(f"s_waitcnt lgkmcnt({6-2*c})")
        for l in range(8):
            e(f"v_fma_f32 v{UF+4*l+c}, v{UF+4*l+c}, s{72+c}, v{Y+8*c+4*(l&1)+(l>>1)}")
    O = 16
    for l in range(8):
        for hh in range(2): e(f"v_cvt_pk_bf16_f32 v{O+2*l+hh}, v{UF+4*l+2*hh}, v{UF+4*l+2*hh+1}")
    for i in range(4): e(f"buffer_store_dwordx4 {vr(O+4*i,4)}, v6, {sr(SWS,4)}, s{68+i} offen{SC1A}")
    e("s_waitcnt vmcnt(0)")
    tag_get(7, 4)
    publish(64, 4)
    wpost_conv()
    stamp(5, 0, P_WS)
    e("s_branch Lp2_main")

def idle():
    e("s_cmp_lt_u32 s3, 4")
    e("s_cbranch_scc0 Li_hi")
    p2_map(3)
    e("s_waitcnt lgkmcnt(0)")
    stamp(0, 0, P_WS)
    SU, SWS = 48, 52
    e("v_mov_b32 v4, s3")
    srd(SWS, P_WS, WS_USED)
    srd(SU, P_U, 2048*1024)
    e("s_lshl_b32 s68, s4, 1"); e("s_add_u32 s68, s68, s5"); e("s_sub_u32 s68, s68, 30")
    e("s_lshl_b32 s68, s68, 2"); e("s_add_u32 s68, s68, s3")
    e(f"s_lshl_b32 s64, s68, {2+FS}"); e(f"s_add_u32 s64, s64, {FG_OFF}")
    e("s_lshl_b32 s68, s68, 5")
    lab("Li_gate")
    e("s_lshl_b32 s69, s68, 10"); e("s_add_u32 s71, s69, 4096")
    e("v_lshlrev_b32 v4, 4, v1")
    e(f"global_load_dwordx4 {vr(96,4)}, v4, {sr(P_GW,2)}")
    for r in range(8):
        e(f"buffer_load_dwordx4 {vr(64+4*r,4)}, v4, {sr(SU,4)}, {'s69' if r < 4 else 's71'} offen offset:{1024*(r&3)}")
    e("s_waitcnt vmcnt(8)")
    for i in range(4):
        e(f"v_lshlrev_b32 v{100+2*i}, 16, v{96+i}"); e(f"v_and_b32 v{100+2*i+1}, 0xffff0000, v{96+i}")
    for r in range(8):
        e(f"s_waitcnt vmcnt({7-r})")
        for i in range(4):
            e(f"v_lshlrev_b32 v{110+2*i}, 16, v{64+4*r+i}"); e(f"v_and_b32 v{110+2*i+1}, 0xffff0000, v{64+4*r+i}")
        for i in range(8): e(f"v_mul_f32 v{110+i}, v{110+i}, v{100+i}")
        for i in range(4): e(f"v_cvt_pk_bf16_f32 v{120+i}, v{110+2*i}, v{110+2*i+1}")
        for i in range(4):
            e(f"v_lshlrev_b32 v{110+2*i}, 16, v{120+i}"); e(f"v_and_b32 v{110+2*i+1}, 0xffff0000, v{120+i}")
        for i in range(4): e(f"v_add_f32 v{110+i}, v{110+i}, v{114+i}")
        e("v_add_f32 v110, v110, v112"); e("v_add_f32 v111, v111, v113")
        e(f"v_add_f32 v{24+r}, v110, v111")
    for dpp in ("quad_perm:[1,0,3,2] row_mask:0xf", "quad_perm:[2,3,0,1] row_mask:0xf", "row_half_mirror row_mask:0xf",
                "row_mirror row_mask:0xf", "row_bcast:15 row_mask:0xa", "row_bcast:31 row_mask:0xc"):
        e("s_nop 1")
        for r in range(8): e(f"v_add_f32_dpp v{24+r}, v{24+r}, v{24+r} {dpp} bank_mask:0xf")
    e("s_nop 1")
    for r in range(8): e(f"v_readlane_b32 s{56+r}, v{24+r}, 63")
    e("s_nop 3")
    for r in range(8): e(f"v_writelane_b32 v32, s{56+r}, {r}")
    e("s_nop 1")
    e("v_cvt_pk_bf16_f32 v32, v32, v32"); e("v_and_b32 v32, 0xffff0000, v32")
    e(f"v_mul_f32 v32, {f32(-LOG2E)}, v32")
    e("v_exp_f32 v32, v32"); e("s_nop 0"); e("v_add_f32 v32, 1.0, v32"); e("v_rcp_f32 v32, v32"); e("s_nop 0")
    e("v_cvt_pk_bf16_f32 v32, v32, v32"); e("v_and_b32 v32, 0xffff0000, v32")
    e("v_sub_f32 v33, 1.0, v32")
    e("v_cvt_pk_bf16_f32 v33, v33, v33"); e("v_and_b32 v33, 0xffff0000, v33")
    e("v_lshlrev_b32 v4, 3, v1")
    e("s_lshl_b32 s69, s68, 3"); e(f"s_add_u32 s69, s69, {G_OFF}")
    e("s_mov_b64 exec, 0xff")
    e(f"buffer_store_dwordx2 v[32:33], v4, {sr(SWS,4)}, s69 offen{SC1A}")
    e("s_mov_b64 exec, -1")
    e("s_add_u32 s68, s68, 8"); e("s_and_b32 s69, s68, 31"); e("s_cbranch_scc1 Li_gate")
    tag_issue(4)
    e("s_waitcnt vmcnt(0)")
    tag_get(4, 20)
    publish(64, 4)
    stamp(1, 0, P_WS)
    e("s_branch Lp2_aux")
    lab("Li_hi")
    e("s_sub_u32 s68, s2, 240"); e(f"s_mul_i32 s68, s68, {68*(4<<FS)}"); e(f"s_add_u32 s68, s68, {FH_OFF}")
    e(f"v_lshl_add_u32 v4, v1, {2+FS}, s68"); e("v_and_b32 v5, 3, v1"); e("v_or_b32 v5, 64, v5"); e(f"v_lshl_add_u32 v5, v5, {2+FS}, s68")
    e("v_mov_b32 v6, 0"); e("v_mov_b32 v7, 1")
    e("s_waitcnt lgkmcnt(0)")
    e("s_cmp_lg_u32 s3, 4"); e("s_cbranch_scc1 Li_noclr")
    e(f"global_store_dword v4, v6, {sr(P_WS,2)} sc1")
    e(f"global_store_dword v5, v6, {sr(P_WS,2)} sc1")
    e("s_waitcnt vmcnt(0)")
    e("s_mov_b64 exec, 1")
    e(f"global_atomic_add v6, v7, {sr(P_DBG,2)} sc1")
    e("s_mov_b64 exec, -1")
    e("s_nop 1")
    lab("Li_noclr")
    p2_setup(False, VW0, VW1, VT, 6)
    if not OPT("nopf"):
        e("s_sub_u32 s68, s2, 240"); e("s_lshl_b32 s68, s68, 2"); e("s_add_u32 s68, s68, s3"); e("s_sub_u32 s68, s68, 4")
        e(f"s_mul_i32 s68, s68, {224*128}")
        e("v_lshlrev_b32 v4, 7, v1")
        for t in range(4):
            e(f"buffer_load_dword v{244+t}, v4, {sr(SW2P,4)}, s68 offen")
            if t < 3: e("s_add_u32 s68, s68, 8192")
    wpre_conv(lambda: e("s_waitcnt vmcnt(0)"))
    e("s_waitcnt vmcnt(0)")
    wpost_conv()
    e("s_branch Lp2_main")

def gemm2():
    ROLE[0] = 0
    SWS, SO, SB2 = 48, 52, 56
    def ids(q):
        e("s_lshr_b32 s6, s2, 6"); e("s_lshl_b32 s7, s4, 2"); e("s_add_u32 s6, s6, s7")
        e("s_bfe_u32 s7, s2, 0x30003")
        e(f"s_lshr_b32 s11, s{q}, 1"); e(f"s_and_b32 s12, s{q}, 1")
        e("s_lshl_b32 s13, s6, 1"); e("s_add_u32 s13, s13, s12"); e("s_lshl_b32 s13, s13, 5")
        e("s_lshl_b32 s14, s7, 1"); e("s_add_u32 s14, s14, s11"); e("s_lshl_b32 s14, s14, 5")
        e("v_and_b32 v7, 31, v1"); e("v_lshrrev_b32 v8, 5, v1")
        e("v_add_u32 v7, s13, v7")
        e("s_lshl_b32 s72, s14, 1")
        e("v_lshlrev_b32 v2, 4, v1")
        srd(SWS, P_WS, WS_USED)
    lab("Lp2_aux")
    ids(3)
    EP = 16
    e(f"s_load_dwordx16 s[52:67], {sr(P_B2,2)}, s72")
    e("v_lshlrev_b32 v9, 3, v7")
    e("v_bfe_u32 v10, v7, 1, 2"); e("v_lshl_add_u32 v10, v8, 2, v10"); e("v_lshlrev_b32 v10, 12, v10")
    e("v_lshrrev_b32 v11, 3, v7"); e("v_lshl_add_u32 v10, v11, 4, v10"); e("v_and_b32 v11, 1, v7"); e("v_lshl_add_u32 v10, v11, 3, v10")
    e("s_lshl_b32 s15, s14, 12"); e(f"s_add_u32 s15, s15, {A4_OFF}")
    e("s_add_u32 s68, s15, 32768"); e("s_add_u32 s69, s68, 32768"); e("s_add_u32 s70, s69, 32768")
    e(f"s_mov_b32 s71, {G_OFF}")
    e("s_lshr_b32 s73, s6, 3"); e("s_lshl_b32 s73, s73, 9"); e("s_add_u32 s73, s73, s14"); e(f"s_lshl_b32 s73, s73, {FS}"); e(f"s_add_u32 s73, s73, {FC_OFF}")
    e("v_and_b32 v3, 7, v1"); e(f"v_lshl_add_u32 v3, v3, {2+FS}, s73")
    e("s_lshr_b32 s73, s13, 3"); e(f"s_lshl_b32 s73, s73, {FS}"); e(f"s_add_u32 s73, s73, {FG_OFF}")
    e("v_mov_b32 v4, s73")
    e("v_cmp_gt_u32 vcc, 48, v1")
    e(f"v_add_u32 v12, s{ST_}, v2"); e(f"v_lshl_add_u32 v13, v1, 2, s{ST_}")
    e("v_cndmask_b32 v3, v4, v3, vcc")
    e("s_lshr_b32 s73, s6, 1"); e("s_lshl_b32 s73, s73, 5"); e("s_mul_i32 s74, s3, 7"); e("s_add_u32 s73, s73, s74")
    e(f"s_lshl_b32 s73, s73, {2+FS}"); e(f"s_add_u32 s73, s73, {FH_OFF}")
    e("v_cmp_gt_u32 vcc, 32, v1")
    e("v_min_u32 v5, 6, v1"); e(f"v_lshl_add_u32 v5, v5, {2+FS}, s73")
    e("v_mov_b32 v6, 0")
    e(f"ds_write_b32 v13, v6 offset:{LSIG}")
    e("v_cndmask_b32 v3, v3, v5, vcc")
    e("s_waitcnt lgkmcnt(0)")
    for i in range(8): e(f"v_mov_b32 v{EP+8+i}, s{52+4*(i>>1)+(i&1)}")
    e("s_mov_b32 exec_lo, 0")
    for i in range(8): e(f"v_mov_b32 v{EP+8+i}, s{52+4*(i>>1)+2+(i&1)}")
    e("s_mov_b32 exec_lo, -1")
    e("v_mov_b32 v6, 1")
    e("s_barrier")
    e(f"s_mov_b32 s76, {SPIN}")
    PD = int(([a[5:] for a in sys.argv if a.startswith("--pd=")] + ["1"])[0])
    for i in range(PD - 1):
        e(f"global_load_dword v{80+i}, v3, {sr(P_WS,2)} sc1")
        e(f"s_sleep {SLP}")
    lab("Lp2_poll")
    for i in range(PD):
        e(f"global_load_dword v{80+(i+PD-1)%PD}, v3, {sr(P_WS,2)} sc1")
        e("s_sub_u32 s76, s76, 1")
        e(f"s_waitcnt vmcnt({PD-1})")
        e(f"v_cmp_ne_u32 vcc, s{STAG}, v{80+i}")
        e("s_cmp_eq_u32 s76, 0"); e("s_cbranch_scc1 Lp2_pollx")
        e("s_cmp_eq_u32 vcc_lo, 0"); e("s_cbranch_scc1 Lp2_pollx")
        e(f"s_sleep {SLP}")
    e("s_branch Lp2_poll")
    lab("Lp2_pollx")
    e(f"ds_write_b32 v13, v6 offset:{LSIG}")
    e("s_cbranch_vccz Lp2_ready")
    poll(3, 4)
    lab("Lp2_ready")
    stamp(1, 1, P_WS)
    for j, so in enumerate(("s15", "s68", "s69", "s70")):
        e(f"buffer_load_dwordx2 {vr(EP+2*j,2)}, v10, {sr(SWS,4)}, {so} offen sc1")
    e(f"buffer_load_dwordx2 {vr(EP+16,2)}, v9, {sr(SWS,4)}, s71 offen sc1")
    AF = 40; BF = 56
    for i in range(8):
        e(f"v_lshlrev_b32 v{BF+2*i}, 16, v{EP+8+i}"); e(f"v_and_b32 v{BF+2*i+1}, 0xffff0000, v{EP+8+i}")
    e("s_waitcnt vmcnt(0)")
    for i in range(8):
        e(f"v_lshlrev_b32 v{AF+2*i}, 16, v{EP+i}"); e(f"v_and_b32 v{AF+2*i+1}, 0xffff0000, v{EP+i}")
    for i in range(16): e(f"v_mul_f32 v{AF+i}, v{AF+i}, v{EP+16}")
    for i in range(16): e(f"v_fmac_f32 v{AF+i}, v{BF+i}, v{EP+17}")
    for r in range(4): e(f"ds_write_b128 v12, {vr(AF+4*r,4)} offset:{1024*r}")
    e(f"ds_write_b32 v13, v{EP+17} offset:4096")
    e("s_waitcnt lgkmcnt(0)")
    stamp(2, 1, P_WS)
    e("s_barrier")
    e("s_endpgm")
    lab("Lp2_main")
    e("s_barrier")
    e("s_sub_u32 s10, s3, 4")
    ids(10)
    srd(SO, P_OUT, 2048*1024)
    e(f"s_mul_i32 s8, s10, {28*1024}")
    e(f"s_mul_i32 s9, s6, {2*112*1024}"); e("s_add_u32 s9, s9, s8")
    e(f"s_mul_i32 s13, s12, {112*1024}"); e(f"s_sub_u32 s14, {112*1024}, s13")
    e("s_add_u32 s13, s13, s9"); e("s_add_u32 s14, s14, s9")
    e("v_add_u32 v3, s13, v2"); e("v_add_u32 v4, s14, v2")
    e("v_lshlrev_b32 v12, 10, v7"); e("v_lshl_add_u32 v12, v8, 4, v12"); e("v_add_u32 v12, s72, v12")
    e(f"v_add_u32 v14, s{SA_}, v2")
    for t in range(1, 4):
        e(f"s_xor_b32 s14, s10, {t}"); e("s_mul_i32 s14, s14, 40960"); e("s_add_u32 s14, s14, 8704"); e(f"v_add_u32 v{6+t}, s14, v2")
    e(f"v_add_u32 v10, s{SA_}, v{VT}"); e("v_xor_b32 v11, 64, v10")
    e(f"v_add_u32 v2, s{ST_}, v2"); e(f"v_lshl_add_u32 v13, v1, 2, s{ST_}")
    stamp(0, 1, P_WS)
    e(f"s_mov_b32 s76, {SPIN*16}")
    lab("Lp2_wait")
    e(f"ds_read_b32 v6, v13 offset:{LSIG}")
    e("s_sub_u32 s76, s76, 1")
    e("s_waitcnt lgkmcnt(0)")
    e("v_cmp_ne_u32 vcc, 1, v6")
    e("s_cmp_eq_u32 s76, 0"); e("s_cbranch_scc1 Lp2_go")
    e("s_cbranch_vccz Lp2_go")
    e("s_sleep 1")
    e("s_branch Lp2_wait")
    lab("Lp2_go")
    stamp(1, 1, P_WS)
    hist = []
    def loads(s):
        fs = HREG[s % HD]
        for a in range(2):
            e(f"buffer_load_dwordx4 {vr(fs+4*a,4)}, v{3+a}, {sr(SWS,4)}, s{SG + s//4} offen offset:{1024*(s&3)}{HL}")
            hist.append(('h', s))
    def younger(k): return len(hist) - 1 - max(i for i, x in enumerate(hist) if x == k)
    def wrd(s):
        for b in range(2):
            for u in range(2):
                e(f"ds_read_b64_tr_b16 {vr(WD+8*(s&1)+4*b+2*u,2)}, v{10+b} offset:{2048*(s-14)+1024*u}")
    for s in range(HD): loads(s)
    for s in range(28):
        if 14 <= s + 1 < 28: wrd(s+1)
        e(f"s_waitcnt vmcnt({younger(('h', s))})" + (f" lgkmcnt({4 if s < 27 else 0})" if s >= 14 else ""))
        fs = HREG[s % HD]; wf = WR + 8*s if s < 14 else WD + 8*(s & 1)
        for b in range(2):
            for a in range(2):
                acc = vr(AC2+32*b+16*a, 16)
                e(f"v_mfma_f32_32x32x16_bf16 {acc}, {vr(wf+4*b,4)}, {vr(fs+4*a,4)}, {'0' if s == 0 else acc}")
        if s + HD < 28: loads(s + HD)
    stamp(2, 1, P_WS, 200)
    e("s_nop 7"); e("s_nop 1")
    for t in range(1, 4):
        for r in range(4):
            e(f"ds_write_b128 v14, {vr(AC2+16*t+4*r,4)} offset:{(t-1)*4096+r*1024}")
    e("s_waitcnt lgkmcnt(0)")
    e("s_barrier")
    stamp(3, 1, P_WS, 200)
    P = 128
    for t in range(3):
        for r in range(4): e(f"ds_read_b128 {vr(P+16*t+4*r,4)}, v{7+t} offset:{t*4096+r*1024}")
    e("s_waitcnt lgkmcnt(8)")
    for r in range(4): e(f"ds_read_b128 {vr(P+48+4*r,4)}, v2 offset:{r*1024}")
    e(f"ds_read_b32 v6, v13 offset:4096")
    for t in range(3):
        if t: e(f"s_waitcnt lgkmcnt({13-4*t})")
        for i in range(8): e(f"v_pk_add_f32 {p2(AC2+2*i)}, {p2(AC2+2*i)}, {p2(P+16*t+2*i)}")
    e("s_waitcnt lgkmcnt(0)")
    for i in range(16): e(f"v_fmac_f32 v{P+48+i}, v{AC2+i}, v6")
    O = 16
    for i in range(8): e(f"v_cvt_pk_bf16_f32 v{O+i}, v{P+48+2*i}, v{P+48+2*i+1}")
    e("s_nop 1")
    for jj in range(2):
        e(f"v_permlane32_swap_b32 v{O+4*jj}, v{O+4*jj+2}")
        e(f"v_permlane32_swap_b32 v{O+4*jj+1}, v{O+4*jj+3}")
    for jj in range(2):
        e(f"buffer_store_dwordx4 {vr(O+4*jj,4)}, v12, {sr(SO,4)}, 0 offen offset:{32*jj}")
    if STAMP:
        e("s_waitcnt vmcnt(0)")
        stamp(4, 1, P_WS, 200)
        for i in range(2):
            e(f"v_mov_b32 v200, s{56+2*i}"); e("v_add_u32 v202, 8, v202")
            e(f"global_store_dwordx2 v202, v[200:201], s[{P_WS}:{P_WS+1}]"); e("s_nop 1")
    e("s_endpgm")

def kd(name, vgpr, accum):
    out.append(f""".amdhsa_kernel {name}
  .amdhsa_next_free_vgpr {vgpr}
  .amdhsa_next_free_sgpr 102
  .amdhsa_accum_offset {accum}
  .amdhsa_group_segment_fixed_size 0
  .amdhsa_kernarg_size 128
  .amdhsa_user_sgpr_count 2
  .amdhsa_user_sgpr_kernarg_segment_ptr 1
  .amdhsa_system_sgpr_workgroup_id_x 1
.end_amdhsa_kernel""")

hdr = open(f"cdna_kernels/{NAME}.s.ref").read().splitlines()
for l in hdr:
    if l.startswith(";") and "@launch" not in l and "Override" not in l and "Harness parses" not in l: out.append(l)
K1 = "gmix_a_kernel" if OPT("ll") or STAMP else NAME + "_kernel"
out.append(f"; @launch {'kernel='+K1+' ' if OPT('ll') or STAMP else ''}grid=(256,1,1) block=(512,1,1) lds={LDS1}")
out.append('.amdgcn_target "amdgcn-amd-amdhsa--gfx950"')
out.append(".text")
out.append(f".globl {K1}")
out.append(".p2align 8"); out.append(f".type {K1},@function"); lab(K1)
EXIT = "La_exit"
prologue(256)
e("s_cmp_ge_u32 s5, 30")
e("s_cbranch_scc1 La_idle")
e("s_cmp_ge_u32 s5, 14")
e("s_cbranch_scc1 La_conv")
gemm1()
lab("La_conv")
conv()
lab("La_idle")
idle()
gemm2()
lab(EXIT); e("s_endpgm")
out.append('.section .rodata,"a"'); out.append(".p2align 6")
kd(K1, 256, 256)
dst = [a for a in sys.argv[1:] if not a.startswith("--")]
open(dst[0] if dst else f"cdna_kernels/{NAME}.s", "w").write("\n".join(out) + "\n")
```

```python
import sys, struct
NAME = "gated_mix__ssm_conv_s4d__dense_activation_squared_relu__prompt"
STAMP = "--stamp" in sys.argv or "--dbg" in sys.argv

OPT = lambda k: ("--"+k) in sys.argv
SC1A = "" if OPT("nosc1") else " sc1"
SC1H = "" if OPT("nosc1") or OPT("hpl") else " sc1"
NTW1 = " nt" if OPT("ntw1") else ""
DEP = int(([a[6:] for a in sys.argv if a.startswith("--dep=")] + ["5"])[0])
HF_OFF = 0
HF_SZ = 64*112*1024
WF_OFF = HF_SZ
WF_SZ = 16*112*1024
A4_OFF = WF_OFF + WF_SZ
A4_SZ = 128*2048*8
G_OFF = A4_OFF + A4_SZ
G_SZ = 2048*8
FH_OFF = G_OFF + G_SZ
FS = int(([a[5:] for a in sys.argv if a.startswith('--fs=')] + ['5'])[0])
FC_OFF = FH_OFF + (2048 << FS)
FG_OFF = FC_OFF + (2048 << FS)
WS_USED = FG_OFF + (256 << FS)
SLP = int(([a[6:] for a in sys.argv if a.startswith("--slp=")] + ["12"])[0])
SPIN = 40000
TIS = int(([a[6:] for a in sys.argv if a.startswith("--tis=")] + ["4"])[0])
P2M = int(([a[6:] for a in sys.argv if a.startswith("--p2m=")] + ["0"])[0])
CPF = 240
PFN = int(([a[6:] for a in sys.argv if a.startswith('--pfn=')] + ['0'])[0])
HL = '' if OPT('hplain') else ' nt' if OPT('hnt') else ' sc1'
XV = int(([a[5:] for a in sys.argv if a.startswith('--xv=')] + ['1'])[0])
ST_OFF = 0x1000000

out = []
def e(s): out.append("    " + s)
def lab(s): out.append(s + ":")
def cm(s): out.append("    ; " + s)
def f32(x): return "0x%08x" % struct.unpack("<I", struct.pack("<f", x))[0]
def vr(a, n): return f"v[{a}:{a+n-1}]"
def ar(a, n): return f"a[{a}:{a+n-1}]"
def sr(a, n): return f"s[{a}:{a+n-1}]"
def srd(d, ptr, size, off=None):
    if off is None:
        e(f"s_mov_b32 s{d}, s{ptr}"); e(f"s_mov_b32 s{d+1}, s{ptr+1}")
    else:
        e(f"s_add_u32 s{d}, s{ptr}, {off}"); e(f"s_addc_u32 s{d+1}, s{ptr+1}, 0")
    e(f"s_mov_b32 s{d+2}, {size}"); e(f"s_mov_b32 s{d+3}, 0x20000")

DBG = "--dbg" in sys.argv
ROLE = [0]
def stamp(idx, kern, wsp, tmp=250):
    if DBG:
        slot = {(0,0):[0,1,2,3], (0,1):[0,4,5,6], (0,2):[0,7,8,9,10,11], (1,0):[12,13,14]}[(kern,ROLE[0])][idx]
        e("s_memrealtime s[96:97]")
        e(f"s_sub_u32 s98, s44, {512*kern}"); e("s_subb_u32 s99, s45, 0")
        e("s_waitcnt lgkmcnt(0)")
        if slot == 0 or slot == 12: e("s_not_b32 s96, s96")
        e(f"v_mov_b32 v{tmp}, s96"); e(f"v_mov_b32 v{tmp+2}, {4*slot}")
        e("s_mov_b64 exec, 1")
        e(f"global_atomic_umax v{tmp+2}, v{tmp}, s[98:99]")
        e("s_mov_b64 exec, -1")
        return
    if not STAMP: return
    e("s_memrealtime s[96:97]")
    e("s_memtime s[100:101]")
    e("s_lshl_b32 s98, s2, 3"); e("s_add_u32 s98, s98, s3"); e("s_lshl_b32 s98, s98, 6")
    e(f"s_add_u32 s98, s98, {ST_OFF + kern*0x40000 + idx*8}")
    e("s_waitcnt lgkmcnt(0)")
    e(f"v_mov_b32 v{tmp}, s96"); e(f"v_mov_b32 v{tmp+1}, s100"); e(f"v_mov_b32 v{tmp+2}, s98")
    e(f"global_store_dwordx2 v{tmp+2}, v[{tmp}:{tmp+1}], s[{wsp}:{wsp+1}]")

P_U, P_LAR, P_AIM, P_CR, P_CI, P_LDT, P_DSK = 16, 18, 20, 22, 24, 26, 28
P_W1, P_B1, P_W2, P_B2, P_GW, P_OUT, P_DBG, P_WS = 32, 34, 36, 38, 40, 42, 44, 46
LOG2E = 1.4426950408889634
L_HI = struct.unpack("<f", struct.pack("<f", LOG2E))[0]
L_LO = LOG2E - L_HI
LN2 = 0.6931471805599453

def prologue(nwg):
    e(f"s_cmp_ge_u32 s2, {nwg}")
    e("s_cbranch_scc1 " + EXIT)
    e("s_load_dwordx16 s[16:31], s[0:1], 0")
    e("s_load_dwordx16 s[32:47], s[0:1], 64")
    if OPT("cpf"):
        e(f"s_cmp_lt_u32 s2, {CPF}")
        e("s_cbranch_scc1 La_nocpf")
        e("s_getpc_b64 s[6:7]")
        lab("La_pc")
        e("v_lshlrev_b32 v2, 6, v0")
        e("v_min_u32 v2, La_exit-La_pc, v2")
        e("global_load_dword v255, v2, s[6:7]")
        lab("La_nocpf")
    e("v_lshrrev_b32 v2, 6, v0")
    e("v_and_b32 v1, 63, v0")
    e("v_readfirstlane_b32 s3, v2")
    e("s_and_b32 s4, s2, 7")
    e("s_lshr_b32 s5, s2, 3")
    SW = [tuple(map(int, x.split(","))) for x in ([a[7:] for a in sys.argv if a.startswith("--swap=")] + [""])[0].split(":") if x]
    for (sa, sb) in SW:
        e(f"s_cmp_eq_u32 s5, {sa}"); e(f"s_cselect_b32 s6, {sa ^ sb}, 0"); e(f"s_cmp_eq_u32 s5, {sb}"); e(f"s_cselect_b32 s6, {sa ^ sb}, s6"); e("s_xor_b32 s5, s5, s6")
    if SW: e("s_lshl_b32 s2, s5, 3"); e("s_add_u32 s2, s2, s4")
    if P2M == 0: e("s_lshl_b32 s97, s5, 3")
    if P2M in (1, 2):
        e("s_lshl_b32 s97, s5, 1"); e("s_lshr_b32 s6, s5, 4"); e("s_or_b32 s97, s97, s6"); e("s_and_b32 s97, s97, 31")
        if P2M == 2: e("s_xor_b32 s97, s97, 1")
        e("s_lshl_b32 s97, s97, 3")


SG = 80
SA_, SB_, SC_, ST_, SSTR, STAG, SW2P = 87, 88, 89, 90, 78, 79, 92
WR = 128; WD = 240; AC2 = 64
HD = int(([a[5:] for a in sys.argv if a.startswith("--hd=")] + ["5"])[0])
HREG = [16, 24, 32, 48, 56]
VW0, VW1, VT = 44, 45, 43
uid = [0]
def p2_setup(gemm_map, vw0, vw1, vt, t0):
    e("s_sub_u32 s77, s3, 4")
    e("s_bfe_u32 s76, s97, 0x30003")
    e(f"s_mul_i32 s91, s77, {448*1024}"); e("s_lshl_b32 s80, s76, 7"); e("s_add_u32 s91, s91, s80")
    e(f"v_lshrrev_b32 v{vw0}, 3, v1"); e(f"v_lshlrev_b32 v{vw0}, 10, v{vw0}")
    e(f"v_bfe_u32 v{vw1}, v1, 4, 1"); e(f"v_lshlrev_b32 v{vw1}, 2, v{vw1}"); e(f"v_and_b32 v{t0}, 7, v1"); e(f"v_xor_b32 v{vw1}, v{vw1}, v{t0}")
    e(f"v_lshl_add_u32 v{vw0}, v{vw1}, 4, v{vw0}"); e(f"v_add_u32 v{vw0}, s91, v{vw0}"); e(f"v_add_u32 v{vw1}, 0x2000, v{vw0}")
    if OPT("lin"):
        e("s_mul_i32 s91, s76, 229376"); e("s_mul_i32 s80, s77, 57344"); e("s_add_u32 s91, s91, s80")
        e(f"v_lshl_add_u32 v{vw0}, v1, 4, s91"); e(f"v_add_u32 v{vw1}, 0x400, v{vw0}")
    e("s_lshr_b32 s80, s97, 6"); e("s_lshl_b32 s80, s80, 1"); e("s_add_u32 s80, s80, s76")
    e("s_cmp_ge_u32 s80, 7"); e("s_cselect_b32 s81, 7, 0"); e("s_sub_u32 s80, s80, s81")
    e("s_lshl_b32 s80, s80, 12")
    for i in range(1, 7):
        e(f"s_add_u32 s{80+i}, s{79+i}, 4096"); e(f"s_cmp_eq_u32 s{80+i}, {7*4096}"); e(f"s_cselect_b32 s{80+i}, 0, s{80+i}")
    e("s_lshr_b32 s76, s77, 1")
    e(f"v_bfe_u32 v{vt}, v1, 2, 2"); e(f"v_lshrrev_b32 v{t0}, 5, v1"); e(f"v_lshl_add_u32 v{vt}, v{t0}, 2, v{vt}"); e(f"v_lshlrev_b32 v{vt}, 7, v{vt}")
    e(f"v_bfe_u32 v{t0}, v1, 3, 1"); e(f"v_xor_b32 v{t0}, s76, v{t0}"); e(f"v_lshl_add_u32 v{vt}, v{t0}, 6, v{vt}")
    e(f"v_bfe_u32 v{t0}, v1, 4, 1"); e(f"v_lshl_add_u32 v{vt}, v{t0}, 5, v{vt}")
    e(f"v_and_b32 v{t0}, 3, v1"); e(f"v_lshl_add_u32 v{vt}, v{t0}, 3, v{vt}")
    p2_map(77)
    e(f"s_add_u32 s{SA_}, s{ST_}, 8704"); e(f"s_add_u32 s{SB_}, s{ST_}, 29184")
    if gemm_map:
        e(f"s_mul_i32 s{SSTR}, s77, 12288"); e(f"s_add_u32 s{SSTR}, s{SSTR}, 98304")
        e(f"s_lshl_b32 s{SC_}, s77, 12"); e(f"s_add_u32 s{SC_}, s{SC_}, 147456")
    srd(SW2P, P_W2, 1792*1024)
def p2_map(q):
    e(f"s_mul_i32 s{ST_}, s{q}, 40960")
def wdma(s0, n, base, vw0=VW0, vw1=VW1, slot0=0):
    for i in range(n):
        s = s0 + i
        e(f"s_add_u32 m0, s{base}, {2048*(i+slot0)}")
        if i == 0 or s & 3 == 0:
            e(f"s_lshl_b32 s91, s{SG + s//4}, {1 if OPT('lin') else 4}")
            if s & 3: e(f"s_add_u32 s91, s91, {(2048 if OPT('lin') else 16384)*(s&3)}")
        else: e(f"s_add_u32 s91, s91, {2048 if OPT('lin') else 16384}")
        e(f"buffer_load_dwordx4 v{vw0}, {sr(SW2P,4)}, s91 offen lds")
        e("s_add_u32 m0, m0, 1024"); e("s_nop 0")
        e(f"buffer_load_dwordx4 v{vw1}, {sr(SW2P,4)}, s91 offen lds")
def wrd_regs(s0, n, base, vt=VT, slot0=0):
    e(f"v_add_u32 v{WD}, s{base}, v{vt}"); e(f"v_xor_b32 v{WD+1}, 64, v{WD}")
    for i in range(n):
        for b in range(2):
            for u in range(2):
                e(f"ds_read_b64_tr_b16 {vr(WR+8*(s0+i)+4*b+2*u,2)}, v{WD+b} offset:{2048*(i+slot0)+1024*u}")
def wpre_conv(mid):
    wdma(0, 10, SA_)
    mid()
    if STAMP: e("s_memrealtime s[56:57]")
    wrd_regs(0, 10, SA_)
    e("s_waitcnt lgkmcnt(0)")
    wdma(10, 4, SA_, slot0=6); wdma(14, 6, SA_)
    if STAMP: e("s_memrealtime s[58:59]")
def wpost_conv():
    wrd_regs(10, 4, SA_, slot0=6)
    wdma(24, 4, SA_, slot0=10)
    e("s_waitcnt lgkmcnt(0)")
    wdma(20, 4, SA_, slot0=6)
def tag_issue(v):
    e(f"v_mov_b32 v{v}, 0")
    e(f"global_load_dword v{v}, v{v}, {sr(P_DBG,2)}")
NCLR = 16
LSIG = 40704
def tag_get(v, t):
    uid[0] += 1; L = f"Ltag{uid[0]}"
    e(f"v_readfirstlane_b32 s{STAG}, v{v}")
    e(f"s_ff1_i32_b32 s{STAG}, s{STAG}"); e(f"s_cmp_ge_i32 s{STAG}, 4"); e(f"s_cbranch_scc1 {L}")
    e(f"s_mov_b32 s76, {SPIN}"); e(f"v_mov_b32 v{t}, 0")
    lab(L + "p")
    e(f"global_load_dword v{v}, v{t}, {sr(P_DBG,2)} sc1")
    e("s_sub_u32 s76, s76, 1")
    e("s_waitcnt vmcnt(0)")
    e(f"v_readfirstlane_b32 s{STAG}, v{v}")
    e(f"s_ff1_i32_b32 s{STAG}, s{STAG}"); e(f"s_cmp_ge_i32 s{STAG}, 4"); e(f"s_cbranch_scc1 {L}")
    e(f"s_sleep {SLP}")
    e("s_cmp_lg_u32 s76, 0"); e(f"s_cbranch_scc1 {L}p")
    lab(L)
    e(f"s_mov_b32 s{STAG}, {NCLR}")
def publish(soff, t):
    e(f"v_mov_b32 v{t}, s{STAG}"); e(f"v_mov_b32 v{t+1}, s{soff}")
    e("s_mov_b64 exec, 1")
    e(f"global_store_dword v{t+1}, v{t}, {sr(P_WS,2)} sc1")
    e("s_mov_b64 exec, -1")
def poll(va, vd, n=None):
    uid[0] += 1; L = f"Lpoll{uid[0]}"
    e(f"s_mov_b32 s76, {n or SPIN}")
    lab(L)
    e(f"global_load_dword v{vd}, v{va}, {sr(P_WS,2)} sc1")
    e("s_sub_u32 s76, s76, 1")
    e("s_waitcnt vmcnt(0)")
    e(f"v_cmp_ne_u32 vcc, s{STAG}, v{vd}")
    e("s_cmp_eq_u32 s76, 0"); e(f"s_cbranch_scc1 {L}x")
    e(f"s_cbranch_vccz {L}x")
    e(f"s_sleep {SLP}")
    e(f"s_branch {L}")
    lab(L + "x")

def gemm1():
    SX, SW, SH, SB = 48, 52, 56, 60
    SL = 49152; WB = 32768
    cm("---- GEMM1: mt = s4, ft = s5; waves 0-3 compute, 4-7 load")
    if OPT("ftx"): e("s_xor_b32 s5, s5, 1")
    e("s_lshl_b32 s8, s5, 8")
    e("s_cmp_lt_u32 s3, 4")
    e("s_cbranch_scc1 Lg_comp")
    vX0, vX1, vW = 2, 3, 4
    e("s_sub_u32 s11, s3, 4")
    e("s_lshl_b32 s6, s4, 18")
    e("s_lshl_b32 s7, s11, 16")
    e("v_lshrrev_b32 v5, 3, v1")
    e("v_lshrrev_b32 v6, 4, v1")
    e("v_and_b32 v7, 7, v1")
    e("v_xor_b32 v7, v7, v6")
    e("v_lshlrev_b32 v7, 4, v7")
    e(f"v_lshl_add_u32 v{vX0}, v5, 10, v7")
    e(f"v_add_u32 v{vX0}, s7, v{vX0}")
    e(f"v_xor_b32 v{vX1}, 64, v{vX0}")
    e(f"v_add_u32 v{vX1}, 0x2000, v{vX1}")
    e("s_mul_i32 s7, s11, %d" % (16*3584))
    e("s_add_u32 s7, s7, s8")
    e("v_and_b32 v7, 15, v1")
    e("v_lshlrev_b32 v5, 2, v6")
    e("v_xor_b32 v7, v7, v5")
    e("v_lshlrev_b32 v7, 4, v7")
    e("v_mul_u32_u24 v5, 3584, v6")
    e(f"v_add3_u32 v{vW}, v5, v7, s7")
    e("s_lshl_b32 s9, s11, 13")
    e("s_lshl_b32 s10, s11, 12")
    e(f"s_add_u32 s10, s10, {WB}")
    ROT = int(([a[6:] for a in sys.argv if a.startswith("--rot=")] + ["0"])[0])
    if ROT == 0: e("s_add_u32 s12, s4, s5")
    if ROT == 1: e("s_mov_b32 s12, s4")
    if ROT == 2: e("s_lshl_b32 s12, s5, 2"); e("s_add_u32 s12, s12, s4")
    if ROT == 3: e("s_lshl_b32 s12, s5, 1"); e("s_add_u32 s12, s12, s4")
    e("s_waitcnt lgkmcnt(0)")
    stamp(0, 0, P_WS)
    srd(SX, P_U, 262144, "s6")
    srd(SW, P_W1, 512*3584)
    def issue(k):
        e("s_and_b32 s12, s12, 7")
        e("s_lshl_b32 s14, s12, 7")
        e(f"s_add_u32 m0, s10, {(k % 3)*SL}")
        e(f"s_mul_i32 s64, s12, {64*3584}")
        for i in range(4):
            e(f"buffer_load_dwordx4 v{vW}, {sr(SW,4)}, s64 offen lds")
            if i < 3:
                e("s_add_u32 m0, m0, 1024"); e(f"s_add_u32 s64, s64, {4*3584}")
        e(f"s_add_u32 m0, s9, {(k % 3)*SL}")
        e("s_add_u32 s12, s12, 1")
        for i in range(8):
            e(f"buffer_load_dwordx4 v{vX1 if i & 1 else vX0}, {sr(SX,4)}, s14 offen lds")
            if i < 7:
                e("s_add_u32 m0, m0, 1024")
                e("s_add_u32 s14, s14, 16384" if i & 1 else "s_nop 0")
    issue(0); issue(1)
    p2_setup(True, VW0, VW1, VT, 5)
    e("s_waitcnt vmcnt(12)")
    e("s_barrier")
    for k in range(2, 8):
        issue(k)
        if k >= 4: e("s_waitcnt vmcnt(26)"); wrd_regs(k-4, 1, SC_, slot0=k & 1); e("s_waitcnt lgkmcnt(0)")
        wdma(k-2, 1, SC_, slot0=k & 1)
        e(f"s_waitcnt vmcnt({14 if k == 2 else 16})")
        e("s_barrier")
    wdma(8, 6, SSTR)
    e("s_waitcnt vmcnt(12)")
    wrd_regs(4, 2, SC_)
    e("s_barrier")
    e("s_waitcnt lgkmcnt(0)")
    wdma(6, 2, SC_)
    e("s_waitcnt vmcnt(4)")
    if STAMP: e("s_memrealtime s[56:57]")
    wrd_regs(8, 6, SSTR)
    e("s_waitcnt vmcnt(0)")
    wrd_regs(6, 2, SC_)
    e("s_waitcnt lgkmcnt(0)")
    e("s_barrier")
    if STAMP: e("s_memrealtime s[58:59]")
    wdma(14, 14, SA_)
    e("s_branch Lp2_main")
    lab("Lg_comp")
    vXa, vXb, vWa, vH, vWb = 8, 12, 16, 18, 22
    F = [32, 56]
    ACC = 128
    e("s_and_b32 s11, s3, 1")
    e("s_lshr_b32 s12, s3, 1")
    e("s_lshl_b32 s13, s12, 7")
    e("s_add_u32 s13, s13, s8")
    e("v_lshrrev_b32 v5, 5, v1")
    e("v_lshl_add_u32 v7, v5, 3, s13")
    e("s_waitcnt lgkmcnt(0)")
    stamp(0, 0, P_WS, 24)
    srd(SB, P_B1, 3584)
    srd(SH, P_WS, HF_SZ)
    for b in range(2):
        for j in range(4):
            e(f"buffer_load_dwordx2 {vr(80+8*b+2*j,2)}, v7, {sr(SB,4)}, 0 offen offset:{64*b+16*j}")
    e("v_and_b32 v6, 31, v1")
    e("v_bfe_u32 v7, v1, 1, 3")
    e("v_xor_b32 v7, v7, v5")
    e("v_lshlrev_b32 v7, 4, v7")
    e("v_lshl_add_u32 v7, v6, 7, v7")
    e("s_lshl_b32 s13, s11, 14")
    e(f"v_add_u32 v{vXa}, s13, v7")
    for ks in range(1, 4): e(f"v_xor_b32 v{vXa+ks}, {32*ks}, v{vXa}")
    for ks in range(4): e(f"v_add_u32 v{vXb+ks}, {2*SL}, v{vXa+ks}")
    e("v_bfe_u32 v6, v1, 2, 2")
    e("v_lshl_add_u32 v7, v5, 3, v6")
    e("v_lshlrev_b32 v7, 8, v7")
    e("v_bfe_u32 v19, v1, 4, 1")
    e("v_bfe_u32 v20, v1, 1, 1")
    e("v_lshl_add_u32 v19, v19, 1, v20")
    e("s_lshl_b32 s13, s12, 3")
    e("v_add_u32 v19, s13, v19")
    e("v_lshlrev_b32 v6, 2, v6")
    e("v_xor_b32 v19, v19, v6")
    e("v_lshl_add_u32 v7, v19, 4, v7")
    e("v_and_b32 v20, 1, v1")
    e("v_lshl_add_u32 v7, v20, 3, v7")
    e(f"v_add_u32 v{vWa}, {WB}, v7")
    e(f"v_xor_b32 v{vWa+1}, 64, v{vWa}")
    for b in range(2): e(f"v_add_u32 v{vWb+b}, {2*SL}, v{vWa+b}")
    e("s_lshl_b32 s68, s4, 1"); e("s_add_u32 s68, s68, s11"); e("s_lshl_b32 s68, s68, 5")
    e("s_lshl_b32 s13, s5, 1"); e("s_add_u32 s68, s68, s13"); e("s_add_u32 s68, s68, s12")
    e(f"s_lshl_b32 s68, s68, {2+FS}"); e(f"s_add_u32 s68, s68, {FH_OFF}")
    p2_map(3)
    e("s_lshl_b32 s13, s4, 3"); e("s_lshl_b32 s14, s11, 2"); e("s_add_u32 s13, s13, s14")
    e("s_mul_i32 s13, s13, 112")
    e("s_lshl_b32 s14, s5, 3"); e("s_add_u32 s13, s13, s14")
    e("s_lshl_b32 s14, s12, 2"); e("s_add_u32 s13, s13, s14")
    e("s_lshl_b32 s13, s13, 10")
    e(f"v_lshl_add_u32 v{vH}, v1, 4, s13")
    e("v_and_b32 v28, 31, v1"); e("v_lshl_add_u32 v28, v28, 7, s13"); e(f"v_mul_u32_u24 v29, {112*1024}, v5"); e("v_add_u32 v28, v28, v29")
    for a in range(1, 4): e(f"s_mov_b32 s{64+a}, {a*112*1024}")
    BI = 96
    e("s_waitcnt vmcnt(0)")
    for b in range(2):
        for j in range(8):
            src = 80 + 8*b + j
            e(f"v_lshlrev_b32 v{BI+16*b+2*j}, 16, v{src}")
            e(f"v_and_b32 v{BI+16*b+2*j+1}, 0xffff0000, v{src}")
    def xrd(s, ks, a, reg):
        sl = s % 3
        return f"ds_read_b128 {vr(reg,4)}, v{(vXb if sl == 2 else vXa) + ks} offset:{(sl*SL if sl < 2 else 0)+4096*a}"
    def wrd(s, ks, b, reg):
        sl = s % 3
        return [f"ds_read_b64_tr_b16 {vr(reg+2*u,2)}, v{(vWb if sl == 2 else vWa)+b} offset:{(sl*SL if sl < 2 else 0)+(16*ks+4*u)*256}" for u in range(2)]
    def rdlist(s, ks, fs):
        return wrd(s, ks, 0, fs+16) + [xrd(s, ks, a, fs+4*a) for a in range(4)] + wrd(s, ks, 1, fs+20)
    def mfmas(fs, rl, first=False):
        n = 0
        for b in range(2):
            for a in range(4):
                acc = vr(ACC+64*b+16*a, 16)
                e(f"v_mfma_f32_32x32x16_bf16 {acc}, {vr(fs+16+4*b,4)}, {vr(fs+4*a,4)}, {vr(BI+16*b,16) if first else acc}")
                for r in rl[2*n:2*n+2]: e(r)
                n += 1
    quads = list(range(32, 56, 4)) + list(range(80, 128, 4)) + list(range(56, 80, 4))
    W7 = {(0, ks): quads[ks] for ks in range(4)}
    X7 = {(a, ks): quads[4+4*a+ks] for a in range(4) for ks in range(4)}
    W7.update({(1, ks): quads[20+ks] for ks in range(4)})
    def w7(b): return sum((wrd(7, ks, b, W7[b, ks]) for ks in range(4)), [])
    def x7(a): return [xrd(7, ks, a, X7[a, ks]) for ks in range(4)]
    e("s_barrier")
    stamp(1, 0, P_WS, 24)
    for r in rdlist(0, 0, F[0]): e(r)
    for s in range(7):
        for ks in range(4):
            e("s_waitcnt lgkmcnt(0)")
            if ks < 3: rl = rdlist(s, ks+1, F[(ks+1) & 1])
            else:
                e("s_barrier")
                rl = rdlist(s+1, 0, F[0]) if s < 6 else w7(0) + x7(0) + x7(1)
            if s == TIS and ks == 0: tag_issue(4)
            mfmas(F[ks & 1], rl, s == 0 and ks == 0)
    def epi(j):
        b, a = j >> 2, j & 3
        base = ACC+64*b+16*a
        L = [f"v_max_f32 v{base+r}, 0, v{base+r}" for r in range(16)]
        L += [f"v_pk_mul_f32 {vr(base+2*r,2)}, {vr(base+2*r,2)}, {vr(base+2*r,2)}" for r in range(8)]
        L += [f"v_cvt_pk_bf16_f32 v{base+r}, v{base+2*r}, v{base+2*r+1}" for r in range(8)]
        L += [f"buffer_store_dwordx4 {vr(base+4*s_,4)}, v{vH}, {sr(SH,4)}, {'0' if a == 0 else 's%d' % (64+a)} offen offset:{2048*b+1024*s_}{SC1H}" for s_ in range(0 if OPT("nost") else 2)]
        return L
    extra = {0: x7(2) + x7(3), 1: w7(1)}
    waits = {0: 4, 1: 8, 2: 12, 3: 8, 4: 0}
    pend = []
    pos = [0]
    def emit(x): e(x); pos[0] += 1
    for j in range(8):
        b, a = j >> 2, j & 3
        if j in waits: emit(f"s_waitcnt lgkmcnt({waits[j]})")
        acc = vr(ACC+64*b+16*a, 16)
        for ks in range(4):
            emit(f"v_mfma_f32_32x32x16_bf16 {acc}, {vr(W7[b,ks],4)}, {vr(X7[a,ks],4)}, {acc}")
            if ks == 3: pend += [(x, pos[0] + 12) for x in epi(j)]
            for r in extra.get(j, [])[2*ks:2*ks+2]: emit(r)
            n = 0
            while pend and n < 9 and pend[0][1] <= pos[0]:
                emit(pend.pop(0)[0]); n += 1
    stamp(2, 0, P_WS, 24)
    while pend:
        if pend[0][1] > pos[0]:
            d = pend[0][1] - pos[0]; e(f"s_nop {d-1}"); pos[0] += d
        emit(pend.pop(0)[0])
    if XV == 2: e("s_barrier")
    e("s_waitcnt vmcnt(0)" if OPT("nost") else "s_waitcnt vmcnt(16)")
    tag_get(4, 20)
    e("s_waitcnt vmcnt(0)")
    publish(68, 20)
    if OPT("hpf"):
        e(f"buffer_load_dword v100, v28, {sr(SH,4)}, 0 offen sc1")
        e(f"buffer_load_dword v101, v28, {sr(SH,4)}, s66 offen sc1")
    stamp(3, 0, P_WS, 24)
    if XV != 2: e("s_barrier")
    e("s_branch Lp2_aux")

PITCH = 528
CR_SZ = 59*PITCH
R_OFF = 32*PITCH
RG = 40960
UB = CR_SZ
US = 4576
LDS1 = 4*RG

def exp_acc(dst, x, t0, t1):
    e(f"v_mul_f32 v{t0}, s70, v{x}")
    e(f"v_fma_f32 v{t1}, v{x}, s70, -v{t0}")
    e(f"v_exp_f32 v{dst}, v{t0}")
    e(f"v_fmac_f32 v{t1}, {f32(L_LO)}, v{x}")
    e(f"v_mul_f32 v{t1}, {f32(LN2)}, v{t1}")
    e(f"v_fmac_f32 v{dst}, v{dst}, v{t1}")

def cexp(dr, di, zr2, zi2, p, t):
    if p == 1:
        e(f"v_exp_f32 v{t}, v{zr2}")
        e(f"v_fract_f32 v{di}, v{zi2}")
    else:
        e(f"v_mul_f32 v{t}, {f32(p)}, v{zr2}")
        e(f"v_mul_f32 v{di}, {f32(p)}, v{zi2}")
        e(f"v_exp_f32 v{t}, v{t}")
        e(f"v_fract_f32 v{di}, v{di}")
    e(f"v_cos_f32 v{dr}, v{di}")
    e(f"v_sin_f32 v{di}, v{di}")
    e(f"v_mul_f32 v{dr}, v{dr}, v{t}")
    e(f"v_mul_f32 v{di}, v{di}, v{t}")

def p2(r): return f"v[{r}:{r+1}]"
def cmulp(d, x, en, t):
    e(f"v_pk_mul_f32 {p2(t)}, {p2(x+2)}, {p2(en+2)}")
    e(f"v_pk_mul_f32 {p2(t+2)}, {p2(x+2)}, {p2(en)}")
    e(f"v_pk_fma_f32 {p2(d+2)}, {p2(x)}, {p2(en+2)}, {p2(t+2)}")
    e(f"v_pk_fma_f32 {p2(d)}, {p2(x)}, {p2(en)}, {p2(t)} neg_lo:[0,0,1] neg_hi:[0,0,1]")

CS2 = 4224
def conv():
    SU, SWS, SW2 = 48, 52, 56
    UR = 46
    cm("---- conv role: G = 16*s4 + s5 - 14")
    e("s_sub_u32 s5, s5, 14")
    e("s_lshl_b32 s6, s4, 4"); e("s_add_u32 s6, s6, s5")
    e("s_and_b32 s7, s3, 3")
    e("s_lshl_b32 s8, s6, 2"); e("s_add_u32 s8, s8, s7")
    e("s_lshl_b32 s9, s8, 8")
    e("v_lshl_add_u32 v2, v1, 2, s9")
    e("s_lshr_b32 s10, s8, 1"); e("s_lshl_b32 s10, s10, 2")
    e("s_lshl_b32 s11, s6, 3")
    e(f"s_mul_i32 s12, s7, {RG}")
    e("v_lshl_add_u32 v3, v1, 3, s12")
    e(f"s_mov_b32 s70, {f32(L_HI)}")
    e("s_lshl_b32 s64, s5, 17"); e("s_lshl_b32 s65, s3, 14"); e("s_add_u32 s64, s64, s65"); e("s_add_u32 s64, s64, s11")
    e("v_and_b32 v9, 15, v1"); e("v_lshl_add_u32 v9, v9, 10, s64")
    e("s_waitcnt lgkmcnt(0)")
    stamp(0, 0, P_WS)
    e(f"s_load_dword s13, {sr(P_LDT,2)}, s10")
    e(f"s_load_dwordx2 s[14:15], {sr(P_DSK,2)}, s11")
    e(f"global_load_dword v4, v2, {sr(P_LAR,2)}")
    e(f"global_load_dword v5, v2, {sr(P_AIM,2)}")
    e(f"global_load_dword v6, v2, {sr(P_CR,2)}")
    e(f"global_load_dword v7, v2, {sr(P_CI,2)}")
    e(f"global_load_dword v11, v9, {sr(P_U,2)}")
    srd(SWS, P_WS, WS_USED)
    srd(SU, P_U, 2048*1024)
    e("v_subrev_u32 v8, 256, v0")
    e("v_lshl_add_u32 v9, v8, 13, s11")
    e("v_subrev_u32 v10, 0x400, v9")
    e("s_movk_i32 s64, 4096")
    e("v_and_b32 v20, 31, v1"); e("v_lshrrev_b32 v21, 5, v1")
    e(f"v_mul_u32_u24 v22, {PITCH}, v20")
    e("v_lshl_add_u32 v22, v21, 4, v22")
    e("v_add_u32 v22, s12, v22")
    e("v_mov_b32 v23, v20")
    for thr in (11, 12, 15, 19, 23):
        e(f"v_cmp_le_u32 vcc, {thr}, v20")
        e("s_nop 1")
        e("v_subbrev_co_u32 v23, vcc, 0, v23, vcc")
    e(f"v_mul_u32_u24 v23, {PITCH}, v23")
    e("v_lshl_add_u32 v23, v21, 4, v23")
    e(f"s_add_u32 s66, s12, {R_OFF}")
    e("v_add_u32 v23, s66, v23")
    e("s_waitcnt lgkmcnt(0)")
    e("s_bitcmp1_b32 s8, 0")
    e("s_cselect_b32 s65, 0, 16")
    e("s_lshl_b32 s13, s13, s65")
    e("s_and_b32 s13, s13, 0xffff0000")
    e("v_mov_b32 v12, s13")
    exp_acc(13, 12, 14, 15)
    e("v_cvt_pk_bf16_f32 v13, v13, v13")
    e("v_and_b32 v13, 0xffff0000, v13")
    e("s_waitcnt vmcnt(3)")
    stamp(6, 0, P_WS)
    e("v_lshlrev_b32 v16, 16, v4"); e("v_and_b32 v17, 0xffff0000, v4")
    exp_acc(18, 16, 14, 15); exp_acc(19, 17, 24, 25)
    e("v_cvt_pk_bf16_f32 v18, v18, v19")
    e("v_lshlrev_b32 v16, 16, v18"); e("v_and_b32 v17, 0xffff0000, v18")
    e("v_lshlrev_b32 v18, 16, v5"); e("v_and_b32 v19, 0xffff0000, v5")
    for r in range(16, 20): e(f"v_mul_f32 v{r}, v{r}, v13")
    e(f"v_mul_f32 v16, {f32(-LOG2E)}, v16"); e(f"v_mul_f32 v17, {f32(-LOG2E)}, v17")
    e("v_mul_f32 v18, 0.15915494, v18"); e("v_mul_f32 v19, 0.15915494, v19")
    e("s_cmp_lt_u32 s3, 4")
    e("s_cbranch_scc0 Lc_rwave")
    ROLE[0] = 1
    E = 24; X = 28; T = 32; PK = 40
    cexp(E, E+2, 16, 18, 8, T); cexp(E+1, E+3, 17, 19, 8, T+1)
    e(f"v_mov_b32 v{X}, 1.0"); e(f"v_mov_b32 v{X+1}, 1.0"); e(f"v_mov_b32 v{X+2}, 0"); e(f"v_mov_b32 v{X+3}, 0")
    e("s_mov_b32 s66, 0")
    lab("Lc_lgen")
    for k in range(4):
        pk = PK + 2*k
        e(f"v_cvt_pk_bf16_f32 v{pk}, v{X}, v{X+2}")
        e(f"v_cvt_pk_bf16_f32 v{pk+1}, v{X+1}, v{X+3}")
        cmulp(X, X, E, T)
        e(f"ds_write_b64 v3, {vr(pk,2)} offset:{k*PITCH}")
    e(f"v_add_u32 v3, {4*PITCH}, v3")
    e("s_add_u32 s66, s66, 1"); e("s_cmp_lt_u32 s66, 8"); e("s_cbranch_scc1 Lc_lgen")
    e("s_waitcnt vmcnt(0)")
    e("v_and_b32 v4, 1, v1"); e("v_xor_b32 v4, 1, v4"); e(f"v_mul_u32_u24 v4, {CS2}, v4")
    e("v_bfe_u32 v5, v1, 1, 1"); e("v_lshl_add_u32 v4, v5, 3, v4")
    e("v_bfe_u32 v5, v1, 2, 2"); e("v_lshrrev_b32 v6, 4, v1"); e("v_add_u32 v5, v5, v6")
    e("v_lshl_add_u32 v4, v5, 4, v4"); e("s_add_u32 s66, s12, 8"); e("v_add_u32 v4, s66, v4")
    e("v_and_b32 v5, 1, v1"); e(f"v_mul_u32_u24 v5, {US}, v5")
    e("v_bfe_u32 v7, v1, 1, 3"); e("v_lshlrev_b32 v8, 2, v7"); e("v_sub_u32 v8, v8, v6")
    e("v_lshl_add_u32 v5, v8, 4, v5")
    e(f"s_add_u32 s66, s12, {UB+448+48}")
    e("v_add_u32 v5, s66, v5")
    e("v_mul_u32_u24 v8, 272, v6"); e("v_and_b32 v9, 15, v1"); e("v_lshl_add_u32 v8, v9, 4, v8"); e("v_add_u32 v8, s12, v8")
    e("v_lshl_add_u32 v10, v1, 4, s12")
    e("v_bfe_u32 v12, v1, 4, 1"); e(f"v_mul_u32_u24 v12, {CS2}, v12"); e("v_lshl_add_u32 v12, v9, 2, v12"); e("v_add_u32 v12, s12, v12")
    e("v_mov_b32 v13, 0")
    e("v_and_b32 v14, 1, v1"); e("v_cmp_eq_u32 vcc, 0, v14")
    e("s_waitcnt lgkmcnt(0)")
    stamp(7, 0, P_WS)
    e("s_barrier")
    stamp(1, 0, P_WS)
    FR = 64; KA = 192
    def krd(ks):
        e(f"ds_read_b128 {vr(FR+8*ks,4)}, v23 offset:{32*ks}")
        e(f"ds_read_b128 {vr(FR+8*ks+4,4)}, v22 offset:{32*ks}")
    for ks in range(6): krd(ks)
    ACC = 24
    for ks in range(16):
        if ks + 6 < 16: krd(ks+6)
        e(f"s_waitcnt lgkmcnt({2*min(6, 15-ks)})")
        e(f"v_mfma_f32_32x32x16_bf16 {vr(KA,16)}, {vr(FR+8*ks,4)}, {vr(FR+8*ks+4,4)}, {'0' if ks == 0 else vr(KA,16)}")
        for r in range(2): e(f"v_mov_b32 v{ACC+2*ks+r}, 0")
    stamp(5, 0, P_WS)
    e("ds_write_b32 v12, v13")
    e("s_nop 7"); e("s_nop 1")
    D = 64; S = 80; k = KA
    e(f"v_cndmask_b32 v14, v{k+13}, v{k+12}, vcc")
    e(f"v_cndmask_b32 v15, v{k+15}, v{k+14}, vcc")
    pk = [(k,k+1),(k+2,k+3),(k+4,k+4),(k+5,k+6),
          (k+8,k+8),(k+8,k+9),(k+9,k+9),(k+10,k+10),
          (k+12,k+12),(k+12,k+12),(14,k+13),(k+13,k+13),
          (k+14,k+14),(k+14,k+14),(15,k+15),(k+15,k+15)]
    for i, (a, b) in enumerate(pk):
        e(f"v_cvt_pk_bf16_f32 v{D+i}, v{a}, v{b}")
        if i == 7:
            e(f"v_permlane32_swap_b32 v{D}, v{D+2}"); e(f"v_permlane32_swap_b32 v{D+1}, v{D+3}")
            e(f"ds_write_b128 v10, {vr(D+4,4)} offset:{64+1024}")
            e(f"ds_write_b128 v10, {vr(D,4)} offset:64")
        if i == 11: e(f"ds_write_b128 v10, {vr(D+8,4)} offset:{64+2048}")
    e(f"ds_write_b128 v10, {vr(D+12,4)} offset:{64+3072}")
    e(f"v_mov_b32 v{S}, 0")
    for q in range(1, 4): e(f"v_mov_b32_dpp v{S+4*q}, v{D+4*q-1} wave_ror:1 row_mask:0xf bank_mask:0xf")
    for q in range(4):
        for j in range(3): e(f"v_mov_b32 v{S+4*q+1+j}, v{D+4*q+j}")
        e(f"v_mov_b32_dpp v{S+4*q}, v{D+4*q+3} wave_shr:1 row_mask:0xf bank_mask:0xf")
        e(f"ds_write_b128 v10, {vr(S+4*q,4)} offset:{CS2+64+1024*q}")
    FQ = [64, 128]
    e("s_waitcnt lgkmcnt(0)")
    stamp(4, 0, P_WS)
    e("s_barrier")
    stamp(2, 0, P_WS)
    def crl(fs):
        L = []
        for i in range(8):
            L.append(f"ds_read_b128 {vr(fs+32+4*i,4)}, v5 offset:{512*i}")
            L.append(f"ds_read_b64 {vr(fs+4*i,2)}, v4 offset:{512*i}")
            L.append(f"ds_read_b64 {vr(fs+4*i+2,2)}, v4 offset:{512*i+8}")
        return L
    for r in crl(FQ[0]): e(r)
    e("v_add_u32 v4, 64, v4"); e("v_subrev_u32 v5, 64, v5")
    e("s_mov_b32 s66, 0")
    lab("Lc_loop")
    for half in range(2):
        cur, nxt = FQ[half], FQ[1-half]
        e("s_waitcnt lgkmcnt(0)")
        rl = crl(nxt)
        n = 0
        for i in range(8):
            for j in range(8 - i):
                acc = vr(ACC+4*(i+j), 4)
                e(f"v_mfma_f32_16x16x32_bf16 {acc}, {vr(cur+4*i,4)}, {vr(cur+32+4*j,4)}, {acc}")
                if n < 24: e(rl[n])
                if n == 24: e("v_add_u32 v4, 64, v4")
                if n == 25: e("v_subrev_u32 v5, 64, v5")
                if n == 26 and half == 1: e("s_add_u32 s66, s66, 1")
                if n == 27 and half == 1: e("s_cmp_lt_u32 s66, 4")
                n += 1
    e("s_cbranch_scc1 Lc_loop")
    e("s_waitcnt lgkmcnt(0)")
    stamp(3, 0, P_WS)
    for t in range(8):
        if t == 6: e("s_nop 1")
        e(f"ds_write_b128 v8, {vr(ACC+4*t,4)} offset:{1088*t}")
    tag_issue(4)
    e("s_waitcnt lgkmcnt(0)")
    e("s_barrier")
    p2_map(3)
    e("s_lshl_b32 s8, s5, 2"); e("s_add_u32 s8, s8, s3")
    e("s_cmp_ge_u32 s8, 28"); e("s_cselect_b32 s9, 1, 0"); e("s_mul_i32 s10, s9, 28"); e("s_sub_u32 s10, s8, s10")
    e("s_lshl_b32 s11, s4, 1"); e("s_add_u32 s9, s9, s11")
    e("s_lshl_b32 s11, s9, 5"); e("s_add_u32 s11, s11, s10"); e(f"s_lshl_b32 s11, s11, {2+FS}"); e(f"s_add_u32 s11, s11, {FH_OFF}")
    e(f"s_mul_i32 s9, s9, {4*112*1024}"); e("s_lshl_b32 s10, s10, 12"); e("s_add_u32 s9, s9, s10"); e(f"s_add_u32 s10, s9, {2*112*1024}")
    e("v_mov_b32 v5, s11")
    e("v_and_b32 v6, 31, v1"); e("v_lshlrev_b32 v6, 7, v6"); e("v_lshrrev_b32 v7, 5, v1"); e(f"v_mul_u32_u24 v7, {112*1024}, v7"); e("v_add_u32 v6, v6, v7")
    e("s_waitcnt vmcnt(0)")
    tag_get(4, 20)
    if PFN:
        e("s_cmp_ge_u32 s8, 56"); e("s_cbranch_scc1 Lc_nopf")
        poll(5, 4, PFN)
        e("s_cbranch_vccnz Lc_nopf")
        e(f"buffer_load_dword v100, v6, {sr(SWS,4)}, s9 offen sc1")
        e(f"buffer_load_dword v101, v6, {sr(SWS,4)}, s10 offen sc1")
        lab("Lc_nopf")
    e("s_branch Lp2_aux")
    lab("Lc_rwave")
    ROLE[0] = 2
    E1 = 24; E256 = 28; T = 32; PK = 88
    R = {0: 64, 2: 68, 4: 72, 6: 76, 8: 80}; TMP = 84
    def uload(r):
        e(f"buffer_load_dwordx2 {vr(UR+2+2*r,2)}, v9, {sr(SU,4)}, {'0' if r < 4 else 's64'} offen offset:{1024*(r&3)}")
    e("s_waitcnt vmcnt(1)" if not STAMP else "s_waitcnt vmcnt(2)")
    e("v_add_f32 v13, v13, v13")
    e(f"v_lshlrev_b32 v{R[0]}, 16, v6"); e(f"v_and_b32 v{R[0]+1}, 0xffff0000, v6")
    e(f"v_lshlrev_b32 v{R[0]+2}, 16, v7"); e(f"v_and_b32 v{R[0]+3}, 0xffff0000, v7")
    e("s_mov_b64 exec, 1")
    e(f"buffer_load_dwordx2 {vr(UR,2)}, v10, {sr(SU,4)}, 0 offen")
    e("s_mov_b64 exec, -1")
    uload(0)
    cexp(E1, E1+2, 16, 18, 1, T); cexp(E1+1, E1+3, 17, 19, 1, T+1)
    cexp(E256, E256+2, 16, 18, 256, T); cexp(E256+1, E256+3, 17, 19, 256, T+1)
    for r in range(4): e(f"v_mul_f32 v{R[0]+r}, v{R[0]+r}, v13")
    cnt = [0]
    def putr(x, srow):
        pk = PK + 2*(cnt[0] % 4); cnt[0] += 1
        e(f"v_cvt_pk_bf16_f32 v{pk}, v{x}, -v{x+2}")
        e(f"v_cvt_pk_bf16_f32 v{pk+1}, v{x+1}, -v{x+3}")
        e(f"ds_write_b64 v3, {vr(pk,2)} offset:{R_OFF+srow*PITCH}")
        if cnt[0] in (3, 11, 19, 27): uload(1 + (cnt[0]-3)//8)
    putr(R[0], 0)
    cur = R[0]
    for p in range(1, 9):
        nx = R[p] if p in R else TMP
        cmulp(nx, cur, E1, T)
        if p < 8: putr(nx, p)
        cur = nx
    for xs, sr0 in (([0,2,4,6,8], 8), ([0,4,8], 13), ([0,4,8], 16), ([0,8], 19), ([0,8], 23), ([0,8], 21), ([0,8], 25)):
        for i, x in enumerate(xs):
            cmulp(R[x], R[x], E256, T)
            putr(R[x], sr0 + i)
    e("s_waitcnt lgkmcnt(0)")
    stamp(7, 0, P_WS)
    e("s_barrier")
    for r in range(5, 8): uload(r)
    stamp(1, 0, P_WS)
    e("s_mov_b32 s66, 0x05040100"); e("s_mov_b32 s67, 0x07060302")
    e("v_bfe_u32 v4, v8, 5, 1"); e(f"v_mul_u32_u24 v4, {US}, v4"); e("v_add_u32 v4, s12, v4")
    e("v_and_b32 v5, 31, v8"); e("v_min_u32 v5, 27, v5"); e("v_lshl_add_u32 v4, v5, 4, v4")
    for r in range(4): e(f"v_mov_b32 v{24+r}, 0")
    e(f"v_add_u32 v4, {UB}, v4")
    e(f"ds_write_b128 v4, {vr(24,4)}")
    e("v_lshlrev_b32 v4, 4, v8"); e(f"v_add_u32 v4, {UB+448}, v4"); e(f"v_add_u32 v5, {2*RG}, v4")
    p2_setup(False, VW0, VW1, VT, 6)
    e("s_waitcnt vmcnt(0)")
    stamp(3, 0, P_WS)
    for hh in range(2): e(f"v_mov_b32_dpp v{UR+hh}, v{UR+16+hh} wave_shr:1 row_mask:0xf bank_mask:0xf")
    def row(r, c): return UR + 2 + 2*r + (c >> 1)
    k = 0
    for c in range(4):
        sel = "s67" if c & 1 else "s66"
        for b0 in (1, 0):
            d = 64 + 4*(k % 4); k += 1
            top = 7 if b0 else 6
            for i in range(4):
                e(f"v_perm_b32 v{d+i}, v{row(top-2*i-1,c)}, v{row(top-2*i,c)}, {sel}")
            e(f"ds_write_b128 v{4 + (c >> 1)}, {vr(d,4)} offset:{(c&1)*RG+b0*US}")
    e("s_waitcnt lgkmcnt(0)")
    e("s_barrier")
    stamp(2, 0, P_WS)
    UF = 64
    def mid():
        e("s_lshl_b32 s72, s14, 16"); e("s_and_b32 s73, s14, 0xffff0000")
        e("s_lshl_b32 s74, s15, 16"); e("s_and_b32 s75, s15, 0xffff0000")
        for r in range(8):
            for hh in range(2):
                e(f"v_lshlrev_b32 v{UF+4*r+2*hh}, 16, v{UR+2+2*r+hh}")
                e(f"v_and_b32 v{UF+4*r+2*hh+1}, 0xffff0000, v{UR+2+2*r+hh}")
        e("v_lshrrev_b32 v4, 5, v8"); e("v_mul_u32_u24 v4, 1088, v4")
        e("v_and_b32 v5, 3, v8"); e("v_mul_u32_u24 v5, 272, v5")
        e("v_bfe_u32 v6, v8, 2, 3"); e("v_lshl_add_u32 v4, v6, 5, v4"); e("v_add_u32 v4, v4, v5")
        e(f"v_add_u32 v5, {2*RG}, v4")
        e("v_lshlrev_b32 v6, 4, v8")
        e("s_lshl_b32 s68, s6, 14"); e(f"s_add_u32 s68, s68, {A4_OFF}")
        for i in range(1, 4): e(f"s_add_u32 s{68+i}, s68, {4096*i}")
        e("s_lshl_b32 s64, s7, 9"); e("s_lshl_b32 s65, s6, 2"); e("s_add_u32 s64, s64, s65"); e(f"s_lshl_b32 s64, s64, {FS}"); e(f"s_add_u32 s64, s64, {FC_OFF}")
        e("s_waitcnt vmcnt(0)")
    wpre_conv(mid)
    e("s_barrier")
    stamp(4, 0, P_WS)
    tag_issue(7)
    Y = 96
    for c in range(4):
        for b0 in range(2):
            e(f"ds_read_b128 {vr(Y+8*c+4*b0,4)}, v{4 if c < 2 else 5} offset:{(c&1)*RG+16*b0}")
    for c in range(4):
        e(f"s_waitcnt lgkmcnt({6-2*c})")
        for l in range(8):
            e(f"v_fma_f32 v{UF+4*l+c}, v{UF+4*l+c}, s{72+c}, v{Y+8*c+4*(l&1)+(l>>1)}")
    O = 16
    for l in range(8):
        for hh in range(2): e(f"v_cvt_pk_bf16_f32 v{O+2*l+hh}, v{UF+4*l+2*hh}, v{UF+4*l+2*hh+1}")
    for i in range(4): e(f"buffer_store_dwordx4 {vr(O+4*i,4)}, v6, {sr(SWS,4)}, s{68+i} offen{SC1A}")
    e("s_waitcnt vmcnt(0)")
    tag_get(7, 4)
    publish(64, 4)
    wpost_conv()
    stamp(5, 0, P_WS)
    e("s_branch Lp2_main")

def idle():
    e("s_cmp_lt_u32 s3, 4")
    e("s_cbranch_scc0 Li_hi")
    p2_map(3)
    e("s_waitcnt lgkmcnt(0)")
    stamp(0, 0, P_WS)
    SU, SWS = 48, 52
    e("v_mov_b32 v4, s3")
    srd(SWS, P_WS, WS_USED)
    srd(SU, P_U, 2048*1024)
    e("s_lshl_b32 s68, s4, 1"); e("s_add_u32 s68, s68, s5"); e("s_sub_u32 s68, s68, 30")
    e("s_lshl_b32 s68, s68, 2"); e("s_add_u32 s68, s68, s3")
    e(f"s_lshl_b32 s64, s68, {2+FS}"); e(f"s_add_u32 s64, s64, {FG_OFF}")
    e("s_lshl_b32 s68, s68, 5")
    lab("Li_gate")
    e("s_lshl_b32 s69, s68, 10"); e("s_add_u32 s71, s69, 4096")
    e("v_lshlrev_b32 v4, 4, v1")
    e(f"global_load_dwordx4 {vr(96,4)}, v4, {sr(P_GW,2)}")
    for r in range(8):
        e(f"buffer_load_dwordx4 {vr(64+4*r,4)}, v4, {sr(SU,4)}, {'s69' if r < 4 else 's71'} offen offset:{1024*(r&3)}")
    e("s_waitcnt vmcnt(8)")
    for i in range(4):
        e(f"v_lshlrev_b32 v{100+2*i}, 16, v{96+i}"); e(f"v_and_b32 v{100+2*i+1}, 0xffff0000, v{96+i}")
    for r in range(8):
        e(f"s_waitcnt vmcnt({7-r})")
        for i in range(4):
            e(f"v_lshlrev_b32 v{110+2*i}, 16, v{64+4*r+i}"); e(f"v_and_b32 v{110+2*i+1}, 0xffff0000, v{64+4*r+i}")
        for i in range(8): e(f"v_mul_f32 v{110+i}, v{110+i}, v{100+i}")
        for i in range(4): e(f"v_cvt_pk_bf16_f32 v{120+i}, v{110+2*i}, v{110+2*i+1}")
        for i in range(4):
            e(f"v_lshlrev_b32 v{110+2*i}, 16, v{120+i}"); e(f"v_and_b32 v{110+2*i+1}, 0xffff0000, v{120+i}")
        for i in range(4): e(f"v_add_f32 v{110+i}, v{110+i}, v{114+i}")
        e("v_add_f32 v110, v110, v112"); e("v_add_f32 v111, v111, v113")
        e(f"v_add_f32 v{24+r}, v110, v111")
    for dpp in ("quad_perm:[1,0,3,2] row_mask:0xf", "quad_perm:[2,3,0,1] row_mask:0xf", "row_half_mirror row_mask:0xf",
                "row_mirror row_mask:0xf", "row_bcast:15 row_mask:0xa", "row_bcast:31 row_mask:0xc"):
        e("s_nop 1")
        for r in range(8): e(f"v_add_f32_dpp v{24+r}, v{24+r}, v{24+r} {dpp} bank_mask:0xf")
    e("s_nop 1")
    for r in range(8): e(f"v_readlane_b32 s{56+r}, v{24+r}, 63")
    e("s_nop 3")
    for r in range(8): e(f"v_writelane_b32 v32, s{56+r}, {r}")
    e("s_nop 1")
    e("v_cvt_pk_bf16_f32 v32, v32, v32"); e("v_and_b32 v32, 0xffff0000, v32")
    e(f"v_mul_f32 v32, {f32(-LOG2E)}, v32")
    e("v_exp_f32 v32, v32"); e("s_nop 0"); e("v_add_f32 v32, 1.0, v32"); e("v_rcp_f32 v32, v32"); e("s_nop 0")
    e("v_cvt_pk_bf16_f32 v32, v32, v32"); e("v_and_b32 v32, 0xffff0000, v32")
    e("v_sub_f32 v33, 1.0, v32")
    e("v_cvt_pk_bf16_f32 v33, v33, v33"); e("v_and_b32 v33, 0xffff0000, v33")
    e("v_lshlrev_b32 v4, 3, v1")
    e("s_lshl_b32 s69, s68, 3"); e(f"s_add_u32 s69, s69, {G_OFF}")
    e("s_mov_b64 exec, 0xff")
    e(f"buffer_store_dwordx2 v[32:33], v4, {sr(SWS,4)}, s69 offen{SC1A}")
    e("s_mov_b64 exec, -1")
    e("s_add_u32 s68, s68, 8"); e("s_and_b32 s69, s68, 31"); e("s_cbranch_scc1 Li_gate")
    tag_issue(4)
    e("s_waitcnt vmcnt(0)")
    tag_get(4, 20)
    publish(64, 4)
    stamp(1, 0, P_WS)
    e("s_branch Lp2_aux")
    lab("Li_hi")
    e("s_waitcnt lgkmcnt(0)")
    e("s_cmp_lg_u32 s3, 4"); e("s_cbranch_scc1 Li_noclr")
    e("s_sub_u32 s68, s2, 240"); e(f"s_mul_i32 s68, s68, {68*(4<<FS)}"); e(f"s_add_u32 s68, s68, {FH_OFF}")
    e(f"v_lshl_add_u32 v8, v1, {2+FS}, s68"); e("v_and_b32 v9, 3, v1"); e("v_or_b32 v9, 64, v9"); e(f"v_lshl_add_u32 v9, v9, {2+FS}, s68")
    e("v_mov_b32 v10, 0"); e("v_mov_b32 v11, 1")
    e(f"global_store_dword v8, v10, {sr(P_WS,2)} sc1")
    e(f"global_store_dword v9, v10, {sr(P_WS,2)} sc1")
    e("s_waitcnt vmcnt(0)")
    e("s_mov_b64 exec, 1")
    e(f"global_atomic_add v10, v11, {sr(P_DBG,2)} sc1")
    e("s_mov_b64 exec, -1")
    lab("Li_noclr")
    p2_setup(False, VW0, VW1, VT, 6)
    if OPT("pf3"):
        e("s_cmp_eq_u32 s3, 4"); e("s_cbranch_scc1 Li_nopf")
        e("s_sub_u32 s68, s2, 240"); e("s_mul_i32 s68, s68, 3"); e("s_add_u32 s68, s68, s3"); e("s_sub_u32 s68, s68, 5")
        e(f"s_mul_i32 s68, s68, {299*128}")
    else:
        e("s_sub_u32 s68, s2, 240"); e("s_lshl_b32 s68, s68, 2"); e("s_add_u32 s68, s68, s3"); e("s_sub_u32 s68, s68, 4")
        e(f"s_mul_i32 s68, s68, {224*128}")
    NPF = 5 if OPT("pf3") else 4
    e("v_lshlrev_b32 v4, 7, v1")
    for t in range(NPF):
        e(f"buffer_load_dword v{244+t}, v4, {sr(SW2P,4)}, s68 offen")
        if t < NPF - 1: e("s_add_u32 s68, s68, 8192")
    lab("Li_nopf")
    wpre_conv(lambda: e("s_waitcnt vmcnt(0)"))
    e("s_waitcnt vmcnt(0)")
    wpost_conv()
    e("s_branch Lp2_main")

def gemm2():
    ROLE[0] = 0
    SWS, SO, SB2 = 48, 52, 56
    def ids(q):
        e("s_lshr_b32 s6, s97, 6"); e("s_lshl_b32 s7, s4, 2"); e("s_add_u32 s6, s6, s7")
        e("s_bfe_u32 s7, s97, 0x30003")
        e(f"s_lshr_b32 s11, s{q}, 1"); e(f"s_and_b32 s12, s{q}, 1")
        e("s_lshl_b32 s13, s6, 1"); e("s_add_u32 s13, s13, s12"); e("s_lshl_b32 s13, s13, 5")
        e("s_lshl_b32 s14, s7, 1"); e("s_add_u32 s14, s14, s11"); e("s_lshl_b32 s14, s14, 5")
        e("v_and_b32 v7, 31, v1"); e("v_lshrrev_b32 v8, 5, v1")
        e("v_add_u32 v7, s13, v7")
        e("s_lshl_b32 s72, s14, 1")
        e("v_lshlrev_b32 v2, 4, v1")
        srd(SWS, P_WS, WS_USED)
    lab("Lp2_aux")
    ids(3)
    EP = 16
    e(f"s_load_dwordx16 s[52:67], {sr(P_B2,2)}, s72")
    e("v_lshlrev_b32 v9, 3, v7")
    e("v_bfe_u32 v10, v7, 1, 2"); e("v_lshl_add_u32 v10, v8, 2, v10"); e("v_lshlrev_b32 v10, 12, v10")
    e("v_lshrrev_b32 v11, 3, v7"); e("v_lshl_add_u32 v10, v11, 4, v10"); e("v_and_b32 v11, 1, v7"); e("v_lshl_add_u32 v10, v11, 3, v10")
    e("s_lshl_b32 s15, s14, 12"); e(f"s_add_u32 s15, s15, {A4_OFF}")
    e("s_add_u32 s68, s15, 32768"); e("s_add_u32 s69, s68, 32768"); e("s_add_u32 s70, s69, 32768")
    e(f"s_mov_b32 s71, {G_OFF}")
    e("s_lshr_b32 s73, s6, 3"); e("s_lshl_b32 s73, s73, 9"); e("s_add_u32 s73, s73, s14"); e(f"s_lshl_b32 s73, s73, {FS}"); e(f"s_add_u32 s73, s73, {FC_OFF}")
    e("v_and_b32 v3, 7, v1"); e(f"v_lshl_add_u32 v3, v3, {2+FS}, s73")
    e("s_lshr_b32 s73, s13, 3"); e(f"s_lshl_b32 s73, s73, {FS}"); e(f"s_add_u32 s73, s73, {FG_OFF}")
    e("v_mov_b32 v4, s73")
    e("v_cmp_gt_u32 vcc, 48, v1")
    e(f"v_add_u32 v12, s{ST_}, v2"); e(f"v_lshl_add_u32 v13, v1, 2, s{ST_}")
    e("v_cndmask_b32 v3, v4, v3, vcc")
    e("s_lshr_b32 s73, s6, 1"); e("s_lshl_b32 s73, s73, 5"); e("s_mul_i32 s74, s3, 7"); e("s_add_u32 s73, s73, s74")
    e(f"s_lshl_b32 s73, s73, {2+FS}"); e(f"s_add_u32 s73, s73, {FH_OFF}")
    e("v_cmp_gt_u32 vcc, 32, v1")
    e("v_min_u32 v5, 6, v1"); e(f"v_lshl_add_u32 v5, v5, {2+FS}, s73")
    e("v_mov_b32 v6, 0")
    e(f"ds_write_b32 v13, v6 offset:{LSIG}")
    e("v_cndmask_b32 v3, v3, v5, vcc")
    e("s_waitcnt lgkmcnt(0)")
    for i in range(8): e(f"v_mov_b32 v{EP+8+i}, s{52+4*(i>>1)+(i&1)}")
    e("s_mov_b32 exec_lo, 0")
    for i in range(8): e(f"v_mov_b32 v{EP+8+i}, s{52+4*(i>>1)+2+(i&1)}")
    e("s_mov_b32 exec_lo, -1")
    e("v_mov_b32 v6, 1")
    e("s_barrier")
    e(f"s_mov_b32 s76, {SPIN}")
    PD = int(([a[5:] for a in sys.argv if a.startswith("--pd=")] + ["1"])[0])
    for i in range(PD - 1):
        e(f"global_load_dword v{80+i}, v3, {sr(P_WS,2)} sc1")
        e(f"s_sleep {SLP}")
    lab("Lp2_poll")
    for i in range(PD):
        e(f"global_load_dword v{80+(i+PD-1)%PD}, v3, {sr(P_WS,2)} sc1")
        e("s_sub_u32 s76, s76, 1")
        e(f"s_waitcnt vmcnt({PD-1})")
        e(f"v_cmp_ne_u32 vcc, s{STAG}, v{80+i}")
        e("s_cmp_eq_u32 s76, 0"); e("s_cbranch_scc1 Lp2_pollx")
        e("s_cmp_eq_u32 vcc_lo, 0"); e("s_cbranch_scc1 Lp2_pollx")
        e(f"s_sleep {SLP}")
    e("s_branch Lp2_poll")
    lab("Lp2_pollx")
    e(f"ds_write_b32 v13, v6 offset:{LSIG}")
    e("s_cbranch_vccz Lp2_ready")
    poll(3, 4)
    lab("Lp2_ready")
    stamp(1, 1, P_WS)
    for j, so in enumerate(("s15", "s68", "s69", "s70")):
        e(f"buffer_load_dwordx2 {vr(EP+2*j,2)}, v10, {sr(SWS,4)}, {so} offen sc1")
    e(f"buffer_load_dwordx2 {vr(EP+16,2)}, v9, {sr(SWS,4)}, s71 offen sc1")
    AF = 40; BF = 56
    for i in range(8):
        e(f"v_lshlrev_b32 v{BF+2*i}, 16, v{EP+8+i}"); e(f"v_and_b32 v{BF+2*i+1}, 0xffff0000, v{EP+8+i}")
    e("s_waitcnt vmcnt(0)")
    for i in range(8):
        e(f"v_lshlrev_b32 v{AF+2*i}, 16, v{EP+i}"); e(f"v_and_b32 v{AF+2*i+1}, 0xffff0000, v{EP+i}")
    for i in range(16): e(f"v_mul_f32 v{AF+i}, v{AF+i}, v{EP+16}")
    for i in range(16): e(f"v_fmac_f32 v{AF+i}, v{BF+i}, v{EP+17}")
    for r in range(4): e(f"ds_write_b128 v12, {vr(AF+4*r,4)} offset:{1024*r}")
    e(f"ds_write_b32 v13, v{EP+17} offset:4096")
    e("s_waitcnt lgkmcnt(0)")
    stamp(2, 1, P_WS)
    e("s_barrier")
    e("s_endpgm")
    lab("Lp2_main")
    e("s_barrier")
    e("s_sub_u32 s10, s3, 4")
    ids(10)
    srd(SO, P_OUT, 2048*1024)
    e(f"s_mul_i32 s8, s10, {28*1024}")
    e(f"s_mul_i32 s9, s6, {2*112*1024}"); e("s_add_u32 s9, s9, s8")
    e(f"s_mul_i32 s13, s12, {112*1024}"); e(f"s_sub_u32 s14, {112*1024}, s13")
    e("s_add_u32 s13, s13, s9"); e("s_add_u32 s14, s14, s9")
    e("v_add_u32 v3, s13, v2"); e("v_add_u32 v4, s14, v2")
    e("v_lshlrev_b32 v12, 10, v7"); e("v_lshl_add_u32 v12, v8, 4, v12"); e("v_add_u32 v12, s72, v12")
    e(f"v_add_u32 v14, s{SA_}, v2")
    for t in range(1, 4):
        e(f"s_xor_b32 s14, s10, {t}"); e("s_mul_i32 s14, s14, 40960"); e("s_add_u32 s14, s14, 8704"); e(f"v_add_u32 v{6+t}, s14, v2")
    e(f"v_add_u32 v10, s{SA_}, v{VT}"); e("v_xor_b32 v11, 64, v10")
    e(f"v_add_u32 v2, s{ST_}, v2"); e(f"v_lshl_add_u32 v13, v1, 2, s{ST_}")
    stamp(0, 1, P_WS)
    e(f"s_mov_b32 s76, {SPIN*16}")
    lab("Lp2_wait")
    e(f"ds_read_b32 v6, v13 offset:{LSIG}")
    e("s_sub_u32 s76, s76, 1")
    e("s_waitcnt lgkmcnt(0)")
    e("v_cmp_ne_u32 vcc, 1, v6")
    e("s_cmp_eq_u32 s76, 0"); e("s_cbranch_scc1 Lp2_go")
    e("s_cbranch_vccz Lp2_go")
    e("s_sleep 1")
    e("s_branch Lp2_wait")
    lab("Lp2_go")
    stamp(1, 1, P_WS)
    hist = []
    def loads(s):
        fs = HREG[s % HD]
        for a in range(2):
            e(f"buffer_load_dwordx4 {vr(fs+4*a,4)}, v{3+a}, {sr(SWS,4)}, s{SG + s//4} offen offset:{1024*(s&3)}{HL}")
            hist.append(('h', s))
    def younger(k): return len(hist) - 1 - max(i for i, x in enumerate(hist) if x == k)
    def wrd(s):
        for b in range(2):
            for u in range(2):
                e(f"ds_read_b64_tr_b16 {vr(WD+8*(s&1)+4*b+2*u,2)}, v{10+b} offset:{2048*(s-14)+1024*u}")
    for s in range(HD): loads(s)
    for s in range(28):
        if 14 <= s + 1 < 28: wrd(s+1)
        e(f"s_waitcnt vmcnt({younger(('h', s))})" + (f" lgkmcnt({4 if s < 27 else 0})" if s >= 14 else ""))
        fs = HREG[s % HD]; wf = WR + 8*s if s < 14 else WD + 8*(s & 1)
        for b in range(2):
            for a in range(2):
                acc = vr(AC2+32*b+16*a, 16)
                e(f"v_mfma_f32_32x32x16_bf16 {acc}, {vr(wf+4*b,4)}, {vr(fs+4*a,4)}, {'0' if s == 0 else acc}")
        if s + HD < 28: loads(s + HD)
    stamp(2, 1, P_WS, 200)
    e("s_nop 7"); e("s_nop 1")
    for t in range(1, 4):
        for r in range(4):
            e(f"ds_write_b128 v14, {vr(AC2+16*t+4*r,4)} offset:{(t-1)*4096+r*1024}")
    e("s_waitcnt lgkmcnt(0)")
    e("s_barrier")
    stamp(3, 1, P_WS, 200)
    P = 128
    for t in range(3):
        for r in range(4): e(f"ds_read_b128 {vr(P+16*t+4*r,4)}, v{7+t} offset:{t*4096+r*1024}")
    e("s_waitcnt lgkmcnt(8)")
    for r in range(4): e(f"ds_read_b128 {vr(P+48+4*r,4)}, v2 offset:{r*1024}")
    e(f"ds_read_b32 v6, v13 offset:4096")
    for t in range(3):
        if t: e(f"s_waitcnt lgkmcnt({13-4*t})")
        for i in range(8): e(f"v_pk_add_f32 {p2(AC2+2*i)}, {p2(AC2+2*i)}, {p2(P+16*t+2*i)}")
    e("s_waitcnt lgkmcnt(0)")
    for i in range(16): e(f"v_fmac_f32 v{P+48+i}, v{AC2+i}, v6")
    O = 16
    for i in range(8): e(f"v_cvt_pk_bf16_f32 v{O+i}, v{P+48+2*i}, v{P+48+2*i+1}")
    e("s_nop 1")
    for jj in range(2):
        e(f"v_permlane32_swap_b32 v{O+4*jj}, v{O+4*jj+2}")
        e(f"v_permlane32_swap_b32 v{O+4*jj+1}, v{O+4*jj+3}")
    for jj in range(2):
        e(f"buffer_store_dwordx4 {vr(O+4*jj,4)}, v12, {sr(SO,4)}, 0 offen offset:{32*jj}")
    if STAMP:
        e("s_waitcnt vmcnt(0)")
        stamp(4, 1, P_WS, 200)
        for i in range(2):
            e(f"v_mov_b32 v200, s{56+2*i}"); e("v_add_u32 v202, 8, v202")
            e(f"global_store_dwordx2 v202, v[200:201], s[{P_WS}:{P_WS+1}]"); e("s_nop 1")
    e("s_endpgm")

def kd(name, vgpr, accum):
    out.append(f""".amdhsa_kernel {name}
  .amdhsa_next_free_vgpr {vgpr}
  .amdhsa_next_free_sgpr 102
  .amdhsa_accum_offset {accum}
  .amdhsa_group_segment_fixed_size 0
  .amdhsa_kernarg_size 128
  .amdhsa_user_sgpr_count 2
  .amdhsa_user_sgpr_kernarg_segment_ptr 1
  .amdhsa_system_sgpr_workgroup_id_x 1
.end_amdhsa_kernel""")

hdr = open(f"cdna_kernels/{NAME}.s.ref").read().splitlines()
for l in hdr:
    if l.startswith(";") and "@launch" not in l and "Override" not in l and "Harness parses" not in l: out.append(l)
K1 = "gmix_a_kernel" if OPT("ll") or STAMP else NAME + "_kernel"
out.append(f"; @launch {'kernel='+K1+' ' if OPT('ll') or STAMP else ''}grid=(256,1,1) block=(512,1,1) lds={LDS1}")
out.append('.amdgcn_target "amdgcn-amd-amdhsa--gfx950"')
out.append(".text")
out.append(f".globl {K1}")
out.append(".p2align 8"); out.append(f".type {K1},@function"); lab(K1)
EXIT = "La_exit"
prologue(256)
e("s_cmp_ge_u32 s5, 30")
e("s_cbranch_scc1 La_idle")
e("s_cmp_ge_u32 s5, 14")
e("s_cbranch_scc1 La_conv")
gemm1()
lab("La_conv")
conv()
lab("La_idle")
idle()
gemm2()
lab(EXIT); e("s_endpgm")
out.append('.section .rodata,"a"'); out.append(".p2align 6")
kd(K1, 256, 256)
dst = [a for a in sys.argv[1:] if not a.startswith("--")]
open(dst[0] if dst else f"cdna_kernels/{NAME}.s", "w").write("\n".join(out) + "\n")
```
